```python
import torch

def _softmax(x, axis=-1):
    return torch.softmax(x, dim=axis)

def _gelu(x):
    return torch.nn.functional.gelu(x, approximate='tanh')

def _silu(x):
    return torch.nn.functional.silu(x)

def _sigmoid(x):
    return torch.sigmoid(x)

def _layernorm(x, axis=-1, eps=1e-05):
    m = x.mean(dim=axis, keepdim=True)
    v = x.var(dim=axis, keepdim=True, unbiased=False)
    return (x - m) / torch.sqrt(v + eps)

def _scatter_add(tgt, idx, src, axis=0):
    return tgt.clone().index_add_(axis, idx, src)

def _segment_sum(src, seg, n):
    out = torch.zeros((n,) + src.shape[1:], dtype=src.dtype)
    return out.index_add_(0, seg, src)

def _pad(x, pw):
    flat = tuple((v for pair in reversed(pw) for v in pair))
    return torch.nn.functional.pad(x, flat)
kernel_name = 'adaLN_cond__sliding_local_dilated__glu_gated_swiglu__prompt'

def setup_inputs():

    _w = lambda a: (lambda t: t.to(torch.bfloat16) if t.is_floating_point() else t)(torch.as_tensor(a))

    def _A_setup():
        B, S, D = (1, 2048, 576)
        return {'x': _w((lambda *s: torch.randn(*s, dtype=torch.bfloat16) * 0.05)(B, S, D)), 'wqkv': _w((lambda *s: torch.randn(*s, dtype=torch.bfloat16) * 0.05)(D, 3 * D)), 'wo': _w((lambda *s: torch.randn(*s, dtype=torch.bfloat16) * 0.05)(D, D))}
    _A_in = _A_setup()

    def _B_setup():
        B, S, D, F = (1, 2048, 576, 4608)
        return {'x': _w((lambda *s: torch.randn(*s, dtype=torch.bfloat16) * 0.05)(B, S, D)), 'w1': _w((lambda *s: torch.randn(*s, dtype=torch.bfloat16) * 0.8)(D, F) * (2.0 / D) ** 0.5), 'w3': _w((lambda *s: torch.randn(*s, dtype=torch.bfloat16) * 0.8)(D, F) * (2.0 / D) ** 0.5), 'w2': _w((lambda *s: torch.randn(*s, dtype=torch.bfloat16) * 0.8)(F, D) * (2.0 / F) ** 0.5)}
    _B_in = _B_setup()
    return {'A_x': _A_in['x'], 'A_wqkv': _A_in['wqkv'], 'A_wo': _A_in['wo'], 'B_x': _B_in['x'], 'B_w1': _B_in['w1'], 'B_w3': _B_in['w3'], 'B_w2': _B_in['w2'], 'c': _w((lambda *s: torch.randn(*s, dtype=torch.bfloat16) * 0.1)(1, 576) * 8.0), 'w_mod': _w((lambda *s: torch.randn(*s, dtype=torch.bfloat16) * 0.1)(576, 6 * 576) * 576 ** (-0.5) * 8.0)}

def reference(A_x, A_wqkv, A_wo, B_x, B_w1, B_w3, B_w2, c, w_mod):

    def _A_ref(x, wqkv, wo):
        B, S, D = x.shape
        H = 32
        Dh = D // H
        W, dil = (8, 2)
        qkv = (lambda x, *d: x.permute(*d))((x @ wqkv).reshape(B, S, 3, H, Dh), 2, 0, 3, 1, 4)
        q, k, v = (qkv[0], qkv[1], qkv[2])
        scale = Dh ** (-0.5)
        pos = torch.arange(S)
        off = torch.arange(W) * dil
        idx = pos[:, None] - off[None, :]
        mask = idx >= 0
        idx_c = torch.where(mask, idx, 0).reshape(-1)
        kg = k[:, :, idx_c, :].reshape(B, H, S, W, Dh)
        vg = v[:, :, idx_c, :].reshape(B, H, S, W, Dh)
        logits = torch.einsum('bhsd,bhswd->bhsw', q, kg) * scale
        logits = torch.where(mask[None, None, :, :], logits, -1000000000.0)
        attn = _softmax(logits, axis=-1)
        o = torch.einsum('bhsw,bhswd->bhsd', attn, vg)
        return (lambda x, *d: x.permute(*d))(o, 0, 2, 1, 3).reshape(B, S, D) @ wo

    def _B_ref(x, w1, w3, w2):
        gate = torch.einsum('bsd,df->bsf', x, w1)
        up = torch.einsum('bsd,df->bsf', x, w3)
        h = _silu(gate) * up
        out = torch.einsum('bsf,fd->bsd', h, w2)
        return out
    x = A_x
    mod = (_silu(c) @ w_mod).reshape(c.shape[0], 6, 1, -1)
    sa, ca, ga, sb, cb, gb = (mod[:, 0].clone(), mod[:, 1].clone(), mod[:, 2].clone(), mod[:, 3].clone(), mod[:, 4].clone(), mod[:, 5].clone())
    h = _layernorm(x, axis=-1) * (1 + ca) + sa
    x = x + ga * _A_ref(h, A_wqkv, A_wo)
    h = _layernorm(x, axis=-1) * (1 + cb) + sb
    x = x + gb * _B_ref(h, B_w1, B_w3, B_w2)
    return x
```

```python
import re

TRANS = ("v_exp_f32", "v_log_f32", "v_rcp_f32", "v_rsq_f32", "v_sqrt_f32", "v_sin_f32", "v_cos_f32",
         "v_rcp_iflag_f32")


def _regs(tok):
    tok = tok.strip()
    tok = tok.lstrip("-")
    m = re.fullmatch(r"abs\((.*)\)", tok)
    if m:
        tok = m.group(1)
    tok = tok.strip("|")
    m = re.fullmatch(r"([vs])(\d+)", tok)
    if m:
        return m.group(1), {int(m.group(2))}
    m = re.fullmatch(r"([vs])\[(\d+):(\d+)\]", tok)
    if m:
        return m.group(1), set(range(int(m.group(2)), int(m.group(3)) + 1))
    if tok in ("vcc", "vcc_lo", "vcc_hi"):
        return "s", {"vcc"}
    if tok in ("exec", "exec_lo", "exec_hi"):
        return "s", {"exec"}
    if tok == "m0":
        return "s", {"m0"}
    return None, set()


class Ins:
    def __init__(self, text):
        self.text = text
        t = text.split(";")[0].strip()
        self.is_label = t.endswith(":")
        self.is_dir = t.startswith(".")
        self.vw, self.vr, self.sw, self.sr = set(), set(), set(), set()
        self.kind = "other"
        self.states = 1
        self.mn = ""
        self.srcc = set()
        self.srcab = set()
        if self.is_label or self.is_dir or not t:
            self.states = 0
            self.kind = "none"
            return
        parts = t.split(None, 1)
        mn = parts[0]
        self.mn = mn
        rest = parts[1] if len(parts) > 1 else ""
        ops = [o.strip() for o in rest.split(",")] if rest else []
        clean = []
        mods = []
        for o in ops:
            sp = o.split()
            if sp:
                clean.append(sp[0])
                mods += sp[1:]
        self.mods = mods
        for m_ in mods:
            if m_.startswith("offset:"):
                ov = int(m_.split(":")[1], 0)
                if mn.startswith("buffer_"):
                    assert 0 <= ov <= 4095, text
                elif mn.startswith("global_"):
                    assert -4096 <= ov <= 4095, text
                elif mn.startswith("ds_"):
                    assert 0 <= ov <= 65535, text
        R = [_regs(o) for o in clean]

        def rd(r):
            if r[0] == "v":
                self.vr |= r[1]
            elif r[0] == "s":
                self.sr |= r[1]

        def wr(r):
            if r[0] == "v":
                self.vw |= r[1]
            elif r[0] == "s":
                self.sw |= r[1]

        if mn == "s_nop":
            self.kind = "nop"
            self.states = int(clean[0], 0) + 1
        elif mn.startswith("v_mfma"):
            self.kind = "mfma"
            wr(R[0])
            for r in R[1:]:
                rd(r)
            if R[3][0] == "v":
                self.srcc = set(R[3][1])
            self.srcab = set(R[1][1]) | set(R[2][1])
            self.passes = 8 if "32x32x16" in mn else 4
        elif mn.startswith("v_permlane") and "swap" in mn:
            self.kind = "valu"
            self.sub = "permlane"
            for r in R:
                rd(r); wr(r)
        elif mn.startswith("v_cmpx"):
            raise ValueError("v_cmpx not supported by hazard model")
        elif mn.startswith("v_cmp"):
            self.kind = "valu"
            wr(R[0])
            for r in R[1:]:
                rd(r)
        elif mn.startswith("v_readfirstlane") or mn.startswith("v_readlane"):
            self.kind = "valu"
            self.sub = "readlane"
            wr(R[0])
            for r in R[1:]:
                rd(r)
        elif mn.startswith("v_"):
            self.kind = "valu"
            wr(R[0])
            start = 1
            if "_co_" in mn:
                wr(R[1]); start = 2
            for r in R[start:]:
                rd(r)
            if mn.startswith("v_fmac") or mn.startswith("v_pk_fmac") or mn.startswith("v_dot2c") or "fmaak" in mn:
                rd(R[0])
            if mn.startswith("v_cndmask") and len(R) == 3:
                self.sr.add("vcc")
            base = mn.replace("_e32", "").replace("_e64", "")
            if base in TRANS:
                self.sub = "trans"
            if mn.startswith("v_dot2"):
                self.sub = "dot"
                self.srcab = set(R[1][1]) | set(R[2][1])
            if any(m.startswith(("quad_perm", "row_", "wave_")) for m in mods):
                self.sub = "dpp"
        elif mn.startswith("ds_"):
            self.kind = "lds"
            if mn.startswith("ds_read") or mn.startswith("ds_bpermute") or mn.startswith("ds_swizzle") or mn.startswith("ds_permute"):
                wr(R[0])
                for r in R[1:]:
                    rd(r)
            else:
                for r in R:
                    rd(r)
        elif mn.startswith(("global_", "buffer_", "flat_")):
            self.kind = "vmem"
            lds = "lds" in mods or "_lds_" in mn
            self.ldsdma = lds
            if ("load" in mn and not lds) or ("atomic" in mn and "sc0" in mods):
                wr(R[0])
                for r in R[1:]:
                    rd(r)
                if "atomic" in mn:
                    rd(R[0])
            else:
                for r in R:
                    rd(r)
            if lds:
                self.sr.add("m0")
            self.wide_store = ("store" in mn) and ("x4" in mn or "x3" in mn)
            if self.wide_store:
                idx = 0 if mn.startswith("buffer_") else 1
                self.store_data = set(R[idx][1])
        elif mn.startswith("s_load") or mn.startswith("s_buffer_load") or mn.startswith("s_memtime"):
            self.kind = "smem"
            wr(R[0])
            for r in R[1:]:
                rd(r)
        elif mn.startswith("s_"):
            self.kind = "salu"
            if mn.startswith(("s_cmp", "s_cbranch", "s_branch", "s_waitcnt", "s_barrier", "s_endpgm", "s_setprio", "s_sleep")):
                for r in R:
                    rd(r)
            else:
                if R:
                    wr(R[0])
                for r in R[1:]:
                    rd(r)
                if "saveexec" in mn:
                    self.sw.add("exec")

    def __getattr__(self, k):
        if k in ("sub", "ldsdma", "wide_store", "store_data", "passes", "mods"):
            return None
        raise AttributeError(k)


def required(prev, cur):
    need = 0
    if prev.kind == "valu" and prev.sub == "dot":
        if cur.kind == "valu" and cur.sub == "dot" and cur.mn == prev.mn:
            if prev.vw & cur.srcab:
                need = max(need, 3)
        elif cur.kind in ("valu", "mfma", "vmem", "lds") and (prev.vw & (cur.vr | cur.vw)):
            need = max(need, 3)
    if prev.kind == "valu":
        if cur.kind == "mfma" and (prev.vw & cur.vr):
            need = max(need, 2)
        if cur.kind == "valu":
            if cur.sub == "readlane" and (prev.vw & cur.vr):
                need = max(need, 1)
            if cur.sub in ("permlane", "dpp") and (prev.vw & cur.vr):
                need = max(need, 2)
            if prev.sub == "trans" and cur.sub != "trans" and (prev.vw & cur.vr):
                need = max(need, 1)
            if prev.sw & cur.sr:
                need = max(need, 4 if cur.sub == "readlane" else 2)
        if cur.kind == "vmem" and (prev.sw & cur.sr):
            need = max(need, 5)
        if cur.kind in ("salu", "smem") and (prev.sw & cur.sr):
            need = max(need, 4)
    if prev.kind == "salu":
        if "m0" in prev.sw and cur.kind == "vmem" and cur.ldsdma:
            need = max(need, 1)
    if prev.kind == "mfma":
        p = prev.passes
        if cur.kind == "mfma":
            if prev.vw & cur.srcab:
                need = max(need, 8 if p == 4 else 12)
            if prev.vw & cur.srcc:
                if prev.vw == cur.srcc and prev.passes == cur.passes:
                    pass
                else:
                    need = max(need, 6 if p == 4 else 10)
            if (prev.vw & cur.vw) and not (prev.vw == cur.srcc and prev.passes == cur.passes):
                need = max(need, 8 if p == 4 else 12)
        elif cur.kind in ("valu", "vmem", "lds"):
            if prev.vw & (cur.vr | cur.vw):
                need = max(need, 8 if p == 4 else 12)
            if cur.kind == "valu" and (prev.srcc & cur.vw):
                need = max(need, 3 if p == 4 else 7)
    if prev.kind == "vmem" and prev.wide_store:
        if cur.kind == "valu" and (prev.store_data & cur.vw):
            need = max(need, 2)
        elif cur.kind in ("lds", "vmem", "mfma") and (prev.store_data & cur.vw):
            need = max(need, 1)
    return need


class K:
    def __init__(self, name):
        self.name = name
        self.lines = []

    def __call__(self, s):
        for ln in s.strip("\n").split("\n"):
            ln = ln.strip()
            if ln:
                self.lines.append(ln)

    def label(self, l):
        self.lines.append(l + ":")

    def finish(self):
        out = []
        hist = []
        for ln in self.lines:
            ins = Ins(ln)
            if ins.kind == "none":
                out.append(ln)
                continue
            dist = 0
            pad = 0
            for p in reversed(hist):
                if dist > 24:
                    break
                r = required(p, ins)
                if r > dist:
                    pad = max(pad, r - dist)
                dist += p.states
            while pad > 0:
                n = min(pad, 16)
                nop = Ins("s_nop %d" % (n - 1))
                out.append("    " + nop.text)
                hist.append(nop)
                pad -= n
            out.append("    " + ln)
            hist.append(ins)
            if len(hist) > 64:
                hist = hist[-40:]
        return out


def kernel_text(k, vgpr, sgpr=100):
    body = "\n".join(k.finish())
    txt = f""".globl {k.name}
.p2align 8
.type {k.name},@function
{k.name}:
{body}
"""
    acc = (vgpr + 3) // 4 * 4
    desc = f""".p2align 6
.amdhsa_kernel {k.name}
  .amdhsa_next_free_vgpr {vgpr}
  .amdhsa_next_free_sgpr {sgpr}
  .amdhsa_accum_offset {acc}
  .amdhsa_group_segment_fixed_size 0
  .amdhsa_kernarg_size 96
  .amdhsa_user_sgpr_count 2
  .amdhsa_user_sgpr_kernarg_segment_ptr 1
  .amdhsa_system_sgpr_workgroup_id_x 1
.end_amdhsa_kernel
"""
    return txt, desc
```

```python
import sys
from asmlib import K, kernel_text

NAME = "adaLN_cond__sliding_local_dilated__glu_gated_swiglu__prompt"

MOD = 0x0000000
GS = 0x0010000
STAT = 0x0040000
XN = 0x0100000
WQ = 0x0400000
WOP = 0x0700000
OO = 0x0800000
X1 = 0x0B00000
YY = 0x0E00000
HH = 0x1100000
WS_BYTES = 268435456

LOG2E = "0x3fb8aa3b"


def srd(k, d, lo, nbytes):
    k(f"""
    s_mov_b32 s{d}, s{lo}
    s_and_b32 s{d+1}, s{lo+1}, 0xffff
    s_mov_b32 s{d+2}, {nbytes}
    s_mov_b32 s{d+3}, 0x00020000
    """)


DIAG = False


def stamp(k, idx):
    if DIAG:
        k("s_memtime s[68:69]")
        k("s_waitcnt lgkmcnt(0)")
        k(f"s_mov_b32 s{70+idx}, s68")


def stamp_flush(k, n, wave_sgpr, tag):
    if not DIAG:
        return
    k(f"""
    s_cmp_lg_u32 s2, 5
    s_cbranch_scc1 {tag}_nostamp
    s_load_dwordx2 s[66:67], s[0:1], 80
    s_lshl_b32 s68, s{wave_sgpr}, 5
    v_mov_b32 v200, s68
    s_waitcnt lgkmcnt(0)
    """)
    for i in range(n):
        k(f"s_sub_u32 s69, s{70+i}, s70")
        k(f"v_mov_b32 v201, s69")
        k(f"global_store_dword v200, v201, s[66:67] offset:{4*i}")
    k(f"{tag}_nostamp:")


def bf16_round(k, dst, src, tmp=None):
    k(f"v_cvt_pk_bf16_f32 v{dst}, v{src}, v{src}")
    k(f"v_lshlrev_b32 v{dst}, 16, v{dst}")


K0_MOD, K0_XN, K0_WQ, K0_WO = 108, 64, 144, 54
K0_GRID = K0_MOD + K0_XN + K0_WQ + K0_WO


def pack_chunk(k, srd_src, rowstride, zero_hi_mask_sgpr=None):
    for r in range(8):
        k(f"s_mov_b32 s{24+r}, {r*rowstride}")
    for r in range(8):
        k(f"buffer_load_dwordx2 v[{16+2*r}:{17+2*r}], v10, s[{srd_src}:{srd_src+3}], s{24+r} offen")
    k("s_mov_b32 s32, 0x05040100")
    k("s_mov_b32 s33, 0x07060302")
    k("s_waitcnt vmcnt(0)")
    if zero_hi_mask_sgpr is not None:
        for r in range(8):
            k(f"v_cndmask_b32 v{17+2*r}, v{17+2*r}, 0, s[{zero_hi_mask_sgpr}:{zero_hi_mask_sgpr+1}]")
    for j in range(4):
        d = j >> 1
        sel = 32 + (j & 1)
        for q in range(4):
            lo = 16 + 2 * (2 * q) + d
            hi = 16 + 2 * (2 * q + 1) + d
            k(f"v_perm_b32 v{32+4*j+q}, v{hi}, v{lo}, s{sel}")
    for j in range(4):
        k(f"buffer_store_dwordx4 v[{32+4*j}:{35+4*j}], v11, s[12:15], 0 offen offset:{16*j}")


def gen_k0():
    k = K("prep_kernel")
    k(f"""
    s_cmp_ge_u32 s2, {K0_GRID}
    s_cbranch_scc1 k0_done
    s_load_dwordx2 s[4:5], s[0:1], 0
    s_load_dwordx4 s[16:19], s[0:1], 8
    s_load_dwordx4 s[20:23], s[0:1], 56
    s_load_dwordx2 s[6:7], s[0:1], 88
    v_and_b32 v1, 63, v0
    v_lshrrev_b32 v2, 6, v0
    s_waitcnt lgkmcnt(0)
    """)
    srd(k, 12, 6, WS_BYTES)
    k(f"""
    v_readfirstlane_b32 s3, v2
    s_cmp_ge_u32 s2, {K0_MOD}
    s_cbranch_scc1 k0_not_mod
    """)
    k("""
    v_and_b32 v3, 3, v0
    v_lshrrev_b32 v4, 2, v0
    v_mul_u32_u24 v5, 6912, v4
    v_lshl_add_u32 v5, v3, 4, v5
    s_lshl_b32 s10, s2, 6
    v_add_u32 v5, s10, v5
    v_lshlrev_b32 v6, 1, v4
    """)
    for i in range(9):
        k(f"global_load_ushort v{60+i}, v6, s[20:21] offset:{128*i}")
    for i in range(9):
        k(f"global_load_dwordx4 v[{16+4*i}:{19+4*i}], v5, s[22:23]")
        if i < 8:
            k(f"v_add_u32 v5, {64*6912}, v5")
    for j in range(8):
        k(f"v_mov_b32 v{80+j}, 0")
    k("s_waitcnt vmcnt(9)")
    for i in range(9):
        c = 60 + i
        k(f"""
        v_lshlrev_b32 v{c}, 16, v{c}
        v_mul_f32 v70, 0xbfb8aa3b, v{c}
        v_exp_f32 v70, v70
        v_add_f32 v70, 1.0, v70
        v_rcp_f32 v70, v70
        v_mul_f32 v{c}, v{c}, v70
        """)
        bf16_round(k, c, c)
    for i in range(9):
        k(f"s_waitcnt vmcnt({8-i})")
        for q in range(4):
            w = 16 + 4 * i + q
            k(f"""
            v_lshlrev_b32 v71, 16, v{w}
            v_and_b32 v72, 0xffff0000, v{w}
            v_fmac_f32 v{80+2*q}, v{60+i}, v71
            v_fmac_f32 v{81+2*q}, v{60+i}, v72
            """)
    k("""
    v_lshlrev_b32 v7, 5, v0
    ds_write_b128 v7, v[80:83]
    ds_write_b128 v7, v[84:87] offset:16
    s_waitcnt lgkmcnt(0)
    s_barrier
    v_and_b32 v8, 31, v0
    v_lshrrev_b32 v9, 5, v0
    v_lshlrev_b32 v10, 10, v9
    v_lshl_add_u32 v10, v8, 2, v10
    """)
    for i in range(8):
        k(f"ds_read_b32 v{16+i}, v10 offset:{128*i}")
    k("s_waitcnt lgkmcnt(0)")
    k("""
    v_add_f32 v16, v16, v17
    v_add_f32 v18, v18, v19
    v_add_f32 v20, v20, v21
    v_add_f32 v22, v22, v23
    v_add_f32 v16, v16, v18
    v_add_f32 v20, v20, v22
    v_add_f32 v16, v16, v20
    v_lshlrev_b32 v11, 2, v0
    ds_write_b32 v11, v16 offset:8192
    s_waitcnt lgkmcnt(0)
    s_barrier
    v_cmp_gt_u32 vcc, 32, v0
    s_and_saveexec_b64 s[36:37], vcc
    s_cbranch_execz k0_done
    """)
    for i in range(8):
        k(f"ds_read_b32 v{16+i}, v11 offset:{8192+128*i}")
    k("s_waitcnt lgkmcnt(0)")
    k("""
    v_add_f32 v16, v16, v17
    v_add_f32 v18, v18, v19
    v_add_f32 v20, v20, v21
    v_add_f32 v22, v22, v23
    v_add_f32 v16, v16, v18
    v_add_f32 v20, v20, v22
    v_add_f32 v16, v16, v20
    """)
    bf16_round(k, 16, 16)
    k("""
    s_mov_b32 s11, 0
    s_cmp_ge_u32 s2, 18
    s_cselect_b32 s24, 1, 0
    s_cmp_lt_u32 s2, 36
    s_cselect_b32 s25, 1, 0
    s_and_b32 s24, s24, s25
    s_cmp_ge_u32 s2, 72
    s_cselect_b32 s25, 1, 0
    s_cmp_lt_u32 s2, 90
    s_cselect_b32 s26, 1, 0
    s_and_b32 s25, s25, s26
    s_or_b32 s24, s24, s25
    s_cmp_eq_u32 s24, 0
    s_cbranch_scc1 k0_mod_store
    v_add_f32 v16, 1.0, v16
    """)
    bf16_round(k, 16, 16)
    k.label("k0_mod_store")
    k(f"""
    s_lshl_b32 s10, s2, 7
    v_add_u32 v11, s10, v11
    buffer_store_dword v16, v11, s[12:15], 0 offen offset:{MOD}
    s_branch k0_done
    """)
    k.label("k0_not_mod")
    k(f"""
    s_sub_u32 s2, s2, {K0_MOD}
    s_cmp_ge_u32 s2, {K0_XN}
    s_cbranch_scc1 k0_not_xn
    """)
    k("""
    s_lshl_b32 s10, s2, 2
    s_add_u32 s10, s10, s3
    s_lshl_b32 s10, s10, 3
    v_lshrrev_b32 v3, 3, v1
    v_add_u32 v3, s10, v3
    v_and_b32 v4, 7, v1
    v_mul_u32_u24 v5, 1152, v3
    v_lshl_add_u32 v5, v4, 4, v5
    """)
    for i in range(9):
        k(f"global_load_dwordx4 v[{16+4*i}:{19+4*i}], v5, s[4:5] offset:{128*i}")
    k(f"""
    v_lshrrev_b32 v6, 4, v3
    v_mul_u32_u24 v6, {18*1024}, v6
    v_and_b32 v7, 15, v3
    v_lshl_add_u32 v6, v7, 4, v6
    v_lshrrev_b32 v7, 2, v4
    v_lshl_add_u32 v6, v7, 10, v6
    v_and_b32 v7, 3, v4
    v_lshl_add_u32 v6, v7, 8, v6
    v_add_u32 v6, {XN}, v6
    v_mov_b32 v8, 0
    v_mov_b32 v9, 0
    """)
    for i in range(9):
        k(f"s_waitcnt vmcnt({8-i})")
        for q in range(4):
            w = 16 + 4 * i + q
            d = 64 + 8 * i + 2 * q
            k(f"v_lshlrev_b32 v{d}, 16, v{w}")
            k(f"v_and_b32 v{d+1}, 0xffff0000, v{w}")
        for q in range(4):
            d = 64 + 8 * i + 2 * q
            k(f"v_pk_add_f32 v[8:9], v[8:9], v[{d}:{d+1}]")

    def red8(r):
        k(f"v_add_f32_dpp v{r}, v{r}, v{r} quad_perm:[1,0,3,2] row_mask:0xf bank_mask:0xf")
        k(f"v_add_f32_dpp v{r}, v{r}, v{r} quad_perm:[2,3,0,1] row_mask:0xf bank_mask:0xf")
        k(f"v_add_f32_dpp v{r}, v{r}, v{r} row_half_mirror row_mask:0xf bank_mask:0xf")

    k("v_add_f32 v8, v8, v9")
    red8(8)
    k(f"v_mul_f32 v10, 0x3ae38e39, v8")
    k("v_mov_b32 v11, v10")
    k("v_mov_b32 v8, 0")
    k("v_mov_b32 v9, 0")
    for e in range(36):
        d = 64 + 2 * e
        k(f"v_pk_add_f32 v[12:13], v[{d}:{d+1}], v[10:11] neg_lo:[0,1] neg_hi:[0,1]")
        k(f"v_pk_fma_f32 v[8:9], v[12:13], v[12:13], v[8:9]")
    k("v_add_f32 v8, v8, v9")
    red8(8)
    k(f"v_mul_f32 v8, 0x3ae38e39, v8")
    bf16_round(k, 8, 8)
    k("v_add_f32 v8, 0x3727c5ac, v8")
    bf16_round(k, 8, 8)
    k("v_sqrt_f32 v8, v8")
    bf16_round(k, 8, 8)
    k("v_rcp_f32 v8, v8")
    bf16_round(k, 10, 10)
    k("v_mov_b32 v11, v10")
    k("v_mov_b32 v9, v8")
    for i in range(9):
        for q in range(4):
            d = 64 + 8 * i + 2 * q
            k(f"""
            v_pk_add_f32 v[12:13], v[{d}:{d+1}], v[10:11] neg_lo:[0,1] neg_hi:[0,1]
            v_cvt_pk_bf16_f32 v14, v12, v13
            v_lshlrev_b32 v12, 16, v14
            v_and_b32 v13, 0xffff0000, v14
            v_pk_mul_f32 v[12:13], v[12:13], v[8:9]
            v_cvt_pk_bf16_f32 v{16+4*i+q}, v12, v13
            """)
        k(f"buffer_store_dwordx4 v[{16+4*i}:{19+4*i}], v6, s[12:15], 0 offen offset:{(2*i*1024) % 4096}")
        if i % 2 == 1:
            k("v_add_u32 v6, 4096, v6")
    k("s_branch k0_done")
    k.label("k0_not_xn")
    k(f"""
    s_sub_u32 s2, s2, {K0_XN}
    s_cmp_ge_u32 s2, {K0_WQ}
    s_cbranch_scc1 k0_not_wq
    """)
    srd(k, 8, 16, 576 * 1728 * 2)
    k(f"""
    s_lshl_b32 s10, s2, 2
    s_add_u32 s34, s10, s3
    s_mov_b32 s10, {576*1728*2}
    s_and_b32 s35, s34, 7
    s_lshr_b32 s38, s34, 3
    v_cmp_gt_u32 vcc, 60, v1
    s_and_saveexec_b64 s[36:37], vcc
    v_mul_u32_u24 v3, 13, v1
    v_lshrrev_b32 v3, 8, v3
    v_mul_u32_u24 v4, 20, v3
    v_sub_u32 v4, v1, v4
    v_mul_u32_u24 v5, 13, v4
    v_lshrrev_b32 v5, 6, v5
    v_mul_u32_u24 v6, 5, v5
    v_sub_u32 v6, v4, v6
    v_cmp_eq_u32 s[40:41], 4, v6
    v_mul_u32_u24 v10, 1152, v3
    v_mul_u32_u24 v7, 36, v5
    v_add_u32 v10, v10, v7
    v_lshl_add_u32 v10, v6, 3, v10
    s_mul_i32 s39, s35, 144
    s_mul_i32 s42, s38, {8*3456}
    s_add_u32 s39, s39, s42
    v_add_u32 v10, s39, v10
    """)
    k(f"""
    v_lshrrev_b32 v7, 2, v1
    v_mul_u32_u24 v11, {18*1024}, v7
    v_and_b32 v7, 3, v1
    v_lshl_add_u32 v11, v7, 6, v11
    s_mul_i32 s39, s35, {16*18*1024}
    s_lshr_b32 s42, s38, 2
    s_lshl_b32 s42, s42, 10
    s_add_u32 s39, s39, s42
    s_and_b32 s42, s38, 3
    s_lshl_b32 s42, s42, 8
    s_add_u32 s39, s39, s42
    s_add_u32 s39, s39, {WQ}
    v_add_u32 v11, s39, v11
    """)
    pack_chunk(k, 8, 3456, zero_hi_mask_sgpr=40)
    k("s_branch k0_done")
    k.label("k0_not_wq")
    k(f"s_sub_u32 s2, s2, {K0_WQ}")
    srd(k, 8, 18, 576 * 576 * 2)
    k(f"""
    s_lshl_b32 s34, s2, 2
    s_add_u32 s34, s34, s3
    s_mul_hi_u32 s38, s34, 0x55555556
    s_mul_i32 s35, s38, 3
    s_sub_u32 s35, s34, s35
    v_cmp_gt_u32 vcc, 48, v1
    s_and_saveexec_b64 s[36:37], vcc
    s_mul_i32 s39, s35, 48
    v_add_u32 v3, s39, v1
    v_lshlrev_b32 v10, 3, v3
    s_mul_i32 s42, s38, {8*1152}
    v_add_u32 v10, s42, v10
    v_lshrrev_b32 v7, 2, v3
    v_mul_u32_u24 v11, {18*1024}, v7
    v_and_b32 v7, 3, v3
    v_lshl_add_u32 v11, v7, 6, v11
    s_lshr_b32 s42, s38, 2
    s_lshl_b32 s39, s42, 10
    s_and_b32 s42, s38, 3
    s_lshl_b32 s42, s42, 8
    s_add_u32 s39, s39, s42
    s_add_u32 s39, s39, {WOP}
    v_add_u32 v11, s39, v11
    """)
    pack_chunk(k, 8, 1152)
    k.label("k0_done")
    k("s_endpgm")
    return k, 136, 9216 + 256


K1_QB = 92160
K1_TS = 488
K1_LDS = K1_QB + 80 * K1_TS


def gen_k1():
    k = K("qkv_attn_kernel")
    TS = K1_TS
    QB = K1_QB
    k(f"""
    s_cmp_ge_u32 s2, 256
    s_cbranch_scc1 k1_done
    s_load_dwordx2 s[6:7], s[0:1], 88
    v_and_b32 v1, 63, v0
    v_lshrrev_b32 v2, 6, v0
    v_lshlrev_b32 v3, 4, v1
    v_lshrrev_b32 v4, 4, v1
    v_readfirstlane_b32 s3, v2
    s_and_b32 s4, s2, 7
    s_lshr_b32 s5, s2, 3
    v_lshlrev_b32 v5, 5, v4
    s_waitcnt lgkmcnt(0)
    """)
    stamp(k, 0)
    srd(k, 12, 6, WS_BYTES)
    k("""
    s_mov_b32 s20, s3
    s_add_u32 s21, s3, 8
    s_add_u32 s22, s3, 16
    s_cmp_lt_u32 s3, 2
    s_cselect_b32 s22, s22, s21
    s_lshl_b32 s23, s5, 2
    s_sub_u32 s24, s23, 1
    s_max_i32 s24, s24, 0
    """)
    for i in range(5):
        if i == 0:
            k(f"s_mul_i32 s25, s24, {18*1024}")
            k(f"s_add_u32 s25, s25, {XN}")
        else:
            k(f"s_add_u32 s30, s23, {i-1}")
            k(f"s_mul_i32 s{25+i}, s30, {18*1024}")
            k(f"s_add_u32 s{25+i}, s{25+i}, {XN}")
    for j in range(3):
        k(f"s_lshl_b32 s31, s{20+j}, 7")
        k(f"s_add_u32 s32, s31, {MOD + 576*4}")
        k(f"s_add_u32 s33, s31, {MOD}")
        b = 16 + 16 * j
        k(f"buffer_load_dwordx4 v[{b}:{b+3}], v5, s[12:15], s32 offen")
        k(f"buffer_load_dwordx4 v[{b+4}:{b+7}], v5, s[12:15], s32 offen offset:16")
        k(f"buffer_load_dwordx4 v[{b+8}:{b+11}], v5, s[12:15], s33 offen")
        k(f"buffer_load_dwordx4 v[{b+12}:{b+15}], v5, s[12:15], s33 offen offset:16")
        k(f"s_lshl_b32 s31, s{20+j}, 10")
        for i in range(5):
            k(f"s_add_u32 s{34+i}, s{25+i}, s31")
        for i in range(5):
            x = 64 + 20 * j + 4 * i
            k(f"buffer_load_dwordx4 v[{x}:{x+3}], v3, s[12:15], s{34+i} offen")
    k(f"""
    s_lshl_b32 s40, s4, 4
    s_lshl_b32 s41, s3, 1
    s_add_u32 s42, s41, 1
    s_min_u32 s42, s42, 14
    s_add_u32 s41, s41, s40
    s_add_u32 s42, s42, s40
    s_mul_i32 s41, s41, {18*1024}
    s_mul_i32 s42, s42, {18*1024}
    s_add_u32 s41, s41, {WQ}
    s_add_u32 s42, s42, {WQ}
    """)

    def areg(kk, tt):
        if kk < 16:
            return 124 + 8 * kk + 4 * tt
        return 96 + 8 * (kk - 16) + 4 * tt

    def load_a(kk):
        if kk % 4 == 0 and kk > 0:
            k("s_add_u32 s41, s41, 4096")
            k("s_add_u32 s42, s42, 4096")
        for tt in range(2):
            a = areg(kk, tt)
            k(f"buffer_load_dwordx4 v[{a}:{a+3}], v3, s[12:15], s{41+tt} offen offset:{(kk%4)*1024}")

    for kk in range(16):
        load_a(kk)
    for j in range(3):
        k(f"s_lshl_b32 s31, s{20+j}, 10")
        k(f"v_add_u32 v6, s31, v3")
        k(f"v_add_u32 v7, 18432, v6")
        k(f"s_waitcnt vmcnt({32 + (2-j)*9})")
        b = 16 + 16 * j
        for i in range(5):
            x = 64 + 20 * j + 4 * i
            for q in range(4):
                k(f"""
                v_lshlrev_b32 v8, 16, v{x+q}
                v_and_b32 v9, 0xffff0000, v{x+q}
                v_pk_mul_f32 v[8:9], v[8:9], v[{b+2*q}:{b+2*q+1}]
                v_cvt_pk_bf16_f32 v10, v8, v9
                v_lshlrev_b32 v8, 16, v10
                v_and_b32 v9, 0xffff0000, v10
                v_pk_add_f32 v[8:9], v[8:9], v[{b+8+2*q}:{b+8+2*q+1}]
                v_cvt_pk_bf16_f32 v{x+q}, v8, v9
                """)
            if i < 4:
                k(f"ds_write_b128 v6, v[{x}:{x+3}] offset:{i*18432}")
            else:
                k(f"ds_write_b128 v7, v[{x}:{x+3}] offset:{3*18432}")
    k("s_waitcnt lgkmcnt(0)")
    stamp(k, 1)
    k("s_barrier")
    stamp(k, 2)
    load_a(16)
    load_a(17)
    k("v_add_u32 v6, 55296, v3")

    def breg(kk, i):
        return 56 + 20 * (kk & 1) + 4 * i

    def read_b(kk):
        for i in range(5):
            b = breg(kk, i)
            if i < 3:
                k(f"ds_read_b128 v[{b}:{b+3}], v3 offset:{i*18432 + kk*1024}")
            else:
                k(f"ds_read_b128 v[{b}:{b+3}], v6 offset:{(i-3)*18432 + kk*1024}")

    def acc(tt, i):
        return 16 + 20 * tt + 4 * i

    read_b(0)
    for kk in range(18):
        if kk < 17:
            read_b(kk + 1)
        if kk < 16:
            k(f"s_waitcnt vmcnt({(15-kk)*2 + 4})")
        else:
            k(f"s_waitcnt vmcnt({(17-kk)*2})")
        k(f"s_waitcnt lgkmcnt({5 if kk < 17 else 0})")
        for i in range(5):
            for tt in range(2):
                a = areg(kk, tt); b = breg(kk, i); c = acc(tt, i)
                cs = "0" if kk == 0 else f"v[{c}:{c+3}]"
                k(f"v_mfma_f32_16x16x32_bf16 v[{c}:{c+3}], v[{a}:{a+3}], v[{b}:{b+3}], {cs}")
    stamp(k, 3)
    k(f"""
    v_and_b32 v6, 15, v1
    v_mul_u32_u24 v6, {TS}, v6
    v_lshl_add_u32 v6, v4, 3, v6
    s_lshl_b32 s31, s3, 6
    s_add_u32 s31, s31, {QB}
    v_add_u32 v6, s31, v6
    """)
    for tt in range(2):
        if tt == 1:
            k("s_cmp_eq_u32 s3, 7")
            k("s_cbranch_scc1 k1_skip_t1")
        for i in range(5):
            c = acc(tt, i)
            k(f"v_cvt_pk_bf16_f32 v{60+2*i}, v{c}, v{c+1}")
            k(f"v_cvt_pk_bf16_f32 v{61+2*i}, v{c+2}, v{c+3}")
            k(f"ds_write_b64 v6, v[{60+2*i}:{61+2*i}] offset:{i*16*TS + tt*32}")
    k.label("k1_skip_t1")
    k("s_waitcnt lgkmcnt(0)")
    k("s_barrier")
    stamp(k, 4)
    k(f"""
    v_and_b32 v6, 1, v1
    v_bfe_u32 v7, v1, 1, 2
    v_lshrrev_b32 v8, 3, v1
    s_lshl_b32 s31, s3, 3
    v_add_u32 v8, s31, v8
    v_mul_u32_u24 v9, {TS}, v8
    v_mul_u32_u24 v10, 40, v7
    v_add_u32 v9, v9, v10
    v_add_u32 v9, {QB + 16*TS}, v9
    v_mul_u32_u24 v10, {8*TS}, v6
    v_sub_u32 v11, v9, v10
    v_add_u32 v12, {160 - 6*TS}, v11
    v_lshl_add_u32 v13, v6, 4, v11
    v_add_u32 v13, {320 - 6*TS}, v13
    v_add_u32 v14, v9, v10
    v_lshl_add_u32 v14, v6, 4, v14
    v_add_u32 v14, {320 - 14*TS}, v14
    """)
    for j in range(5):
        k(f"ds_read_b64 v[{16+2*j}:{17+2*j}], v9 offset:{8*j}")
    for u in range(4):
        for j in range(5):
            r = 32 + 10 * u + 2 * j
            k(f"ds_read_b64 v[{r}:{r+1}], v12 offset:{(3-u)*2*TS + 8*j}")
    for u in range(4):
        for j in range(3):
            r = 80 + 6 * u + 2 * j
            k(f"ds_read_b64 v[{r}:{r+1}], v13 offset:{(3-u)*2*TS + 8*j}")
    for u in range(4):
        for j in range(3):
            r = 104 + 6 * u + 2 * j
            k(f"ds_read_b64 v[{r}:{r+1}], v14 offset:{(3-u)*2*TS + 8*j}")
    k(f"""
    s_lshl_b32 s31, s5, 6
    v_add_u32 v15, s31, v8
    v_lshlrev_b32 v26, 3, v6
    v_sub_u32 v15, v15, v26
    v_mov_b32 v27, 0xce6e6b28
    s_waitcnt lgkmcnt(15)
    """)
    k("s_waitcnt lgkmcnt(0)")
    stamp(k, 5)
    for j in range(9):
        for u in range(4):
            src = "0" if j == 0 else f"v{28+u}"
            k(f"v_dot2_f32_bf16 v{28+u}, v{16+j}, v{32+10*u+j}, {src}")
    for u in range(4):
        bf16_round(k, 28 + u, 28 + u)
        k(f"v_mul_f32 v{28+u}, 0x3e715bef, v{28+u}")
        bf16_round(k, 28 + u, 28 + u)
        k(f"v_cmp_gt_i32 vcc, {2*u}, v15")
        k(f"v_cndmask_b32 v{28+u}, v{28+u}, v27, vcc")
    for u in range(4):
        k(f"v_mov_b32_dpp v{32+u}, v{28+u} quad_perm:[1,0,3,2] row_mask:0xf bank_mask:0xf")
    k("""
    v_max3_f32 v36, v28, v29, v30
    v_max3_f32 v36, v36, v31, v32
    v_max3_f32 v36, v36, v33, v34
    v_max_f32 v36, v36, v35
    """)
    for u in range(8):
        k(f"v_sub_f32 v{28+u}, v{28+u}, v36")
        k(f"v_mul_f32 v{28+u}, {LOG2E}, v{28+u}")
        k(f"v_exp_f32 v{28+u}, v{28+u}")
    k("""
    v_add_f32 v36, v28, v29
    v_add_f32 v37, v30, v31
    v_add_f32 v38, v32, v33
    v_add_f32 v39, v34, v35
    v_add_f32 v36, v36, v37
    v_add_f32 v38, v38, v39
    v_add_f32 v36, v36, v38
    v_rcp_f32 v36, v36
    """)
    for u in range(8):
        k(f"v_mul_f32 v{28+u}, v{28+u}, v36")
        k(f"v_cvt_pk_bf16_f32 v{40+u}, v{28+u}, 0")
        k(f"v_lshlrev_b32 v{48+u}, 16, v{40+u}")
    for u in range(8):
        vb = (80 + 6 * u) if u < 4 else (104 + 6 * (u - 4))
        for j in range(5):
            s0 = "0" if u == 0 else f"v{60+2*j}"
            s1 = "0" if u == 0 else f"v{61+2*j}"
            k(f"v_dot2_f32_bf16 v{60+2*j}, v{vb+j}, v{40+u}, {s0}")
            k(f"v_dot2_f32_bf16 v{61+2*j}, v{vb+j}, v{48+u}, {s1}")
    k(f"""
    v_mul_u32_u24 v9, 160, v8
    v_mul_u32_u24 v10, 36, v7
    v_add_u32 v9, v9, v10
    v_lshl_add_u32 v9, v6, 4, v9
    """)
    for j in range(5):
        k(f"v_cvt_pk_bf16_f32 v{70+j}, v{60+2*j}, v{61+2*j}")
        k(f"ds_write_b32 v9, v{70+j} offset:{4*j}")
    k("s_waitcnt lgkmcnt(0)")
    stamp(k, 6)
    k("s_barrier")
    stamp_flush(k, 7, 3, "k1")
    k(f"""
    v_mul_u32_u24 v6, 160, v1
    s_lshl_b32 s31, s3, 4
    v_add_u32 v6, s31, v6
    ds_read_b128 v[16:19], v6
    ds_read_b128 v[20:23], v6 offset:128
    v_mul_u32_u24 v7, {18*1024}, v4
    v_and_b32 v8, 15, v1
    v_lshl_add_u32 v7, v8, 4, v7
    s_mul_i32 s31, s5, {4*18*1024}
    s_mul_i32 s32, s4, 9
    s_add_u32 s32, s32, s3
    s_lshl_b32 s32, s32, 8
    s_add_u32 s31, s31, s32
    s_add_u32 s31, s31, {OO}
    s_waitcnt lgkmcnt(0)
    buffer_store_dwordx4 v[16:19], v7, s[12:15], s31 offen
    s_cmp_lg_u32 s3, 0
    s_cbranch_scc1 k1_done
    buffer_store_dwordx4 v[20:23], v7, s[12:15], s31 offen offset:2048
    """)
    k.label("k1_done")
    k("s_endpgm")
    return k, 256, K1_LDS


K2_GSWG = 72
K2_GRID = 256 + K2_GSWG
K2_LDS = 24 * 128 * 8


def gen_k2():
    k = K("wo_kernel")
    k(f"""
    s_cmp_ge_u32 s2, {K2_GRID}
    s_cbranch_scc1 k2_done
    s_load_dwordx2 s[4:5], s[0:1], 0
    s_load_dwordx4 s[16:19], s[0:1], 32
    s_load_dwordx2 s[6:7], s[0:1], 88
    v_and_b32 v1, 63, v0
    v_lshrrev_b32 v2, 6, v0
    v_lshlrev_b32 v3, 4, v1
    v_lshrrev_b32 v4, 4, v1
    v_readfirstlane_b32 s3, v2
    s_waitcnt lgkmcnt(0)
    """)
    srd(k, 12, 6, WS_BYTES)
    k(f"""
    s_cmp_ge_u32 s2, 256
    s_cbranch_scc1 k2_gs
    """)
    k(f"""
    s_and_b32 s20, s2, 7
    s_lshl_b32 s20, s20, 3
    s_bfe_u32 s21, s2, 0x30003
    s_add_u32 s20, s20, s21
    s_lshr_b32 s21, s2, 6
    s_and_b32 s22, s3, 1
    s_lshr_b32 s23, s3, 1
    s_lshl_b32 s24, s20, 1
    s_add_u32 s24, s24, s22
    s_mul_i32 s25, s21, 9
    s_mul_i32 s26, s23, 3
    s_add_u32 s25, s25, s26
    s_mul_i32 s27, s24, {18*1024}
    s_add_u32 s27, s27, {OO}
    s_mul_i32 s28, s25, {18*1024}
    s_add_u32 s28, s28, {WOP}
    s_add_u32 s29, s28, {18*1024}
    s_add_u32 s30, s29, {18*1024}
    """)
    NS = 12

    def slot(kk):
        return 40 + 16 * (kk % NS)

    def load(kk):
        off = kk * 1024
        r = slot(kk)
        vo = 5 + kk // 4
        k(f"buffer_load_dwordx4 v[{r}:{r+3}], v{vo}, s[12:15], s27 offen offset:{off % 4096}")
        for j in range(3):
            k(f"buffer_load_dwordx4 v[{r+4+4*j}:{r+7+4*j}], v{vo}, s[12:15], s{28+j} offen offset:{off % 4096}")

    for q in range(5):
        k(f"v_add_u32 v{5+q}, {4096*q}, v3")
    for kk in range(NS):
        load(kk)
    k(f"""
    v_and_b32 v10, 15, v1
    s_lshl_b32 s31, s24, 4
    v_add_u32 v10, s31, v10
    v_mul_u32_u24 v11, 1152, v10
    v_lshl_add_u32 v11, v4, 3, v11
    s_lshl_b32 s31, s25, 5
    v_add_u32 v11, s31, v11
    v_lshlrev_b32 v12, 4, v4
    s_lshl_b32 s31, s25, 6
    v_add_u32 v12, s31, v12
    """)
    accs = [232, 236, 240]
    for kk in range(18):
        nload_after = 4 * (min(kk + NS, 18) - (kk + 1))
        k(f"s_waitcnt vmcnt({nload_after})")
        r = slot(kk)
        for j in range(3):
            c = accs[j]
            cs = "0" if kk == 0 else f"v[{c}:{c+3}]"
            k(f"v_mfma_f32_16x16x32_bf16 v[{c}:{c+3}], v[{r+4+4*j}:{r+7+4*j}], v[{r}:{r+3}], {cs}")
        if kk + NS < 18:
            load(kk + NS)
    k(f"s_mov_b32 s34, {MOD + 2*576*4}")
    k(f"s_mov_b32 s35, {MOD + 4*576*4}")
    for j in range(3):
        k(f"global_load_dwordx2 v[{14+2*j}:{15+2*j}], v11, s[4:5] offset:{32*j}")
        k(f"buffer_load_dwordx4 v[{20+4*j}:{23+4*j}], v12, s[12:15], s34 offen offset:{64*j}")
    for j in range(3):
        k(f"buffer_load_dwordx4 v[{40+4*j}:{43+4*j}], v12, s[12:15], s35 offen offset:{64*j}")
    k(f"""
    s_mul_i32 s31, s24, {18*1024}
    s_add_u32 s31, s31, {YY}
    v_mov_b32 v60, 0
    v_mov_b32 v61, 0
    s_waitcnt vmcnt(0)
    """)
    for j in range(3):
        c = accs[j]
        xr = 14 + 2 * j
        ga = 20 + 4 * j
        g2 = 40 + 4 * j
        k(f"""
        v_cvt_pk_bf16_f32 v52, v{c}, v{c+1}
        v_cvt_pk_bf16_f32 v53, v{c+2}, v{c+3}
        v_lshlrev_b32 v54, 16, v52
        v_and_b32 v55, 0xffff0000, v52
        v_lshlrev_b32 v56, 16, v53
        v_and_b32 v57, 0xffff0000, v53
        v_pk_mul_f32 v[54:55], v[54:55], v[{ga}:{ga+1}]
        v_pk_mul_f32 v[56:57], v[56:57], v[{ga+2}:{ga+3}]
        v_cvt_pk_bf16_f32 v52, v54, v55
        v_cvt_pk_bf16_f32 v53, v56, v57
        v_lshlrev_b32 v54, 16, v52
        v_and_b32 v55, 0xffff0000, v52
        v_lshlrev_b32 v56, 16, v53
        v_and_b32 v57, 0xffff0000, v53
        v_lshlrev_b32 v62, 16, v{xr}
        v_and_b32 v63, 0xffff0000, v{xr}
        v_lshlrev_b32 v64, 16, v{xr+1}
        v_and_b32 v65, 0xffff0000, v{xr+1}
        v_pk_add_f32 v[54:55], v[54:55], v[62:63]
        v_pk_add_f32 v[56:57], v[56:57], v[64:65]
        v_cvt_pk_bf16_f32 v{66+2*j}, v54, v55
        v_cvt_pk_bf16_f32 v{67+2*j}, v56, v57
        v_lshlrev_b32 v54, 16, v{66+2*j}
        v_and_b32 v55, 0xffff0000, v{66+2*j}
        v_lshlrev_b32 v56, 16, v{67+2*j}
        v_and_b32 v57, 0xffff0000, v{67+2*j}
        v_add_f32 v60, v60, v54
        v_fmac_f32 v61, v54, v54
        v_add_f32 v60, v60, v55
        v_fmac_f32 v61, v55, v55
        v_add_f32 v60, v60, v56
        v_fmac_f32 v61, v56, v56
        v_add_f32 v60, v60, v57
        v_fmac_f32 v61, v57, v57
        v_pk_mul_f32 v[54:55], v[54:55], v[{g2}:{g2+1}]
        v_pk_mul_f32 v[56:57], v[56:57], v[{g2+2}:{g2+3}]
        v_cvt_pk_bf16_f32 v{72+2*j}, v54, v55
        v_cvt_pk_bf16_f32 v{73+2*j}, v56, v57
        s_add_u32 s32, s25, {j}
        s_lshr_b32 s33, s32, 1
        s_lshl_b32 s33, s33, 10
        s_and_b32 s32, s32, 1
        s_lshl_b32 s32, s32, 3
        s_add_u32 s33, s33, s32
        s_add_u32 s33, s33, s31
        buffer_store_dwordx2 v[{72+2*j}:{73+2*j}], v3, s[12:15], s33 offen
        """)
    k(f"v_add_u32 v11, {X1}, v11")
    for j in range(3):
        k(f"buffer_store_dwordx2 v[{66+2*j}:{67+2*j}], v11, s[12:15], 0 offen offset:{32*j}")
    k("""
    v_mov_b32 v62, v60
    v_mov_b32 v63, v61
    v_permlane16_swap_b32 v60, v62
    v_permlane16_swap_b32 v61, v63
    v_add_f32 v60, v60, v62
    v_add_f32 v61, v61, v63
    v_mov_b32 v62, v60
    v_mov_b32 v63, v61
    v_permlane32_swap_b32 v60, v62
    v_permlane32_swap_b32 v61, v63
    v_add_f32 v60, v60, v62
    v_add_f32 v61, v61, v63
    """)
    k(f"""
    s_mul_i32 s31, s21, 3
    s_add_u32 s31, s31, s23
    s_lshl_b32 s31, s31, 14
    s_add_u32 s31, s31, {STAT}
    v_lshlrev_b32 v10, 3, v10
    v_cmp_gt_u32 vcc, 16, v1
    s_and_saveexec_b64 s[36:37], vcc
    buffer_store_dwordx2 v[60:61], v10, s[12:15], s31 offen
    s_branch k2_done
    """)
    k.label("k2_gs")
    k(f"""
    s_sub_u32 s20, s2, 256
    s_cmp_ge_u32 s20, 36
    s_cselect_b32 s21, 1, 0
    s_cselect_b32 s8, s18, s16
    s_cselect_b32 s9, s19, s17
    s_mul_i32 s22, s21, 36
    s_sub_u32 s20, s20, s22
    v_and_b32 v5, 15, v0
    v_lshrrev_b32 v6, 4, v0
    v_mul_u32_u24 v7, {24*9216}, v6
    v_lshl_add_u32 v7, v5, 4, v7
    s_lshl_b32 s22, s20, 8
    v_add_u32 v7, s22, v7
    v_mul_u32_u24 v8, 96, v6
    """)
    k(f"s_mov_b32 s40, {MOD + 4*576*4}")
    k(f"s_mov_b32 s41, {MOD + 3*576*4}")
    for i in range(6):
        k(f"buffer_load_dwordx4 v[{16+4*i}:{19+4*i}], v8, s[12:15], s40 offen offset:{16*i}")
    for i in range(6):
        k(f"buffer_load_dwordx4 v[{40+4*i}:{43+4*i}], v8, s[12:15], s41 offen offset:{16*i}")
    for i in range(24):
        k(f"global_load_dwordx4 v[{64+4*i}:{67+4*i}], v7, s[8:9]")
        if i < 23:
            k("v_add_u32 v7, 9216, v7")
    for j in range(16):
        k(f"v_mov_b32 v{160+j}, 0")
    for i in range(24):
        k(f"s_waitcnt vmcnt({23-i})")
        for q in range(4):
            w = 64 + 4 * i + q
            k(f"""
            v_lshlrev_b32 v10, 16, v{w}
            v_and_b32 v11, 0xffff0000, v{w}
            v_fmac_f32 v{160+2*q}, v{16+i}, v10
            v_fmac_f32 v{161+2*q}, v{16+i}, v11
            v_fmac_f32 v{168+2*q}, v{40+i}, v10
            v_fmac_f32 v{169+2*q}, v{40+i}, v11
            """)
    k("""
    v_lshlrev_b32 v9, 10, v6
    v_lshl_add_u32 v9, v5, 5, v9
    ds_write_b128 v9, v[160:163]
    ds_write_b128 v9, v[164:167] offset:16
    ds_write_b128 v9, v[168:171] offset:512
    ds_write_b128 v9, v[172:175] offset:528
    s_waitcnt lgkmcnt(0)
    s_barrier
    v_cmp_gt_u32 vcc, 256, v0
    s_and_saveexec_b64 s[36:37], vcc
    s_cbranch_execz k2_done
    v_lshlrev_b32 v9, 2, v0
    """)
    for i in range(24):
        k(f"ds_read_b32 v{16+i}, v9 offset:{1024*i}")
    k("s_waitcnt lgkmcnt(0)")
    for st in (12, 6, 3):
        for i in range(st):
            k(f"v_add_f32 v{16+i}, v{16+i}, v{16+st+i}")
    k("v_add_f32 v16, v16, v17")
    k("v_add_f32 v16, v16, v18")
    k(f"""
    v_and_b32 v10, 127, v0
    s_lshl_b32 s22, s20, 7
    v_add_u32 v10, s22, v10
    v_mul_u32_u24 v11, 0x71c8, v10
    v_lshrrev_b32 v11, 22, v11
    v_mul_u32_u24 v12, 144, v11
    v_sub_u32 v12, v10, v12
    v_mul_u32_u24 v11, 2304, v11
    v_lshl_add_u32 v11, v12, 2, v11
    v_lshrrev_b32 v12, 7, v0
    v_mul_u32_u24 v12, 576, v12
    v_add_u32 v11, v11, v12
    s_mul_i32 s22, s21, 1152
    s_add_u32 s22, s22, {GS}
    buffer_store_dword v16, v11, s[12:15], s22 offen
    """)
    k.label("k2_done")
    k("s_endpgm")
    return k, 244, K2_LDS


K3_R = 5
K3_ST = 18432
K3_GSL = K3_R * K3_ST
K3_LDS = K3_GSL + 2304


def gen_k3():
    k = K("ffn1_kernel")
    R, ST = K3_R, K3_ST
    LA = 4
    NA = 6
    k(f"""
    s_cmp_ge_u32 s2, 256
    s_cbranch_scc1 k3_done
    s_load_dwordx4 s[16:19], s[0:1], 32
    s_load_dwordx2 s[6:7], s[0:1], 88
    v_and_b32 v1, 63, v0
    v_lshrrev_b32 v2, 6, v0
    v_lshlrev_b32 v3, 4, v1
    v_lshrrev_b32 v4, 4, v1
    v_readfirstlane_b32 s3, v2
    s_and_b32 s20, s2, 7
    s_lshl_b32 s20, s20, 2
    s_bfe_u32 s21, s2, 0x20003
    s_add_u32 s20, s20, s21
    s_lshr_b32 s21, s2, 5
    s_waitcnt lgkmcnt(0)
    """)
    srd(k, 12, 6, WS_BYTES)
    k(f"""
    s_cmp_ge_u32 s3, 4
    s_cselect_b32 s8, s18, s16
    s_cselect_b32 s9, s19, s17
    s_cselect_b32 s22, 9216, 0
    s_and_b32 s9, s9, 0xffff
    s_mov_b32 s10, {576*4608*2}
    s_mov_b32 s11, 0x00020000
    s_and_b32 s23, s3, 3
    s_mul_i32 s24, s23, 2304
    s_add_u32 s22, s22, s24
    s_lshl_b32 s24, s21, 4
    s_lshl_b32 s25, s3, 1
    s_add_u32 s24, s24, s25
    s_mul_i32 s25, s24, {18*1024}
    s_add_u32 s25, s25, {YY}
    s_add_u32 s26, s25, {18*1024}
    s_mov_b32 s50, -1
    s_mov_b32 s51, 0xffff
    s_mov_b32 s52, 0x3ffff
    s_mov_b32 s53, 0
    """)
    k(f"""
    v_and_b32 v5, 31, v1
    s_lshl_b32 s27, s24, 4
    v_add_u32 v5, s27, v5
    v_lshlrev_b32 v5, 3, v5
    v_lshrrev_b32 v6, 5, v1
    v_mul_u32_u24 v6, {6*16384}, v6
    v_add_u32 v5, v5, v6
    """)
    for i in range(6):
        k(f"s_mov_b32 s27, {STAT + i*16384}")
        k(f"buffer_load_dwordx2 v[{20+2*i}:{21+2*i}], v5, s[12:15], s27 offen")
    k(f"""
    s_mul_i32 s27, s20, 2304
    s_mul_i32 s28, s3, 288
    s_add_u32 s27, s27, s28
    s_add_u32 s27, s27, {GS}
    s_add_u32 s28, s28, {K3_GSL}
    s_mov_b32 m0, s28
    s_mov_b64 exec, s[52:53]
    buffer_load_dwordx4 v3, s[12:15], s27 offen lds
    s_mov_b64 exec, -1
    """)
    k(f"""
    s_mul_i32 s27, s23, {8*9216}
    s_mul_i32 s28, s20, 288
    s_add_u32 s27, s27, s28
    """)
    for i in range(3):
        k(f"""
        v_add_u32 v7, {48*i}, v1
        v_mul_u32_u24 v8, 0xe39, v7
        v_lshrrev_b32 v8, 16, v8
        v_mul_u32_u24 v9, 18, v8
        v_sub_u32 v9, v7, v9
        v_mul_u32_u24 v8, 9216, v8
        v_lshl_add_u32 v8, v9, 4, v8
        v_add_u32 v{10+i}, s27, v8
        """)
    k(f"""
    v_bfe_u32 v7, v1, 2, 2
    v_lshl_add_u32 v7, v4, 2, v7
    v_mul_u32_u24 v7, 288, v7
    v_and_b32 v8, 3, v1
    v_lshl_add_u32 v13, v8, 3, v7
    v_add_u32 v14, {3*ST}, v13
    s_mov_b32 s29, 0
    """)

    def ybuf(kk, tt):
        return 72 + 8 * (kk % 5) + 4 * tt

    def issue(st):
        yo = st * 1024
        if st % 4 == 0 and st > 0:
            k("s_add_u32 s25, s25, 4096")
            k("s_add_u32 s26, s26, 4096")
        for tt in range(2):
            y = ybuf(st, tt)
            k(f"buffer_load_dwordx4 v[{y}:{y+3}], v3, s[12:15], s{25+tt} offen offset:{yo % 4096}")
        k(f"s_add_u32 s30, s22, {(st % R) * ST}")
        k("s_mov_b64 exec, s[50:51]")
        for i in range(3):
            k(f"s_add_u32 m0, s30, {768*i}")
            k(f"buffer_load_dwordx4 v{10+i}, s[8:11], s29 offen lds")
        k("s_mov_b64 exec, -1")
        k(f"s_add_u32 s29, s29, {32*9216}")

    for st in range(4):
        issue(st)

    def acc(tt, m, ft):
        return 112 + ((tt * 2 + m) * 9 + ft) * 4

    frs = [(m, ft) for ft in range(9) for m in range(2)]

    def areg(q):
        return 48 + 4 * (q % NA)

    def read_frag(q):
        kk, j = divmod(q, 18)
        m, ft = frs[j]
        sl = kk % R
        base = 13 if sl < 3 else 14
        off = (sl % 3) * ST + m * 9216 + ft * 32
        a = areg(q)
        k(f"ds_read_b64_tr_b16 v[{a}:{a+1}], v{base} offset:{off}")
        k(f"ds_read_b64_tr_b16 v[{a+2}:{a+3}], v{base} offset:{off + 4608}")

    NQ = 18 * 18
    for kk in range(18):
        n_after = 5 * (min(kk + 3, 17) - (kk + 1)) if kk < 17 else 0
        k(f"s_waitcnt vmcnt({max(n_after, 0)})")
        k("s_barrier")
        if kk + 4 < 18:
            issue(kk + 4)
        if kk == 0:
            for q in range(LA):
                read_frag(q)
        for j in range(18):
            q = kk * 18 + j
            if q + LA < NQ:
                read_frag(q + LA)
                k(f"s_waitcnt lgkmcnt({2*LA})")
            else:
                k(f"s_waitcnt lgkmcnt({2*(NQ-1-q)})")
            m, ft = frs[j]
            a = areg(q)
            for tt in range(2):
                c = acc(tt, m, ft)
                y = ybuf(kk, tt)
                cs = "0" if kk == 0 else f"v[{c}:{c+3}]"
                k(f"v_mfma_f32_16x16x32_bf16 v[{c}:{c+3}], v[{a}:{a+3}], v[{y}:{y+3}], {cs}")
    k("""
    v_add_f32 v20, v20, v22
    v_add_f32 v21, v21, v23
    v_add_f32 v24, v24, v26
    v_add_f32 v25, v25, v27
    v_add_f32 v28, v28, v30
    v_add_f32 v29, v29, v31
    v_add_f32 v20, v20, v24
    v_add_f32 v21, v21, v25
    v_add_f32 v20, v20, v28
    v_add_f32 v21, v21, v29
    v_mov_b32 v22, v20
    v_mov_b32 v23, v21
    v_permlane32_swap_b32 v20, v22
    v_permlane32_swap_b32 v21, v23
    v_add_f32 v20, v20, v22
    v_add_f32 v21, v21, v23
    v_mul_f32 v20, 0x3ae38e39, v20
    v_mul_f32 v21, 0x3ae38e39, v21
    v_fma_f32 v21, -v20, v20, v21
    v_max_f32 v21, 0, v21
    """)
    bf16_round(k, 21, 21)
    k("v_add_f32 v21, 0x3727c5ac, v21")
    bf16_round(k, 21, 21)
    k("v_sqrt_f32 v21, v21")
    bf16_round(k, 21, 21)
    k("v_rcp_f32 v21, v21")
    bf16_round(k, 20, 20)
    k("""
    v_mul_f32 v20, v20, v21
    v_sub_f32 v20, 0, v20
    v_mov_b32 v24, v21
    v_mov_b32 v26, v21
    v_mov_b32 v28, v20
    v_mov_b32 v30, v20
    v_permlane16_swap_b32 v24, v26
    v_permlane16_swap_b32 v28, v30
    """)
    k(f"""
    v_lshlrev_b32 v5, 4, v4
    v_add_u32 v5, {K3_GSL}, v5
    s_mul_i32 s27, s24, {144*1024}
    s_add_u32 s27, s27, {HH}
    s_mul_i32 s28, s20, 9
    s_mov_b32 s40, 0xbfb8aa3b
    s_mov_b32 s41, 0xbfb8aa3b
    """)
    for ft in range(9):
        g = 48 + 16 * (ft & 1)
        for a in range(4):
            k(f"ds_read_b128 v[{g+4*a}:{g+4*a+3}], v5 offset:{a*576 + ft*64}")
        k(f"""
        s_add_u32 s31, s28, {ft}
        s_lshr_b32 s32, s31, 1
        s_lshl_b32 s32, s32, 10
        s_and_b32 s31, s31, 1
        s_lshl_b32 s31, s31, 3
        s_add_u32 s32, s32, s31
        s_add_u32 s32, s32, s27
        s_add_u32 s33, s32, {144*1024}
        s_waitcnt lgkmcnt(0)
        """)
        for tt in range(2):
            r = 24 + 2 * tt
            mr = 28 + 2 * tt
            ga = acc(tt, 0, ft)
            ua = acc(tt, 1, ft)
            for h in range(2):
                k(f"""
                v_pk_fma_f32 v[32:33], v[{g+2*h}:{g+2*h+1}], v[{mr}:{mr+1}], v[{g+4+2*h}:{g+4+2*h+1}] op_sel_hi:[1,0,1]
                v_pk_fma_f32 v[34:35], v[{g+8+2*h}:{g+8+2*h+1}], v[{mr}:{mr+1}], v[{g+12+2*h}:{g+12+2*h+1}] op_sel_hi:[1,0,1]
                v_pk_fma_f32 v[32:33], v[{ga+2*h}:{ga+2*h+1}], v[{r}:{r+1}], v[32:33] op_sel_hi:[1,0,1]
                v_pk_fma_f32 v[34:35], v[{ua+2*h}:{ua+2*h+1}], v[{r}:{r+1}], v[34:35] op_sel_hi:[1,0,1]
                v_pk_mul_f32 v[36:37], v[32:33], s[40:41]
                v_exp_f32 v36, v36
                v_exp_f32 v37, v37
                v_pk_add_f32 v[36:37], v[36:37], 1.0 op_sel_hi:[1,0]
                v_rcp_f32 v36, v36
                v_rcp_f32 v37, v37
                v_pk_mul_f32 v[32:33], v[32:33], v[34:35]
                v_pk_mul_f32 v[32:33], v[32:33], v[36:37]
                v_cvt_pk_bf16_f32 v{38+2*tt+h}, v32, v33
                """)
            k(f"buffer_store_dwordx2 v[{38+2*tt}:{39+2*tt}], v3, s[12:15], s{32+tt} offen")
    k.label("k3_done")
    k("s_endpgm")
    return k, 256, K3_LDS


K4_SL = 5120
K4_NS = 3
K4_LDS = 140 * 1024


def gen_k4():
    k = K("ffn2_kernel")
    SL, NS = K4_SL, K4_NS
    k(f"""
    s_cmp_ge_u32 s2, 256
    s_cbranch_scc1 k4_done
    s_load_dwordx2 s[16:17], s[0:1], 48
    s_load_dwordx2 s[18:19], s[0:1], 72
    s_load_dwordx2 s[6:7], s[0:1], 88
    v_and_b32 v1, 63, v0
    v_lshrrev_b32 v2, 6, v0
    v_lshlrev_b32 v3, 4, v1
    v_lshrrev_b32 v4, 4, v1
    v_readfirstlane_b32 s3, v2
    s_and_b32 s20, s2, 7
    s_lshl_b32 s20, s20, 2
    s_bfe_u32 s21, s2, 0x20003
    s_add_u32 s20, s20, s21
    s_lshr_b32 s21, s2, 5
    s_waitcnt lgkmcnt(0)
    """)
    srd(k, 12, 6, WS_BYTES)
    srd(k, 8, 16, 4608 * 576 * 2)
    srd(k, 44, 18, 2048 * 576 * 2)
    k(f"""
    s_lshl_b32 s22, s20, 2
    s_mul_i32 s22, s22, {144*1024}
    s_lshl_b32 s23, s3, 10
    s_add_u32 s22, s22, s23
    s_add_u32 s24, s22, {HH}
    s_add_u32 s25, s24, {144*1024}
    s_add_u32 s26, s25, {144*1024}
    s_add_u32 s27, s26, {144*1024}
    s_mul_i32 s28, s3, {32*1152}
    s_mul_i32 s29, s21, 144
    s_add_u32 s28, s28, s29
    s_mul_i32 s30, s3, {NS*SL}
    """)
    for i in range(5):
        k(f"""
        v_add_u32 v7, {64*i}, v1
        v_mul_u32_u24 v8, 0x199a, v7
        v_lshrrev_b32 v8, 16, v8
        v_mul_u32_u24 v9, 10, v8
        v_sub_u32 v9, v7, v9
        v_mul_u32_u24 v8, 1152, v8
        v_lshl_add_u32 v{10+i}, v9, 4, v8
        """)
    k(f"""
    v_bfe_u32 v7, v1, 2, 2
    v_lshl_add_u32 v7, v4, 2, v7
    v_mul_u32_u24 v7, 160, v7
    v_and_b32 v8, 3, v1
    v_lshl_add_u32 v7, v8, 3, v7
    v_add_u32 v15, s30, v7
    """)

    def hbuf(it, tt):
        return 32 + 16 * (it % NS) + 4 * tt

    def issue(it):
        for i in range(5):
            k(f"s_add_u32 m0, s30, {(it % NS) * SL + 1024 * i}")
            k(f"buffer_load_dwordx4 v{10+i}, s[8:11], s28 offen lds")
        for tt in range(4):
            h = hbuf(it, tt)
            k(f"buffer_load_dwordx4 v[{h}:{h+3}], v3, s[12:15], s{24+tt} offen")
        k(f"s_add_u32 s28, s28, {8*32*1152}")
        for tt in range(4):
            k(f"s_add_u32 s{24+tt}, s{24+tt}, 8192")

    def acc(tt, nt):
        return 128 + (tt * 5 + nt) * 4

    NIT = 18
    for it in range(NS - 1):
        issue(it)
    for it in range(NIT):
        if it + NS - 1 < NIT:
            issue(it + NS - 1)
        n_after = 9 * (min(it + NS - 1, NIT - 1) - it)
        k(f"s_waitcnt vmcnt({n_after})")
        for nt in range(5):
            a = 84 + 4 * nt
            off = (it % NS) * SL + nt * 32
            k(f"ds_read_b64_tr_b16 v[{a}:{a+1}], v15 offset:{off}")
            k(f"ds_read_b64_tr_b16 v[{a+2}:{a+3}], v15 offset:{off + 16*160}")
        for nt in range(5):
            a = 84 + 4 * nt
            k(f"s_waitcnt lgkmcnt({2*(4-nt)})")
            for tt in range(4):
                c = acc(tt, nt)
                h = hbuf(it, tt)
                cs = "0" if it == 0 else f"v[{c}:{c+3}]"
                k(f"v_mfma_f32_16x16x32_bf16 v[{c}:{c+3}], v[{a}:{a+3}], v[{h}:{h+3}], {cs}")
    k("s_barrier")
    for tt in range(4):
        for nt in range(5):
            u = tt * 5 + nt
            owner = tt * 2 + (1 if nt >= 3 else 0)
            c = acc(tt, nt)
            k(f"""
            s_sub_u32 s31, s3, {owner + 1}
            s_and_b32 s31, s31, 7
            s_cmp_eq_u32 s31, 7
            s_cbranch_scc1 k4_skip_{u}
            s_lshl_b32 s31, s31, 10
            s_add_u32 s31, s31, {u * 7 * 1024}
            v_add_u32 v5, s31, v3
            ds_write_b128 v5, v[{c}:{c+3}]
            """)
            k.label(f"k4_skip_{u}")
    k("s_waitcnt lgkmcnt(0)")
    k("s_barrier")
    for w in range(8):
        tt = w >> 1
        nts = [0, 1, 2] if w % 2 == 0 else [3, 4, 4]
        k(f"s_cmp_lg_u32 s3, {w}")
        k(f"s_cbranch_scc1 k4_mv_{w}")
        for j, nt in enumerate(nts):
            c = acc(tt, nt)
            for r in range(4):
                k(f"v_mov_b32 v{16+4*j+r}, v{c+r}")
        k.label(f"k4_mv_{w}")
    k(f"""
    s_lshr_b32 s31, s3, 1
    s_and_b32 s32, s3, 1
    s_mul_i32 s33, s31, 5
    s_mul_i32 s34, s32, 3
    s_add_u32 s33, s33, s34
    s_mul_i32 s33, s33, {7*1024}
    v_add_u32 v5, s33, v3
    s_mov_b32 s35, {14*1024}
    s_cmp_eq_u32 s32, 1
    s_cselect_b32 s35, {7*1024}, s35
    v_add_u32 v6, s35, v5
    """)
    for j in range(3):
        for sl in range(7):
            r = 32 + (j * 7 + sl) * 4
            if j < 2:
                k(f"ds_read_b128 v[{r}:{r+3}], v5 offset:{j*7*1024 + sl*1024}")
            else:
                k(f"ds_read_b128 v[{r}:{r+3}], v6 offset:{sl*1024}")
    k(f"""
    v_and_b32 v7, 15, v1
    s_lshl_b32 s36, s20, 6
    s_lshl_b32 s37, s31, 4
    s_add_u32 s36, s36, s37
    v_add_u32 v7, s36, v7
    v_mul_u32_u24 v7, 1152, v7
    v_lshl_add_u32 v7, v4, 3, v7
    s_mul_i32 s36, s21, 144
    s_mul_i32 s37, s32, 96
    s_add_u32 s36, s36, s37
    v_add_u32 v7, s36, v7
    s_lshl_b32 s36, s36, 1
    v_lshlrev_b32 v8, 4, v4
    v_add_u32 v8, s36, v8
    s_mov_b32 s38, {X1}
    s_mov_b32 s39, {MOD + 5*576*4}
    """)
    for j in range(3):
        k(f"buffer_load_dwordx2 v[{120+2*j}:{121+2*j}], v7, s[12:15], s38 offen offset:{32*j}")
        k(f"buffer_load_dwordx4 v[{128+4*j}:{131+4*j}], v8, s[12:15], s39 offen offset:{64*j}")
    k("s_waitcnt lgkmcnt(0)")
    for j in range(3):
        for sl in range(7):
            r = 32 + (j * 7 + sl) * 4
            k(f"v_pk_add_f32 v[{16+4*j}:{17+4*j}], v[{16+4*j}:{17+4*j}], v[{r}:{r+1}]")
            k(f"v_pk_add_f32 v[{18+4*j}:{19+4*j}], v[{18+4*j}:{19+4*j}], v[{r+2}:{r+3}]")
    k("s_waitcnt vmcnt(0)")
    for j in range(3):
        c = 16 + 4 * j
        gb = 128 + 4 * j
        xr = 120 + 2 * j
        k(f"""
        v_cvt_pk_bf16_f32 v52, v{c}, v{c+1}
        v_cvt_pk_bf16_f32 v53, v{c+2}, v{c+3}
        v_lshlrev_b32 v54, 16, v52
        v_and_b32 v55, 0xffff0000, v52
        v_lshlrev_b32 v56, 16, v53
        v_and_b32 v57, 0xffff0000, v53
        v_pk_mul_f32 v[54:55], v[54:55], v[{gb}:{gb+1}]
        v_pk_mul_f32 v[56:57], v[56:57], v[{gb+2}:{gb+3}]
        v_cvt_pk_bf16_f32 v52, v54, v55
        v_cvt_pk_bf16_f32 v53, v56, v57
        v_lshlrev_b32 v54, 16, v52
        v_and_b32 v55, 0xffff0000, v52
        v_lshlrev_b32 v56, 16, v53
        v_and_b32 v57, 0xffff0000, v53
        v_lshlrev_b32 v62, 16, v{xr}
        v_and_b32 v63, 0xffff0000, v{xr}
        v_lshlrev_b32 v64, 16, v{xr+1}
        v_and_b32 v65, 0xffff0000, v{xr+1}
        v_pk_add_f32 v[54:55], v[54:55], v[62:63]
        v_pk_add_f32 v[56:57], v[56:57], v[64:65]
        v_cvt_pk_bf16_f32 v{66+2*j}, v54, v55
        v_cvt_pk_bf16_f32 v{67+2*j}, v56, v57
        """)
    k("buffer_store_dwordx2 v[66:67], v7, s[44:47], 0 offen")
    k("""
    s_cmp_eq_u32 s32, 1
    s_cbranch_scc1 k4_odd
    buffer_store_dwordx2 v[68:69], v7, s[44:47], 0 offen offset:32
    buffer_store_dwordx2 v[70:71], v7, s[44:47], 0 offen offset:64
    s_branch k4_done
    """)
    k.label("k4_odd")
    k("""
    s_mov_b32 exec_hi, 0
    buffer_store_dwordx2 v[68:69], v7, s[44:47], 0 offen offset:32
    """)
    k.label("k4_done")
    k("s_endpgm")
    return k, 208, K4_LDS


KERNELS = []


def build(kernels, path):
    head = ["; adaLN + sliding dilated local attention + SwiGLU block, multi-kernel pipeline (generated)"]
    texts, descs = [], []
    for (gen, grid, block) in kernels:
        k, vgpr, lds = gen()
        head.append(f"; @launch kernel={k.name} grid=({grid},1,1) block=({block},1,1) lds={lds}")
        t, d = kernel_text(k, vgpr)
        texts.append(t)
        descs.append(d)
    out = "\n".join(head) + "\n.amdgcn_target \"amdgcn-amd-amdhsa--gfx950\"\n.text\n" + "\n".join(texts) + \
        "\n.section .rodata,\"a\"\n" + "".join(descs)
    open(path, "w").write(out)


if __name__ == "__main__":
    if len(sys.argv) > 2 and sys.argv[2] == "diag":
        DIAG = True
    build([(gen_k0, K0_GRID, 256), (gen_k1, 256, 512), (gen_k2, K2_GRID, 384), (gen_k3, 256, 512), (gen_k4, 256, 512)], sys.argv[1] if len(sys.argv) > 1 else "k.s")
```

```python
import re

TRANS = ("v_exp_f32", "v_log_f32", "v_rcp_f32", "v_rsq_f32", "v_sqrt_f32", "v_sin_f32", "v_cos_f32",
         "v_rcp_iflag_f32")


def _regs(tok):
    tok = tok.strip()
    tok = tok.lstrip("-")
    m = re.fullmatch(r"abs\((.*)\)", tok)
    if m:
        tok = m.group(1)
    tok = tok.strip("|")
    m = re.fullmatch(r"([vs])(\d+)", tok)
    if m:
        return m.group(1), {int(m.group(2))}
    m = re.fullmatch(r"([vs])\[(\d+):(\d+)\]", tok)
    if m:
        return m.group(1), set(range(int(m.group(2)), int(m.group(3)) + 1))
    if tok in ("vcc", "vcc_lo", "vcc_hi"):
        return "s", {"vcc"}
    if tok in ("exec", "exec_lo", "exec_hi"):
        return "s", {"exec"}
    if tok == "m0":
        return "s", {"m0"}
    return None, set()


class Ins:
    def __init__(self, text):
        self.text = text
        t = text.split(";")[0].strip()
        self.is_label = t.endswith(":")
        self.is_dir = t.startswith(".")
        self.vw, self.vr, self.sw, self.sr = set(), set(), set(), set()
        self.kind = "other"
        self.states = 1
        self.mn = ""
        self.srcc = set()
        self.srcab = set()
        if self.is_label or self.is_dir or not t:
            self.states = 0
            self.kind = "none"
            return
        parts = t.split(None, 1)
        mn = parts[0]
        self.mn = mn
        rest = parts[1] if len(parts) > 1 else ""
        ops = [o.strip() for o in rest.split(",")] if rest else []
        clean = []
        mods = []
        for o in ops:
            sp = o.split()
            if sp:
                clean.append(sp[0])
                mods += sp[1:]
        self.mods = mods
        for m_ in mods:
            if m_.startswith("offset:"):
                ov = int(m_.split(":")[1], 0)
                if mn.startswith("buffer_"):
                    assert 0 <= ov <= 4095, text
                elif mn.startswith("global_"):
                    assert -4096 <= ov <= 4095, text
                elif mn.startswith("ds_"):
                    assert 0 <= ov <= 65535, text
        R = [_regs(o) for o in clean]

        def rd(r):
            if r[0] == "v":
                self.vr |= r[1]
            elif r[0] == "s":
                self.sr |= r[1]

        def wr(r):
            if r[0] == "v":
                self.vw |= r[1]
            elif r[0] == "s":
                self.sw |= r[1]

        if mn == "s_nop":
            self.kind = "nop"
            self.states = int(clean[0], 0) + 1
        elif mn.startswith("v_mfma"):
            self.kind = "mfma"
            wr(R[0])
            for r in R[1:]:
                rd(r)
            if R[3][0] == "v":
                self.srcc = set(R[3][1])
            self.srcab = set(R[1][1]) | set(R[2][1])
            self.passes = 8 if "32x32x16" in mn else 4
        elif mn.startswith("v_permlane") and "swap" in mn:
            self.kind = "valu"
            self.sub = "permlane"
            for r in R:
                rd(r); wr(r)
        elif mn.startswith("v_cmpx"):
            raise ValueError("v_cmpx not supported by hazard model")
        elif mn.startswith("v_cmp"):
            self.kind = "valu"
            wr(R[0])
            for r in R[1:]:
                rd(r)
        elif mn.startswith("v_readfirstlane") or mn.startswith("v_readlane"):
            self.kind = "valu"
            self.sub = "readlane"
            wr(R[0])
            for r in R[1:]:
                rd(r)
        elif mn.startswith("v_"):
            self.kind = "valu"
            wr(R[0])
            start = 1
            if "_co_" in mn:
                wr(R[1]); start = 2
            for r in R[start:]:
                rd(r)
            if mn.startswith("v_fmac") or mn.startswith("v_pk_fmac") or mn.startswith("v_dot2c") or "fmaak" in mn:
                rd(R[0])
            if mn.startswith("v_cndmask") and len(R) == 3:
                self.sr.add("vcc")
            base = mn.replace("_e32", "").replace("_e64", "")
            if base in TRANS:
                self.sub = "trans"
            if mn.startswith("v_dot2"):
                self.sub = "dot"
                self.srcab = set(R[1][1]) | set(R[2][1])
            if any(m.startswith(("quad_perm", "row_", "wave_")) for m in mods):
                self.sub = "dpp"
        elif mn.startswith("ds_"):
            self.kind = "lds"
            if mn.startswith("ds_read") or mn.startswith("ds_bpermute") or mn.startswith("ds_swizzle") or mn.startswith("ds_permute"):
                wr(R[0])
                for r in R[1:]:
                    rd(r)
            else:
                for r in R:
                    rd(r)
        elif mn.startswith(("global_", "buffer_", "flat_")):
            self.kind = "vmem"
            lds = "lds" in mods or "_lds_" in mn
            self.ldsdma = lds
            if ("load" in mn and not lds) or ("atomic" in mn and "sc0" in mods):
                wr(R[0])
                for r in R[1:]:
                    rd(r)
                if "atomic" in mn:
                    rd(R[0])
            else:
                for r in R:
                    rd(r)
            if lds:
                self.sr.add("m0")
            self.wide_store = ("store" in mn) and ("x4" in mn or "x3" in mn)
            if self.wide_store:
                idx = 0 if mn.startswith("buffer_") else 1
                self.store_data = set(R[idx][1])
        elif mn.startswith("s_load") or mn.startswith("s_buffer_load") or mn.startswith("s_memtime"):
            self.kind = "smem"
            wr(R[0])
            for r in R[1:]:
                rd(r)
        elif mn.startswith("s_"):
            self.kind = "salu"
            if mn.startswith(("s_cmp", "s_cbranch", "s_branch", "s_waitcnt", "s_barrier", "s_endpgm", "s_setprio", "s_sleep")):
                for r in R:
                    rd(r)
            else:
                if R:
                    wr(R[0])
                for r in R[1:]:
                    rd(r)
                if "saveexec" in mn:
                    self.sw.add("exec")

    def __getattr__(self, k):
        if k in ("sub", "ldsdma", "wide_store", "store_data", "passes", "mods"):
            return None
        raise AttributeError(k)


def required(prev, cur):
    need = 0
    if prev.kind == "valu" and prev.sub == "dot":
        if cur.kind == "valu" and cur.sub == "dot" and cur.mn == prev.mn:
            if prev.vw & cur.srcab:
                need = max(need, 3)
        elif cur.kind in ("valu", "mfma", "vmem", "lds") and (prev.vw & (cur.vr | cur.vw)):
            need = max(need, 3)
    if prev.kind == "valu":
        if cur.kind == "mfma" and (prev.vw & cur.vr):
            need = max(need, 2)
        if cur.kind == "valu":
            if cur.sub == "readlane" and (prev.vw & cur.vr):
                need = max(need, 1)
            if cur.sub in ("permlane", "dpp") and (prev.vw & cur.vr):
                need = max(need, 2)
            if prev.sub == "trans" and cur.sub != "trans" and (prev.vw & cur.vr):
                need = max(need, 1)
            if prev.sw & cur.sr:
                need = max(need, 4 if cur.sub == "readlane" else 2)
        if cur.kind == "vmem" and (prev.sw & cur.sr):
            need = max(need, 5)
        if cur.kind in ("salu", "smem") and (prev.sw & cur.sr):
            need = max(need, 4)
    if prev.kind == "salu":
        if "m0" in prev.sw and cur.kind == "vmem" and cur.ldsdma:
            need = max(need, 1)
    if prev.kind == "mfma":
        p = prev.passes
        if cur.kind == "mfma":
            if prev.vw & cur.srcab:
                need = max(need, 8 if p == 4 else 12)
            if prev.vw & cur.srcc:
                if prev.vw == cur.srcc and prev.passes == cur.passes:
                    pass
                else:
                    need = max(need, 6 if p == 4 else 10)
            if (prev.vw & cur.vw) and not (prev.vw == cur.srcc and prev.passes == cur.passes):
                need = max(need, 8 if p == 4 else 12)
        elif cur.kind in ("valu", "vmem", "lds"):
            if prev.vw & (cur.vr | cur.vw):
                need = max(need, 8 if p == 4 else 12)
            if cur.kind == "valu" and (prev.srcc & cur.vw):
                need = max(need, 3 if p == 4 else 7)
    if prev.kind == "vmem" and prev.wide_store:
        if cur.kind == "valu" and (prev.store_data & cur.vw):
            need = max(need, 2)
        elif cur.kind in ("lds", "vmem", "mfma") and (prev.store_data & cur.vw):
            need = max(need, 1)
    return need


UNPACK = True


def unpack_pk(ln):
    mn, rest = ln.split(None, 1)
    mods = {}
    for m in re.findall(r"(op_sel_hi|neg_lo|neg_hi):\[([0-9,]+)\]", rest):
        mods[m[0]] = [int(x) for x in m[1].split(",")]
    rest = re.sub(r"\s+(op_sel_hi|neg_lo|neg_hi):\[[0-9,]+\]", "", rest)
    ops = [o.strip() for o in rest.split(",")]
    nsrc = len(ops) - 1
    osh = mods.get("op_sel_hi", [1] * nsrc)
    neg = [mods.get("neg_lo", [0] * nsrc), mods.get("neg_hi", [0] * nsrc)]

    def part(o, hi):
        m = re.fullmatch(r"([vs])\[(\d+):(\d+)\]", o)
        if m:
            return f"{m.group(1)}{int(m.group(2)) + hi}"
        return o

    out = []
    for h in range(2):
        d = part(ops[0], h)
        srcs = []
        for i, o in enumerate(ops[1:]):
            p = part(o, h if osh[i] else 0)
            if neg[h][i]:
                p = "-" + p
            srcs.append(p)
        op = {"v_pk_add_f32": "v_add_f32", "v_pk_mul_f32": "v_mul_f32", "v_pk_fma_f32": "v_fma_f32"}[mn]
        if op != "v_fma_f32":
            if srcs[1].startswith("-v") and op == "v_add_f32" and srcs[0].startswith("v"):
                out.append(f"v_sub_f32 {d}, {srcs[0]}, {srcs[1][1:]}")
                continue
            if not srcs[1].startswith("v"):
                srcs = [srcs[1], srcs[0]]
        out.append(f"{op} {d}, " + ", ".join(srcs))
    d0 = part(ops[0], 0)
    assert not re.search(rf"\b{d0}\b", out[1].split(None, 2)[2]), ln
    return out


class K:
    def __init__(self, name):
        self.name = name
        self.lines = []

    def __call__(self, s):
        for ln in s.strip("\n").split("\n"):
            ln = ln.strip()
            if ln:
                if UNPACK and ln.startswith("v_pk_"):
                    self.lines += unpack_pk(ln)
                else:
                    self.lines.append(ln)

    def label(self, l):
        self.lines.append(l + ":")

    def finish(self):
        out = []
        hist = []
        for ln in self.lines:
            ins = Ins(ln)
            if ins.kind == "none":
                out.append(ln)
                continue
            dist = 0
            pad = 0
            for p in reversed(hist):
                if dist > 24:
                    break
                r = required(p, ins)
                if r > dist:
                    pad = max(pad, r - dist)
                dist += p.states
            while pad > 0:
                n = min(pad, 16)
                nop = Ins("s_nop %d" % (n - 1))
                out.append("    " + nop.text)
                hist.append(nop)
                pad -= n
            out.append("    " + ln)
            hist.append(ins)
            if len(hist) > 64:
                hist = hist[-40:]
        return out


def kernel_text(k, vgpr, sgpr=100):
    body = "\n".join(k.finish())
    txt = f""".globl {k.name}
.p2align 8
.type {k.name},@function
{k.name}:
{body}
{k.name}_end:
"""
    acc = (vgpr + 3) // 4 * 4
    desc = f""".p2align 6
.amdhsa_kernel {k.name}
  .amdhsa_next_free_vgpr {vgpr}
  .amdhsa_next_free_sgpr {sgpr}
  .amdhsa_accum_offset {acc}
  .amdhsa_group_segment_fixed_size 0
  .amdhsa_kernarg_size 96
  .amdhsa_user_sgpr_count 2
  .amdhsa_user_sgpr_kernarg_segment_ptr 1
  .amdhsa_system_sgpr_workgroup_id_x 1
.end_amdhsa_kernel
"""
    return txt, desc
```

```python
import sys
from asmlib import K, kernel_text

NAME = "adaLN_cond__sliding_local_dilated__glu_gated_swiglu__prompt"

MOD = 0x0000000
GSB = 0x0010000
STAT = 0x0040000
XN = 0x0100000
WQ = 0x0400000
WOP = 0x0700000
OO = 0x0800000
X1 = 0x0B00000
YY = 0x0E00000
HH = 0x1100000
W2P = 0x2400000
WS_BYTES = 268435456

LOG2E = "0x3fb8aa3b"
PART = 0x2400000


def tile_of(ks, half):
    p, i = divmod(ks, 9)
    if i < 8:
        return (2 * p + (i >> 2)) * 9 + 2 * (i & 3) + half
    return (2 * p + half) * 9 + 8


def srd(k, d, lo, nbytes):
    k(f"""
    s_mov_b32 s{d}, s{lo}
    s_and_b32 s{d+1}, s{lo+1}, 0xffff
    s_mov_b32 s{d+2}, {nbytes}
    s_mov_b32 s{d+3}, 0x00020000
    """)


DIAG = False
ABL = set()


def stamp(k, idx):
    if DIAG:
        k("s_memtime s[68:69]")
        k("s_waitcnt lgkmcnt(0)")
        k(f"s_mov_b32 s{70+idx}, s68")


def stamp_flush(k, n, wave_sgpr, tag, vb=200):
    if not DIAG:
        return
    k(f"""
    s_cmp_lg_u32 s2, 5
    s_cbranch_scc1 {tag}_nostamp
    s_load_dwordx2 s[66:67], s[0:1], 80
    s_lshl_b32 s68, s{wave_sgpr}, 5
    v_mov_b32 v{vb}, s68
    s_waitcnt lgkmcnt(0)
    """)
    for i in range(n):
        k(f"s_sub_u32 s69, s{70+i}, s70")
        k(f"v_mov_b32 v{vb+1}, s69")
        k(f"global_store_dword v{vb}, v{vb+1}, s[66:67] offset:{4*i}")
    k(f"{tag}_nostamp:")


TL = 0x3000000


def tl_start(k):
    if DIAG:
        k("s_memrealtime s[94:95]")
        k("s_mov_b32 s96, s2")


def tl_end(k, kid):
    if DIAG:
        k(f"""
        s_mov_b64 exec, 1
        s_waitcnt vmcnt(0) lgkmcnt(0)
        s_memrealtime s[98:99]
        s_load_dwordx2 s[66:67], s[0:1], 88
        s_lshl_b32 s97, s96, 3
        s_add_u32 s97, s97, {TL + kid*8192}
        v_mov_b32 v2, s97
        s_waitcnt lgkmcnt(0)
        v_mov_b32 v0, s94
        v_mov_b32 v1, s98
        global_atomic_umax v2, v1, s[66:67] offset:4
        global_store_dword v2, v0, s[66:67]
        """)


def code_pf(k, tag, target, wg_sgpr, vt, wave_sgpr=None, wave=0):
    if wave_sgpr is not None:
        k(f"s_cmp_lg_u32 s{wave_sgpr}, {wave}")
        k(f"s_cbranch_scc1 {tag}_nocpf")
    k("s_getpc_b64 s[86:87]")
    k.label(f"{tag}_cpc")
    k(f"""
    s_add_u32 s86, s86, {target}-{tag}_cpc
    s_addc_u32 s87, s87, 0
    s_lshr_b32 s88, s{wg_sgpr}, 3
    s_lshl_b32 s88, s88, 13
    v_and_b32 v{vt}, 63, v0
    v_lshlrev_b32 v{vt}, 7, v{vt}
    v_add_u32 v{vt}, s88, v{vt}
    v_min_u32 v{vt}, {target}_end-{target}-4, v{vt}
    global_load_dword v{vt}, v{vt}, s[86:87]
    """)
    if wave_sgpr is not None:
        k.label(f"{tag}_nocpf")


def bf16_round(k, dst, src, tmp=None):
    k(f"v_cvt_pk_bf16_f32 v{dst}, v{src}, v{src}")
    k(f"v_lshlrev_b32 v{dst}, 16, v{dst}")


K0_MOD, K0_XN, K0_WQ, K0_WO = 108, 64, 144, 54
K0_GRID = K0_MOD + K0_XN + K0_WQ + K0_WO


def pack_chunk(k, srd_src, rowstride, zero_hi_mask_sgpr=None):
    for r in range(8):
        k(f"s_mov_b32 s{24+r}, {r*rowstride}")
    for r in range(8):
        k(f"buffer_load_dwordx2 v[{16+2*r}:{17+2*r}], v10, s[{srd_src}:{srd_src+3}], s{24+r} offen")
    k("s_mov_b32 s32, 0x05040100")
    k("s_mov_b32 s33, 0x07060302")
    k("s_waitcnt vmcnt(0)")
    if zero_hi_mask_sgpr is not None:
        for r in range(8):
            k(f"v_cndmask_b32 v{17+2*r}, v{17+2*r}, 0, s[{zero_hi_mask_sgpr}:{zero_hi_mask_sgpr+1}]")
    for j in range(4):
        d = j >> 1
        sel = 32 + (j & 1)
        for q in range(4):
            lo = 16 + 2 * (2 * q) + d
            hi = 16 + 2 * (2 * q + 1) + d
            k(f"v_perm_b32 v{32+4*j+q}, v{hi}, v{lo}, s{sel}")
    for j in range(4):
        k(f"buffer_store_dwordx4 v[{32+4*j}:{35+4*j}], v11, s[12:15], 0 offen offset:{16*j}")


def gen_k0():
    k = K("prep_kernel")
    tl_start(k)
    k(f"""
    s_cmp_ge_u32 s2, {K0_GRID}
    s_cbranch_scc1 k0_done
    s_load_dwordx2 s[4:5], s[0:1], 0
    s_load_dwordx4 s[16:19], s[0:1], 8
    s_load_dwordx4 s[20:23], s[0:1], 56
    s_load_dwordx2 s[6:7], s[0:1], 88
    v_and_b32 v1, 63, v0
    v_lshrrev_b32 v2, 6, v0
    s_waitcnt lgkmcnt(0)
    """)
    srd(k, 12, 6, WS_BYTES)
    k(f"""
    v_readfirstlane_b32 s3, v2
    s_cmp_ge_u32 s2, {K0_MOD}
    s_cbranch_scc1 k0_not_mod
    """)
    k("""
    v_and_b32 v3, 3, v0
    v_lshrrev_b32 v4, 2, v0
    v_mul_u32_u24 v5, 6912, v4
    v_lshl_add_u32 v5, v3, 4, v5
    s_lshl_b32 s10, s2, 6
    v_add_u32 v5, s10, v5
    v_lshlrev_b32 v6, 1, v4
    """)
    for i in range(9):
        k(f"global_load_ushort v{60+i}, v6, s[20:21] offset:{128*i}")
    for i in range(9):
        k(f"global_load_dwordx4 v[{16+4*i}:{19+4*i}], v5, s[22:23]")
        if i < 8:
            k(f"v_add_u32 v5, {64*6912}, v5")
    for j in range(8):
        k(f"v_mov_b32 v{80+j}, 0")
    k("s_waitcnt vmcnt(9)")
    for i in range(9):
        c = 60 + i
        k(f"""
        v_lshlrev_b32 v{c}, 16, v{c}
        v_mul_f32 v70, 0xbfb8aa3b, v{c}
        v_exp_f32 v70, v70
        v_add_f32 v70, 1.0, v70
        v_rcp_f32 v70, v70
        v_mul_f32 v{c}, v{c}, v70
        """)
        bf16_round(k, c, c)
    for i in range(9):
        k(f"s_waitcnt vmcnt({8-i})")
        for q in range(4):
            w = 16 + 4 * i + q
            k(f"""
            v_lshlrev_b32 v71, 16, v{w}
            v_and_b32 v72, 0xffff0000, v{w}
            v_fmac_f32 v{80+2*q}, v{60+i}, v71
            v_fmac_f32 v{81+2*q}, v{60+i}, v72
            """)
    k("""
    v_lshlrev_b32 v7, 5, v0
    ds_write_b128 v7, v[80:83]
    ds_write_b128 v7, v[84:87] offset:16
    s_waitcnt lgkmcnt(0)
    s_barrier
    v_and_b32 v8, 31, v0
    v_lshrrev_b32 v9, 5, v0
    v_lshlrev_b32 v10, 10, v9
    v_lshl_add_u32 v10, v8, 2, v10
    """)
    for i in range(8):
        k(f"ds_read_b32 v{16+i}, v10 offset:{128*i}")
    k("s_waitcnt lgkmcnt(0)")
    k("""
    v_add_f32 v16, v16, v17
    v_add_f32 v18, v18, v19
    v_add_f32 v20, v20, v21
    v_add_f32 v22, v22, v23
    v_add_f32 v16, v16, v18
    v_add_f32 v20, v20, v22
    v_add_f32 v16, v16, v20
    v_lshlrev_b32 v11, 2, v0
    ds_write_b32 v11, v16 offset:8192
    s_waitcnt lgkmcnt(0)
    s_barrier
    v_cmp_gt_u32 vcc, 32, v0
    s_and_saveexec_b64 s[36:37], vcc
    s_cbranch_execz k0_done
    """)
    for i in range(8):
        k(f"ds_read_b32 v{16+i}, v11 offset:{8192+128*i}")
    k("s_waitcnt lgkmcnt(0)")
    k("""
    v_add_f32 v16, v16, v17
    v_add_f32 v18, v18, v19
    v_add_f32 v20, v20, v21
    v_add_f32 v22, v22, v23
    v_add_f32 v16, v16, v18
    v_add_f32 v20, v20, v22
    v_add_f32 v16, v16, v20
    """)
    bf16_round(k, 16, 16)
    k("""
    s_mov_b32 s11, 0
    s_cmp_ge_u32 s2, 18
    s_cselect_b32 s24, 1, 0
    s_cmp_lt_u32 s2, 36
    s_cselect_b32 s25, 1, 0
    s_and_b32 s24, s24, s25
    s_cmp_ge_u32 s2, 72
    s_cselect_b32 s25, 1, 0
    s_cmp_lt_u32 s2, 90
    s_cselect_b32 s26, 1, 0
    s_and_b32 s25, s25, s26
    s_or_b32 s24, s24, s25
    s_cmp_eq_u32 s24, 0
    s_cbranch_scc1 k0_mod_store
    v_add_f32 v16, 1.0, v16
    """)
    bf16_round(k, 16, 16)
    k.label("k0_mod_store")
    k(f"""
    s_lshl_b32 s10, s2, 7
    v_add_u32 v11, s10, v11
    buffer_store_dword v16, v11, s[12:15], 0 offen offset:{MOD}
    s_cmp_lt_u32 s2, 54
    s_cbranch_scc1 k0_done
    s_cmp_ge_u32 s2, 90
    s_cbranch_scc1 k0_done
    """)
    k(f"""
    s_sub_u32 s24, s2, 54
    s_sub_u32 s25, s2, 72
    s_cmp_ge_u32 s2, 72
    s_cselect_b32 s24, s25, s24
    s_cselect_b32 s25, 0, 16
    s_lshl_b32 s26, s24, 1
    v_lshrrev_b32 v12, 4, v0
    v_add_u32 v12, s26, v12
    v_mul_u32_u24 v13, 57, v12
    v_lshrrev_b32 v13, 9, v13
    v_mul_u32_u24 v14, 9, v13
    v_sub_u32 v14, v12, v14
    v_lshrrev_b32 v15, 1, v13
    v_mul_u32_u24 v15, 9, v15
    v_and_b32 v17, 1, v13
    v_lshrrev_b32 v18, 1, v14
    v_lshl_add_u32 v18, v17, 2, v18
    v_and_b32 v19, 1, v14
    v_cmp_eq_u32 vcc, 8, v14
    v_cndmask_b32 v18, v18, 8, vcc
    v_cndmask_b32 v19, v19, v17, vcc
    v_add_u32 v15, v15, v18
    v_lshlrev_b32 v12, 7, v15
    v_bfe_u32 v13, v0, 2, 2
    v_lshl_add_u32 v12, v13, 5, v12
    v_lshl_add_u32 v12, v19, 3, v12
    v_and_b32 v13, 3, v0
    v_lshl_add_u32 v12, v13, 1, v12
    s_add_u32 s25, s25, {GSB}
    v_lshrrev_b32 v16, 16, v16
    buffer_store_short v16, v12, s[12:15], s25 offen
    s_branch k0_done
    """)
    k.label("k0_not_mod")
    k(f"""
    s_sub_u32 s2, s2, {K0_MOD}
    s_cmp_ge_u32 s2, {K0_XN}
    s_cbranch_scc1 k0_not_xn
    """)
    (lambda *a: None)(k, "k0", "qkv_attn_kernel", 2, 15, 3, 3)
    k("""
    s_lshl_b32 s10, s2, 2
    s_add_u32 s10, s10, s3
    s_lshl_b32 s10, s10, 3
    v_lshrrev_b32 v3, 3, v1
    v_add_u32 v3, s10, v3
    v_and_b32 v4, 7, v1
    v_mul_u32_u24 v5, 1152, v3
    v_lshl_add_u32 v5, v4, 4, v5
    """)
    for i in range(9):
        k(f"global_load_dwordx4 v[{16+4*i}:{19+4*i}], v5, s[4:5] offset:{128*i}")
    k(f"""
    v_lshrrev_b32 v6, 4, v3
    v_mul_u32_u24 v6, {18*1024}, v6
    v_and_b32 v7, 15, v3
    v_lshl_add_u32 v6, v7, 4, v6
    v_lshrrev_b32 v7, 2, v4
    v_lshl_add_u32 v6, v7, 10, v6
    v_and_b32 v7, 3, v4
    v_lshl_add_u32 v6, v7, 8, v6
    v_add_u32 v6, {XN}, v6
    v_mov_b32 v8, 0
    v_mov_b32 v9, 0
    """)
    for i in range(9):
        k(f"s_waitcnt vmcnt({8-i})")
        for q in range(4):
            w = 16 + 4 * i + q
            d = 64 + 8 * i + 2 * q
            k(f"v_lshlrev_b32 v{d}, 16, v{w}")
            k(f"v_and_b32 v{d+1}, 0xffff0000, v{w}")
        for q in range(4):
            d = 64 + 8 * i + 2 * q
            k(f"v_pk_add_f32 v[8:9], v[8:9], v[{d}:{d+1}]")

    def red8(r):
        k(f"v_add_f32_dpp v{r}, v{r}, v{r} quad_perm:[1,0,3,2] row_mask:0xf bank_mask:0xf")
        k(f"v_add_f32_dpp v{r}, v{r}, v{r} quad_perm:[2,3,0,1] row_mask:0xf bank_mask:0xf")
        k(f"v_add_f32_dpp v{r}, v{r}, v{r} row_half_mirror row_mask:0xf bank_mask:0xf")

    k("v_add_f32 v8, v8, v9")
    red8(8)
    k(f"v_mul_f32 v10, 0x3ae38e39, v8")
    k("v_mov_b32 v11, v10")
    k("v_mov_b32 v8, 0")
    k("v_mov_b32 v9, 0")
    for e in range(36):
        d = 64 + 2 * e
        k(f"v_pk_add_f32 v[12:13], v[{d}:{d+1}], v[10:11] neg_lo:[0,1] neg_hi:[0,1]")
        k(f"v_pk_fma_f32 v[8:9], v[12:13], v[12:13], v[8:9]")
    k("v_add_f32 v8, v8, v9")
    red8(8)
    k(f"v_mul_f32 v8, 0x3ae38e39, v8")
    bf16_round(k, 8, 8)
    k("v_add_f32 v8, 0x3727c5ac, v8")
    bf16_round(k, 8, 8)
    k("v_sqrt_f32 v8, v8")
    bf16_round(k, 8, 8)
    k("v_rcp_f32 v8, v8")
    bf16_round(k, 10, 10)
    k("v_mov_b32 v11, v10")
    k("v_mov_b32 v9, v8")
    for i in range(9):
        for q in range(4):
            d = 64 + 8 * i + 2 * q
            k(f"""
            v_pk_add_f32 v[12:13], v[{d}:{d+1}], v[10:11] neg_lo:[0,1] neg_hi:[0,1]
            v_cvt_pk_bf16_f32 v14, v12, v13
            v_lshlrev_b32 v12, 16, v14
            v_and_b32 v13, 0xffff0000, v14
            v_pk_mul_f32 v[12:13], v[12:13], v[8:9]
            v_cvt_pk_bf16_f32 v{16+4*i+q}, v12, v13
            """)
        k(f"buffer_store_dwordx4 v[{16+4*i}:{19+4*i}], v6, s[12:15], 0 offen offset:{(2*i*1024) % 4096}")
        if i % 2 == 1:
            k("v_add_u32 v6, 4096, v6")
    k("s_branch k0_done")
    k.label("k0_not_xn")
    k(f"""
    s_sub_u32 s2, s2, {K0_XN}
    s_cmp_ge_u32 s2, {K0_WQ}
    s_cbranch_scc1 k0_not_wq
    """)
    srd(k, 8, 16, 576 * 1728 * 2)
    k(f"""
    s_lshl_b32 s10, s2, 2
    s_add_u32 s34, s10, s3
    s_mov_b32 s10, {576*1728*2}
    s_and_b32 s35, s34, 7
    s_lshr_b32 s38, s34, 3
    v_cmp_gt_u32 vcc, 60, v1
    s_and_saveexec_b64 s[36:37], vcc
    v_mul_u32_u24 v3, 13, v1
    v_lshrrev_b32 v3, 8, v3
    v_mul_u32_u24 v4, 20, v3
    v_sub_u32 v4, v1, v4
    v_mul_u32_u24 v5, 13, v4
    v_lshrrev_b32 v5, 6, v5
    v_mul_u32_u24 v6, 5, v5
    v_sub_u32 v6, v4, v6
    v_cmp_eq_u32 s[40:41], 4, v6
    v_mul_u32_u24 v10, 1152, v3
    v_mul_u32_u24 v7, 36, v5
    v_add_u32 v10, v10, v7
    v_lshl_add_u32 v10, v6, 3, v10
    s_mul_i32 s39, s35, 144
    s_mul_i32 s42, s38, {8*3456}
    s_add_u32 s39, s39, s42
    v_add_u32 v10, s39, v10
    """)
    k(f"""
    v_lshrrev_b32 v7, 2, v1
    v_mul_u32_u24 v11, {18*1024}, v7
    v_and_b32 v7, 3, v1
    v_lshl_add_u32 v11, v7, 6, v11
    s_mul_i32 s39, s35, {16*18*1024}
    s_lshr_b32 s42, s38, 2
    s_lshl_b32 s42, s42, 10
    s_add_u32 s39, s39, s42
    s_and_b32 s42, s38, 3
    s_lshl_b32 s42, s42, 8
    s_add_u32 s39, s39, s42
    s_add_u32 s39, s39, {WQ}
    v_add_u32 v11, s39, v11
    """)
    pack_chunk(k, 8, 3456, zero_hi_mask_sgpr=40)
    k("s_branch k0_done")
    k.label("k0_not_wq")
    k(f"s_sub_u32 s2, s2, {K0_WQ}")
    srd(k, 8, 18, 576 * 576 * 2)
    k(f"""
    s_lshl_b32 s34, s2, 2
    s_add_u32 s34, s34, s3
    s_mul_hi_u32 s38, s34, 0x55555556
    s_mul_i32 s35, s38, 3
    s_sub_u32 s35, s34, s35
    v_cmp_gt_u32 vcc, 48, v1
    s_and_saveexec_b64 s[36:37], vcc
    s_mul_i32 s39, s35, 48
    v_add_u32 v3, s39, v1
    v_lshlrev_b32 v10, 3, v3
    s_mul_i32 s42, s38, {8*1152}
    v_add_u32 v10, s42, v10
    v_lshrrev_b32 v7, 2, v3
    v_mul_u32_u24 v11, {18*1024}, v7
    v_and_b32 v7, 3, v3
    v_lshl_add_u32 v11, v7, 6, v11
    s_lshr_b32 s42, s38, 2
    s_lshl_b32 s39, s42, 10
    s_and_b32 s42, s38, 3
    s_lshl_b32 s42, s42, 8
    s_add_u32 s39, s39, s42
    s_add_u32 s39, s39, {WOP}
    v_add_u32 v11, s39, v11
    """)
    pack_chunk(k, 8, 1152)
    k.label("k0_done")
    tl_end(k, 0)
    k("s_endpgm")
    return k, 136, 9216 + 256


K1_QB = 92160
K1_TS = 488
K1_ML = K1_QB + 80 * K1_TS
K1_LDS = K1_ML + 4608


def gen_k1():
    k = K("qkv_attn_kernel")
    tl_start(k)
    TS = K1_TS
    QB = K1_QB
    k(f"""
    s_cmp_ge_u32 s2, 256
    s_cbranch_scc1 k1_done
    s_load_dwordx2 s[6:7], s[0:1], 88
    s_load_dwordx4 s[16:19], s[0:1], 32
    s_load_dwordx2 s[8:9], s[0:1], 48
    v_and_b32 v1, 63, v0
    v_lshrrev_b32 v2, 6, v0
    v_lshlrev_b32 v3, 4, v1
    v_lshrrev_b32 v4, 4, v1
    v_readfirstlane_b32 s3, v2
    s_and_b32 s4, s2, 1
    s_lshl_b32 s4, s4, 2
    s_bfe_u32 s31, s2, 0x20003
    s_add_u32 s4, s4, s31
    s_bfe_u32 s5, s2, 0x20001
    s_lshl_b32 s5, s5, 3
    s_lshr_b32 s31, s2, 5
    s_add_u32 s5, s5, s31
    v_lshlrev_b32 v5, 5, v4
    s_waitcnt lgkmcnt(0)
    """)
    stamp(k, 0)
    srd(k, 12, 6, WS_BYTES)
    k(f"""
    s_mul_i32 s31, s3, 576
    s_add_u32 s32, s31, {K1_ML}
    s_mov_b32 m0, s32
    s_mov_b32 exec_hi, 0xf
    buffer_load_dwordx4 v3, s[12:15], s31 offen lds
    s_mov_b64 exec, -1
    """)
    k("""
    s_lshl_b32 s23, s5, 2
    s_sub_u32 s24, s23, 1
    s_max_i32 s24, s24, 0
    """)
    for i in range(5):
        if i == 0:
            k(f"s_mul_i32 s25, s24, {18*1024}")
            k(f"s_add_u32 s25, s25, {XN}")
        else:
            k(f"s_add_u32 s30, s23, {i-1}")
            k(f"s_mul_i32 s{25+i}, s30, {18*1024}")
            k(f"s_add_u32 s{25+i}, s{25+i}, {XN}")
    k("s_lshl_b32 s20, s3, 10")
    k("s_add_u32 s21, s20, 8192")
    for j in range(2):
        for i in range(5):
            x = 64 + 20 * j + 4 * i
            k(f"s_add_u32 s34, s{25+i}, s{20+j}")
            k(f"buffer_load_dwordx4 v[{x}:{x+3}], v3, s[12:15], s34 offen")
    k("""
    s_add_u32 s36, s3, 8
    s_cmp_lt_u32 s3, 2
    s_cselect_b32 s36, s36, s3
    s_mov_b32 s35, s3
    """)
    for e in range(2):
        k(f"""
        s_cmp_ge_u32 s{35+e}, 5
        s_cselect_b32 s{44+e}, 17, 16
        s_cselect_b32 s37, 5, 0
        s_sub_u32 s{46+e}, s{35+e}, s37
        s_add_u32 s37, s23, s{46+e}
        s_sub_u32 s37, s37, 1
        s_max_i32 s37, s37, 0
        s_mul_i32 s37, s37, 18
        s_add_u32 s37, s37, s{44+e}
        s_lshl_b32 s37, s37, 10
        s_add_u32 s37, s37, {XN}
        buffer_load_dwordx4 v[{104+4*e}:{107+4*e}], v3, s[12:15], s37 offen
        """)
    k("s_waitcnt vmcnt(12)")
    k("s_barrier")
    k(f"""
    s_lshl_b32 s40, s4, 4
    s_lshl_b32 s41, s3, 1
    s_add_u32 s42, s41, 1
    s_min_u32 s42, s42, 14
    s_add_u32 s41, s41, s40
    s_add_u32 s42, s42, s40
    s_mul_i32 s41, s41, {18*1024}
    s_mul_i32 s42, s42, {18*1024}
    s_add_u32 s41, s41, {WQ}
    s_add_u32 s42, s42, {WQ}
    """)

    NAS = 10

    def areg(kk, tt):
        return 124 + 8 * (kk % NAS) + 4 * tt

    def load_a(kk):
        if kk % 4 == 0 and kk > 0:
            k("s_add_u32 s41, s41, 4096")
            k("s_add_u32 s42, s42, 4096")
        for tt in range(2):
            a = areg(kk, tt)
            k(f"buffer_load_dwordx4 v[{a}:{a+3}], v3, s[12:15], s{41+tt} offen offset:{(kk%4)*1024}")

    k(f"s_lshl_b32 s31, s3, 7")
    k(f"v_add_u32 v6, s31, v5")
    k(f"s_lshl_b32 s31, s44, 7")
    k(f"v_add_u32 v7, s31, v5")
    k(f"s_lshl_b32 s31, s45, 7")
    k(f"v_add_u32 v11, s31, v5")
    k(f"v_add_u32 v6, {K1_ML}, v6")
    k(f"v_add_u32 v7, {K1_ML}, v7")
    k(f"v_add_u32 v11, {K1_ML}, v11")
    for j, (va, off) in enumerate(((6, 0), (6, 1024), (7, 0), (11, 0))):
        b = 16 + 16 * j if j < 3 else 208
        k(f"ds_read_b128 v[{b}:{b+3}], v{va} offset:{off + 2304}")
        k(f"ds_read_b128 v[{b+4}:{b+7}], v{va} offset:{off + 2304 + 16}")
        k(f"ds_read_b128 v[{b+8}:{b+11}], v{va} offset:{off}")
        k(f"ds_read_b128 v[{b+12}:{b+15}], v{va} offset:{off + 16}")

    def xform(x, b):
        T = 224
        for q in range(4):
            k(f"v_lshlrev_b32 v{T+2*q}, 16, v{x+q}")
            k(f"v_and_b32 v{T+2*q+1}, 0xffff0000, v{x+q}")
        for q in range(4):
            k(f"v_pk_mul_f32 v[{T+2*q}:{T+2*q+1}], v[{T+2*q}:{T+2*q+1}], v[{b+2*q}:{b+2*q+1}]")
        for q in range(4):
            k(f"v_cvt_pk_bf16_f32 v{T+8+q}, v{T+2*q}, v{T+2*q+1}")
        for q in range(4):
            k(f"v_lshlrev_b32 v{T+2*q}, 16, v{T+8+q}")
            k(f"v_and_b32 v{T+2*q+1}, 0xffff0000, v{T+8+q}")
        for q in range(4):
            k(f"v_pk_add_f32 v[{T+2*q}:{T+2*q+1}], v[{T+2*q}:{T+2*q+1}], v[{b+8+2*q}:{b+8+2*q+1}]")
        for q in range(4):
            k(f"v_cvt_pk_bf16_f32 v{x+q}, v{T+2*q}, v{T+2*q+1}")

    k("s_waitcnt lgkmcnt(0)")
    nw = 0
    for f in range(12):
        if f < 10:
            j, i = divmod(f, 5)
            x = 64 + 20 * j + 4 * i
            b = 16 + 16 * j
            if i == 0:
                k(f"v_add_u32 v6, s{20+j}, v3")
                k(f"v_add_u32 v7, 18432, v6")
        else:
            e = f - 10
            x = 104 + 4 * e
            b = 48 if e == 0 else 208
            k(f"""
            s_mul_i32 s37, s{46+e}, 18
            s_add_u32 s37, s37, s{44+e}
            s_lshl_b32 s37, s37, 10
            v_add_u32 v6, s37, v3
            """)
        k(f"s_waitcnt vmcnt({(11 - f) + 2 * nw})")
        xform(x, b)
        if f < 10:
            if i < 4:
                k(f"ds_write_b128 v6, v[{x}:{x+3}] offset:{i*18432}")
            else:
                k(f"ds_write_b128 v7, v[{x}:{x+3}] offset:{3*18432}")
        else:
            k(f"ds_write_b128 v6, v[{x}:{x+3}]")
        if nw < NAS - 1 and f >= 2:
            load_a(nw)
            nw += 1
    k("s_waitcnt lgkmcnt(0)")
    stamp(k, 1)
    k("s_barrier")
    stamp(k, 2)
    k("v_add_u32 v6, 55296, v3")

    def breg(kk, i):
        return 56 + 20 * (kk & 1) + 4 * i

    def read_b(kk):
        for i in range(5):
            b = breg(kk, i)
            if i < 3:
                k(f"ds_read_b128 v[{b}:{b+3}], v3 offset:{i*18432 + kk*1024}")
            else:
                k(f"ds_read_b128 v[{b}:{b+3}], v6 offset:{(i-3)*18432 + kk*1024}")

    def acc(tt, i):
        return 16 + 20 * tt + 4 * i

    read_b(0)
    for kk in range(18):
        if kk < 17:
            read_b(kk + 1)
        if nw < 18:
            load_a(nw)
            nw += 1
        k(f"s_waitcnt vmcnt({2 * (nw - 1 - kk)})")
        k(f"s_waitcnt lgkmcnt({5 if kk < 17 else 0})")
        for i in range(5):
            for tt in range(2):
                a = areg(kk, tt); b = breg(kk, i); c = acc(tt, i)
                cs = "0" if kk == 0 else f"v[{c}:{c+3}]"
                k(f"v_mfma_f32_16x16x32_bf16 v[{c}:{c+3}], v[{a}:{a+3}], v[{b}:{b+3}], {cs}")
    stamp(k, 3)
    k(f"""
    v_and_b32 v6, 15, v1
    v_mul_u32_u24 v6, {TS}, v6
    v_lshl_add_u32 v6, v4, 3, v6
    s_lshl_b32 s31, s3, 6
    s_add_u32 s31, s31, {QB}
    v_add_u32 v6, s31, v6
    """)
    for tt in range(2):
        if tt == 1:
            k("s_cmp_eq_u32 s3, 7")
            k("s_cbranch_scc1 k1_skip_t1")
        for i in range(5):
            c = acc(tt, i)
            k(f"v_cvt_pk_bf16_f32 v{60+2*i}, v{c}, v{c+1}")
            k(f"v_cvt_pk_bf16_f32 v{61+2*i}, v{c+2}, v{c+3}")
            k(f"ds_write_b64 v6, v[{60+2*i}:{61+2*i}] offset:{i*16*TS + tt*32}")
    k.label("k1_skip_t1")
    k("s_waitcnt lgkmcnt(0)")
    k("s_barrier")
    stamp(k, 4)
    (lambda *a: None)(k, "k1", "wo_kernel", 2, 250, 3, 7)

    k(f"""
    v_and_b32 v6, 1, v1
    v_bfe_u32 v7, v1, 1, 2
    v_lshrrev_b32 v8, 3, v1
    s_lshl_b32 s31, s3, 3
    v_add_u32 v8, s31, v8
    v_mul_u32_u24 v9, {TS}, v8
    v_mul_u32_u24 v10, 40, v7
    v_add_u32 v9, v9, v10
    v_add_u32 v9, {QB + 16*TS}, v9
    v_mul_u32_u24 v10, {8*TS}, v6
    v_sub_u32 v11, v9, v10
    v_add_u32 v12, {160 - 6*TS}, v11
    v_lshl_add_u32 v13, v6, 4, v11
    v_add_u32 v13, {320 - 6*TS}, v13
    v_add_u32 v14, v9, v10
    v_lshl_add_u32 v14, v6, 4, v14
    v_add_u32 v14, {320 - 14*TS}, v14
    """)
    for j in range(5):
        k(f"ds_read_b64 v[{16+2*j}:{17+2*j}], v9 offset:{8*j}")
    for u in range(4):
        for j in range(5):
            r = 32 + 10 * u + 2 * j
            k(f"ds_read_b64 v[{r}:{r+1}], v12 offset:{(3-u)*2*TS + 8*j}")
    for u in range(4):
        for j in range(3):
            r = 80 + 6 * u + 2 * j
            k(f"ds_read_b64 v[{r}:{r+1}], v13 offset:{(3-u)*2*TS + 8*j}")
    for u in range(4):
        for j in range(3):
            r = 104 + 6 * u + 2 * j
            k(f"ds_read_b64 v[{r}:{r+1}], v14 offset:{(3-u)*2*TS + 8*j}")
    k(f"""
    s_lshl_b32 s31, s5, 6
    v_add_u32 v15, s31, v8
    v_lshlrev_b32 v26, 3, v6
    v_sub_u32 v15, v15, v26
    v_mov_b32 v27, 0xce6e6b28
    s_waitcnt lgkmcnt(15)
    """)
    k("s_waitcnt lgkmcnt(0)")
    stamp(k, 5)
    for j in range(9):
        for u in range(4):
            src = "0" if j == 0 else f"v{28+u}"
            k(f"v_dot2_f32_bf16 v{28+u}, v{16+j}, v{32+10*u+j}, {src}")
    for u in range(4):
        bf16_round(k, 28 + u, 28 + u)
        k(f"v_mul_f32 v{28+u}, 0x3e715bef, v{28+u}")
        bf16_round(k, 28 + u, 28 + u)
        k(f"v_cmp_gt_i32 vcc, {2*u}, v15")
        k(f"v_cndmask_b32 v{28+u}, v{28+u}, v27, vcc")
    for u in range(4):
        k(f"v_mov_b32_dpp v{32+u}, v{28+u} quad_perm:[1,0,3,2] row_mask:0xf bank_mask:0xf")
    k("""
    v_max3_f32 v36, v28, v29, v30
    v_max3_f32 v36, v36, v31, v32
    v_max3_f32 v36, v36, v33, v34
    v_max_f32 v36, v36, v35
    """)
    for u in range(8):
        k(f"v_sub_f32 v{28+u}, v{28+u}, v36")
        k(f"v_mul_f32 v{28+u}, {LOG2E}, v{28+u}")
        k(f"v_exp_f32 v{28+u}, v{28+u}")
    k("""
    v_add_f32 v36, v28, v29
    v_add_f32 v37, v30, v31
    v_add_f32 v38, v32, v33
    v_add_f32 v39, v34, v35
    v_add_f32 v36, v36, v37
    v_add_f32 v38, v38, v39
    v_add_f32 v36, v36, v38
    v_rcp_f32 v36, v36
    """)
    for u in range(8):
        k(f"v_mul_f32 v{28+u}, v{28+u}, v36")
        k(f"v_cvt_pk_bf16_f32 v{40+u}, v{28+u}, 0")
        k(f"v_lshlrev_b32 v{48+u}, 16, v{40+u}")
    for u in range(8):
        vb = (80 + 6 * u) if u < 4 else (104 + 6 * (u - 4))
        for j in range(5):
            s0 = "0" if u == 0 else f"v{60+2*j}"
            s1 = "0" if u == 0 else f"v{61+2*j}"
            k(f"v_dot2_f32_bf16 v{60+2*j}, v{vb+j}, v{40+u}, {s0}")
            k(f"v_dot2_f32_bf16 v{61+2*j}, v{vb+j}, v{48+u}, {s1}")
    k(f"""
    v_mul_u32_u24 v9, 160, v8
    v_mul_u32_u24 v10, 36, v7
    v_add_u32 v9, v9, v10
    v_lshl_add_u32 v9, v6, 4, v9
    """)
    for j in range(5):
        k(f"v_cvt_pk_bf16_f32 v{70+j}, v{60+2*j}, v{61+2*j}")
        k(f"ds_write_b32 v9, v{70+j} offset:{4*j}")
    k("s_waitcnt lgkmcnt(0)")
    stamp(k, 6)
    k("s_barrier")
    stamp_flush(k, 7, 3, "k1")
    k(f"""
    v_mul_u32_u24 v6, 160, v1
    s_lshl_b32 s31, s3, 4
    v_add_u32 v6, s31, v6
    ds_read_b128 v[16:19], v6
    ds_read_b128 v[20:23], v6 offset:128
    v_mul_u32_u24 v7, {18*1024}, v4
    v_and_b32 v8, 15, v1
    v_lshl_add_u32 v7, v8, 4, v7
    s_mul_i32 s31, s5, {4*18*1024}
    s_mul_i32 s32, s4, 9
    s_add_u32 s32, s32, s3
    s_lshl_b32 s32, s32, 8
    s_add_u32 s31, s31, s32
    s_add_u32 s31, s31, {OO}
    s_waitcnt lgkmcnt(0)
    buffer_store_dwordx4 v[16:19], v7, s[12:15], s31 offen
    s_cmp_lg_u32 s3, 0
    s_cbranch_scc1 k1_done
    buffer_store_dwordx4 v[20:23], v7, s[12:15], s31 offen offset:2048
    """)
    k.label("k1_done")
    tl_end(k, 1)
    k("s_endpgm")
    return k, 256, K1_LDS


K2_GRID = 256
K2_YL = 36864 + 2304
K2_LDS = K2_YL + 10240


def gen_k2():
    k = K("wo_kernel")
    tl_start(k)
    k(f"""
    s_cmp_ge_u32 s2, {K2_GRID}
    s_cbranch_scc1 k2_done
    s_load_dwordx2 s[4:5], s[0:1], 0
    s_load_dwordx4 s[16:19], s[0:1], 32
    s_load_dwordx2 s[6:7], s[0:1], 88
    v_and_b32 v1, 63, v0
    v_lshrrev_b32 v2, 6, v0
    v_lshlrev_b32 v3, 4, v1
    v_lshrrev_b32 v4, 4, v1
    v_readfirstlane_b32 s3, v2
    s_waitcnt lgkmcnt(0)
    """)
    srd(k, 12, 6, WS_BYTES)
    k(f"""
    s_and_b32 s20, s2, 7
    s_lshl_b32 s20, s20, 3
    s_bfe_u32 s21, s2, 0x30003
    s_add_u32 s20, s20, s21
    s_lshr_b32 s21, s2, 6
    s_lshl_b32 s24, s20, 1
    s_mul_i32 s25, s21, 9
    s_add_u32 s25, s25, s3
    s_mul_i32 s27, s24, {18*1024}
    s_add_u32 s27, s27, {OO}
    s_lshl_b32 s26, s3, 12
    s_add_u32 s27, s27, s26
    s_mul_i32 s28, s25, {18*1024}
    s_add_u32 s28, s28, {WOP}
    """)
    stamp(k, 0)
    k("s_mov_b32 m0, s26")
    for i in range(4):
        k(f"buffer_load_dwordx4 v3, s[12:15], s27 offen offset:{1024*i} lds")
    for q in range(5):
        k(f"v_add_u32 v{5+q}, {4096*q}, v3")

    def areg(kk):
        return 24 + 4 * (kk % 11)

    def load_a(kk):
        a = areg(kk)
        k(f"buffer_load_dwordx4 v[{a}:{a+3}], v{5+kk//4}, s[12:15], s28 offen offset:{(kk%4)*1024}")

    for kk in range(11):
        load_a(kk)
    k(f"""
    v_and_b32 v10, 15, v1
    s_lshl_b32 s31, s24, 4
    v_add_u32 v10, s31, v10
    v_mul_u32_u24 v11, 1152, v10
    v_lshl_add_u32 v11, v4, 3, v11
    s_lshl_b32 s31, s25, 5
    v_add_u32 v11, s31, v11
    v_add_u32 v13, {16*1152}, v11
    v_lshlrev_b32 v12, 4, v4
    s_lshl_b32 s31, s25, 6
    v_add_u32 v12, s31, v12
    s_mov_b32 s34, {MOD + 2*576*4}
    s_mov_b32 s35, {MOD + 4*576*4}
    global_load_dwordx2 v[14:15], v11, s[4:5]
    global_load_dwordx2 v[16:17], v13, s[4:5]
    buffer_load_dwordx4 v[72:75], v12, s[12:15], s34 offen
    buffer_load_dwordx4 v[76:79], v12, s[12:15], s35 offen
    s_waitcnt vmcnt(15)
    s_barrier
    """)
    stamp(k, 1)

    def breg(kk, tt):
        return 80 + 8 * (kk & 1) + 4 * tt

    def read_b(kk):
        for tt in range(2):
            b = breg(kk, tt)
            k(f"ds_read_b128 v[{b}:{b+3}], v3 offset:{(tt*18 + kk)*1024}")

    accs = [18, 68]
    read_b(0)
    for kk in range(18):
        if kk < 17:
            read_b(kk + 1)
        if kk < 11:
            n_after = (10 - kk) + 4 + min(kk, 7)
        else:
            n_after = 17 - kk
        k(f"s_waitcnt vmcnt({n_after}) lgkmcnt({2 if kk < 17 else 0})")
        a = areg(kk)
        for tt in range(2):
            c = accs[tt]
            b = breg(kk, tt)
            cs = "0" if kk == 0 else f"v[{c}:{c+3}]"
            k(f"v_mfma_f32_16x16x32_bf16 v[{c}:{c+3}], v[{a}:{a+3}], v[{b}:{b+3}], {cs}")
        if kk + 11 < 18:
            load_a(kk + 11)
    stamp(k, 2)
    k(f"""
    s_cmp_ge_u32 s3, 2
    s_cbranch_scc1 k2_nopf
    v_min_u32 v24, 71, v0
    v_cmp_le_u32 vcc, 36, v24
    v_subrev_u32 v25, 36, v24
    v_cndmask_b32 v24, v24, v25, vcc
    v_mul_u32_u24 v25, 57, v24
    v_lshrrev_b32 v25, 9, v25
    v_mul_u32_u24 v26, 9, v25
    v_sub_u32 v26, v24, v26
    v_mul_u32_u24 v25, 9216, v25
    v_lshl_add_u32 v25, v26, 7, v25
    s_lshr_b32 s31, s2, 3
    s_mul_i32 s31, s31, {4*9216}
    s_and_b32 s32, s2, 7
    s_mul_i32 s32, s32, 1152
    s_add_u32 s31, s31, s32
    v_add_u32 v25, s31, v25
    v_mov_b32 v26, s16
    v_mov_b32 v27, s17
    v_mov_b32 v28, s18
    v_mov_b32 v29, s19
    v_cndmask_b32 v26, v26, v28, vcc
    v_cndmask_b32 v27, v27, v29, vcc
    v_add_co_u32 v26, vcc, v26, v25
    v_addc_co_u32 v27, vcc, 0, v27, vcc
    global_load_dword v95, v[26:27], off
    """)
    k.label("k2_nopf")
    (lambda *a: None)(k, "k2", "ffn1_kernel", 2, 94, 3, 8)
    k(f"""
    s_lshr_b32 s33, s3, 1
    s_lshl_b32 s33, s33, 10
    s_and_b32 s32, s3, 1
    s_lshl_b32 s32, s32, 3
    s_add_u32 s33, s33, s32
    s_add_u32 s33, s33, {K2_YL}
    v_add_u32 v6, s33, v3
    s_mul_i32 s36, s24, {144*128}
    s_lshl_b32 s37, s25, 9
    s_add_u32 s36, s36, s37
    s_add_u32 s36, s36, {X1}
    s_add_u32 s37, s36, {144*128}
    v_lshlrev_b32 v7, 3, v1
    """)
    ga, g2 = 72, 76
    for tt in range(2):
        c = accs[tt]
        xr = 14 + 2 * tt
        sm, sq = 40 + 2 * tt, 41 + 2 * tt
        k(f"""
        v_cvt_pk_bf16_f32 v24, v{c}, v{c+1}
        v_cvt_pk_bf16_f32 v25, v{c+2}, v{c+3}
        v_lshlrev_b32 v26, 16, v24
        v_and_b32 v27, 0xffff0000, v24
        v_lshlrev_b32 v28, 16, v25
        v_and_b32 v29, 0xffff0000, v25
        v_pk_mul_f32 v[26:27], v[26:27], v[{ga}:{ga+1}]
        v_pk_mul_f32 v[28:29], v[28:29], v[{ga+2}:{ga+3}]
        v_cvt_pk_bf16_f32 v24, v26, v27
        v_cvt_pk_bf16_f32 v25, v28, v29
        v_lshlrev_b32 v26, 16, v24
        v_and_b32 v27, 0xffff0000, v24
        v_lshlrev_b32 v28, 16, v25
        v_and_b32 v29, 0xffff0000, v25
        v_lshlrev_b32 v30, 16, v{xr}
        v_and_b32 v31, 0xffff0000, v{xr}
        v_lshlrev_b32 v32, 16, v{xr+1}
        v_and_b32 v33, 0xffff0000, v{xr+1}
        v_pk_add_f32 v[26:27], v[26:27], v[30:31]
        v_pk_add_f32 v[28:29], v[28:29], v[32:33]
        v_cvt_pk_bf16_f32 v{34+2*tt}, v26, v27
        v_cvt_pk_bf16_f32 v{35+2*tt}, v28, v29
        v_lshlrev_b32 v26, 16, v{34+2*tt}
        v_and_b32 v27, 0xffff0000, v{34+2*tt}
        v_lshlrev_b32 v28, 16, v{35+2*tt}
        v_and_b32 v29, 0xffff0000, v{35+2*tt}
        v_add_f32 v{sm}, v26, v27
        v_mul_f32 v{sq}, v26, v26
        v_fmac_f32 v{sq}, v27, v27
        v_add_f32 v{sm}, v{sm}, v28
        v_fmac_f32 v{sq}, v28, v28
        v_add_f32 v{sm}, v{sm}, v29
        v_fmac_f32 v{sq}, v29, v29
        v_pk_mul_f32 v[26:27], v[26:27], v[{g2}:{g2+1}]
        v_pk_mul_f32 v[28:29], v[28:29], v[{g2+2}:{g2+3}]
        v_cvt_pk_bf16_f32 v{44+2*tt}, v26, v27
        v_cvt_pk_bf16_f32 v{45+2*tt}, v28, v29
        ds_write_b64 v6, v[{44+2*tt}:{45+2*tt}] offset:{5120*tt}
        buffer_store_dwordx2 v[{34+2*tt}:{35+2*tt}], v7, s[12:15], s{36+tt} offen
        """)
    for r in range(40, 44):
        k(f"v_mov_b32 v{r+8}, v{r}")
    for r in range(40, 44):
        k(f"v_permlane16_swap_b32 v{r}, v{r+8}")
    for r in range(40, 44):
        k(f"v_add_f32 v{r}, v{r}, v{r+8}")
    for r in range(40, 44):
        k(f"v_mov_b32 v{r+8}, v{r}")
    for r in range(40, 44):
        k(f"v_permlane32_swap_b32 v{r}, v{r+8}")
    for r in range(40, 44):
        k(f"v_add_f32 v{r}, v{r}, v{r+8}")
    k(f"""
    v_cmp_gt_u32 vcc, 16, v1
    v_cndmask_b32 v40, v42, v40, vcc
    v_cndmask_b32 v41, v43, v41, vcc
    s_lshl_b32 s31, s3, 8
    s_add_u32 s31, s31, 36864
    v_lshlrev_b32 v5, 3, v1
    v_add_u32 v5, s31, v5
    s_mov_b32 exec_hi, 0
    ds_write_b64 v5, v[40:41]
    s_mov_b64 exec, -1
    s_waitcnt lgkmcnt(0)
    s_barrier
    s_cmp_eq_u32 s3, 0
    s_cbranch_scc1 k2_stats
    """)
    k(f"""
    s_sub_u32 s31, s3, 1
    s_lshr_b32 s32, s31, 2
    s_and_b32 s31, s31, 3
    s_mul_i32 s33, s32, 5120
    s_lshl_b32 s34, s31, 10
    s_add_u32 s33, s33, s34
    s_add_u32 s33, s33, {K2_YL}
    v_add_u32 v6, s33, v3
    ds_read_b128 v[24:27], v6
    s_lshr_b32 s35, s21, 1
    s_mul_i32 s35, s35, 9
    s_and_b32 s36, s21, 1
    s_lshl_b32 s37, s36, 2
    s_add_u32 s37, s37, s35
    s_add_u32 s37, s37, s31
    s_add_u32 s38, s24, s32
    s_mul_i32 s38, s38, 18
    s_add_u32 s37, s37, s38
    s_lshl_b32 s37, s37, 10
    s_add_u32 s37, s37, {YY}
    s_waitcnt lgkmcnt(0)
    buffer_store_dwordx4 v[24:27], v3, s[12:15], s37 offen
    s_cmp_lg_u32 s31, 0
    s_cbranch_scc1 k2_done
    ds_read_b64 v[28:29], v6 offset:4096
    s_add_u32 s37, s35, 8
    s_add_u32 s37, s37, s38
    s_lshl_b32 s37, s37, 10
    s_lshl_b32 s36, s36, 3
    s_add_u32 s37, s37, s36
    s_add_u32 s37, s37, {YY}
    s_waitcnt lgkmcnt(0)
    buffer_store_dwordx2 v[28:29], v3, s[12:15], s37 offen
    s_branch k2_done
    """)
    k.label("k2_stats")
    k("v_lshlrev_b32 v5, 2, v1")
    for w in range(9):
        k(f"ds_read_b32 v{24+w}, v5 offset:{36864 + 256*w}")
    k("s_waitcnt lgkmcnt(0)")
    k("""
    v_add_f32 v24, v24, v25
    v_add_f32 v26, v26, v27
    v_add_f32 v28, v28, v29
    v_add_f32 v30, v30, v31
    v_add_f32 v24, v24, v26
    v_add_f32 v28, v28, v30
    v_add_f32 v24, v24, v32
    v_add_f32 v24, v24, v28
    """)
    k(f"""
    s_lshl_b32 s31, s21, 14
    s_lshl_b32 s32, s24, 7
    s_add_u32 s31, s31, s32
    s_add_u32 s31, s31, {STAT}
    buffer_store_dword v24, v5, s[12:15], s31 offen
    """)
    stamp(k, 3)
    stamp_flush(k, 4, 3, "k2", 90)
    k.label("k2_done")
    tl_end(k, 2)
    k("s_endpgm")
    return k, 96, K2_LDS


K3_R = 8
K3_ST = 18432
K3_GSL = K3_R * K3_ST
K3_GBL = K3_GSL + 2304
K3_LDS = K3_GBL + 2304 + 16


class VM:
    def __init__(self):
        self.ops = []

    def add(self, tag, n=1):
        self.ops += [tag] * n

    def need(self, *tags):
        last = max((i for i, t in enumerate(self.ops) if t in tags), default=-1)
        return len(self.ops) - 1 - last


def gen_k3():
    k = K("ffn1_kernel")
    tl_start(k)
    R, ST = K3_R, K3_ST
    LA, NA = 4, 6
    S, D, DY = 3, 4, 4
    k(f"""
    s_cmp_ge_u32 s2, 256
    s_cbranch_scc1 k3_done
    s_load_dwordx4 s[16:19], s[0:1], 32
    s_load_dwordx2 s[56:57], s[0:1], 48
    s_load_dwordx2 s[6:7], s[0:1], 88
    v_and_b32 v1, 63, v0
    v_lshrrev_b32 v2, 6, v0
    v_lshlrev_b32 v3, 4, v1
    v_lshrrev_b32 v4, 4, v1
    v_readfirstlane_b32 s3, v2
    s_and_b32 s20, s2, 7
    s_lshl_b32 s20, s20, 2
    s_bfe_u32 s21, s2, 0x20003
    s_add_u32 s20, s20, s21
    s_lshr_b32 s21, s2, 5
    s_waitcnt lgkmcnt(0)
    """)
    stamp(k, 0)
    if DIAG:
        k("s_memrealtime s[90:91]")
    srd(k, 12, 6, WS_BYTES)
    k(f"""
    s_cmp_ge_u32 s3, 4
    s_cselect_b32 s8, s18, s16
    s_cselect_b32 s9, s19, s17
    s_cselect_b32 s22, 9216, 0
    s_and_b32 s9, s9, 0xffff
    s_mov_b32 s10, {576*4608*2}
    s_mov_b32 s11, 0x00020000
    s_and_b32 s23, s3, 3
    s_mul_i32 s24, s23, 2304
    s_add_u32 s22, s22, s24
    s_lshl_b32 s24, s21, 4
    s_lshl_b32 s25, s3, 1
    s_add_u32 s24, s24, s25
    s_mul_i32 s25, s24, {18*1024}
    s_add_u32 s25, s25, {YY}
    s_add_u32 s26, s25, {18*1024}
    s_mov_b32 s50, -1
    s_mov_b32 s51, 0xffff
    s_mov_b32 s52, 0x3ffff
    s_mov_b32 s53, 0
    s_and_b32 s27, s23, 1
    s_mul_i32 s27, s27, {8*9216}
    s_mul_i32 s28, s20, 288
    s_add_u32 s27, s27, s28
    s_lshr_b32 s28, s23, 1
    s_mul_i32 s54, s28, {16*9216}
    s_mul_i32 s55, s28, {144*9216}
    """)
    for i in range(3):
        k(f"""
        v_add_u32 v7, {48*i}, v1
        v_mul_u32_u24 v8, 0xe39, v7
        v_lshrrev_b32 v8, 16, v8
        v_mul_u32_u24 v9, 18, v8
        v_sub_u32 v9, v7, v9
        v_mul_u32_u24 v8, 9216, v8
        v_lshl_add_u32 v8, v9, 4, v8
        v_add_u32 v{10+i}, s27, v8
        """)

    def ybuf(st, tt):
        return 72 + 8 * (st % 5) + 4 * tt

    def dma_parts(st):
        parts = []
        for i in range(3):
            p = []
            if i == 0:
                p += [f"s_add_u32 s30, s22, {(st % R) * ST}",
                      f"s_add_u32 s29, s{54 if st % 9 < 8 else 55}, {tile_of(st, 0) * 16 * 9216}"]
            p += [f"s_add_u32 m0, s30, {768*i}", "s_mov_b64 exec, s[50:51]",
                  f"buffer_load_dwordx4 v{10+i}, s[8:11], s29 offen lds", "s_mov_b64 exec, -1"]
            parts.append((p, f"w{st}"))
        return parts

    def y_parts(st):
        parts = []
        for tt in range(2):
            p = []
            if tt == 0 and st % 4 == 0 and st > 0:
                p += ["s_add_u32 s25, s25, 4096", "s_add_u32 s26, s26, 4096"]
            y = ybuf(st, tt)
            p.append(f"buffer_load_dwordx4 v[{y}:{y+3}], v3, s[12:15], s{25+tt} offen offset:{(st * 1024) % 4096}")
            parts.append((p, f"y{st}"))
        return parts

    vm0 = VM()

    def emit(parts, vm, loop=False):
        for p, tag in parts:
            if loop and "nodma" in ABL:
                continue
            for ln in p:
                k(ln)
            vm.add(tag)

    emit(dma_parts(0) + y_parts(0), vm0)
    k(f"""
    v_bfe_u32 v7, v1, 2, 2
    v_lshl_add_u32 v7, v4, 2, v7
    v_mul_u32_u24 v7, 288, v7
    v_and_b32 v8, 3, v1
    v_lshl_add_u32 v13, v8, 3, v7
    v_add_u32 v14, {3*ST}, v13
    v_add_u32 v15, {6*ST}, v13
    v_and_b32 v7, 15, v1
    v_lshlrev_b32 v8, 5, v4
    v_lshl_add_u32 v8, v7, 4, v8
    v_add_u32 v8, {K3_GBL}, v8
    v_mov_b32 v9, {K3_GBL + 2304}
    v_cmp_gt_u32 vcc, 2, v7
    v_cndmask_b32 v16, v9, v8, vcc
    v_mov_b32 v19, 128
    v_cndmask_b32 v19, 0, v19, vcc
    v_mov_b32 v20, 0
    v_mov_b32 v21, 0
    v_mov_b32 v22, 0
    v_mov_b32 v23, 0
    ds_write_b128 v9, v[20:23]
    s_mul_i32 s27, s3, 288
    s_add_u32 s28, s27, {K3_GBL}
    s_add_u32 s27, s27, {GSB}
    s_mov_b32 m0, s28
    s_mov_b64 exec, s[52:53]
    buffer_load_dwordx4 v3, s[12:15], s27 offen lds
    s_mov_b64 exec, -1
    """)
    vm0.add("gsb")
    for st in range(1, D):
        emit(dma_parts(st) + y_parts(st), vm0)
    k(f"""
    v_and_b32 v17, 31, v1
    s_lshl_b32 s27, s24, 4
    v_add_u32 v17, s27, v17
    v_lshlrev_b32 v17, 3, v17
    v_lshrrev_b32 v18, 5, v1
    v_mul_u32_u24 v18, {2*16384}, v18
    v_add_u32 v17, v17, v18
    s_mov_b32 s27, {STAT}
    s_mov_b32 s28, {STAT + 16384}
    buffer_load_dwordx2 v[6:7], v17, s[12:15], s27 offen
    buffer_load_dwordx2 v[8:9], v17, s[12:15], s28 offen
    """)
    vm0.add("stat", 2)
    k("""
    s_and_b32 s60, s23, 1
    s_mul_i32 s60, s60, 9216
    s_lshr_b32 s61, s23, 1
    s_lshl_b32 s61, s61, 5
    s_add_u32 s60, s60, s61
    s_add_u32 s61, s60, 64
    s_add_u32 s62, s60, 128
    s_add_u32 s63, s60, 192
    s_add_u32 s64, s60, 256
    s_cmp_lt_u32 s23, 2
    s_cselect_b32 s64, s64, s63
    """)

    def acc(tt, m, ft):
        return 112 + ((tt * 2 + m) * 9 + ft) * 4

    frs = [(m, ft) for ft in range(9) for m in range(2)]
    GB = 20

    def body(grp):
        import copy
        vm = copy.deepcopy(vm0)
        nx = 5 if grp == 0 and "nogs" not in ABL else 0
        per = 18 + nx
        seq = []
        xi = 0
        for j in range(18):
            seq.append(("m", j))
            if nx and j % 4 == 1 and xi < nx:
                seq.append(("x", xi)); xi += 1
        while xi < nx:
            seq.append(("x", xi)); xi += 1
        NQ = 18 * per

        def areg(q):
            return 48 + 4 * (q % NA)

        def read_frag(q):
            st, j = divmod(q, per)
            kind, idx = seq[j]
            sl = st % R
            base = 13 + sl // 3
            a = areg(q)
            if kind == "m":
                m, ft = frs[idx]
                off = (sl % 3) * ST + m * 9216 + ft * 32
                k(f"ds_read_b64_tr_b16 v[{a}:{a+1}], v{base} offset:{off}")
                k(f"ds_read_b64_tr_b16 v[{a+2}:{a+3}], v{base} offset:{off + 4608}")
            else:
                t = 17 + (idx & 1)
                off = (sl % 3) * ST
                k(f"v_add_u32 v{t}, s{60+idx}, v{base}")
                k(f"ds_read_b64_tr_b16 v[{a}:{a+1}], v{t} offset:{off}")
                k(f"ds_read_b64_tr_b16 v[{a+2}:{a+3}], v{t} offset:{off + 4608}")

        BJ = 8 if grp == 0 else 2
        VJ = 12 if grp == 0 else BJ
        k(f"s_waitcnt vmcnt({vm.need('w0', 'y0', 'gsb')}) lgkmcnt(0)")
        k("s_barrier")
        stamp(k, 1)
        for t in range(18 + S * grp):
            st = t - S * grp
            parts = []
            if t + D < 18:
                parts += dma_parts(t + D)
            ys = st + DY
            if grp == 0:
                if ys < 18:
                    parts += y_parts(ys)
            else:
                if D <= ys < 18:
                    parts += y_parts(ys)
            if st < 0:
                k(f"s_waitcnt vmcnt({vm.need(f'w{t+1}')})")
                k("s_barrier")
                emit(parts, vm)
                continue
            if st == 0:
                if grp == 0:
                    k(f"ds_read_b128 v[{GB}:{GB+3}], v16")
                else:
                    k(f"s_waitcnt vmcnt({vm.need('y0')})")
                for q in range(LA):
                    read_frag(q)
            pi = 0
            for j in range(per):
                q = st * per + j
                if j == BJ and t <= 18:
                    need = []
                    if t + 1 < 18:
                        need.append(f"w{t+1}")
                    if st + 1 < 18:
                        need.append(f"y{st+1}")
                    if need:
                        k(f"s_waitcnt vmcnt({vm.need(*need)})")
                    if t < 17 or (grp == 1 and t == 18):
                        k("s_barrier")
                    if st in (0, 6, 12):
                        stamp(k, 2 + (0, 6, 12).index(st))
                elif j == BJ and st + 1 < 18:
                    k(f"s_waitcnt vmcnt({vm.need(f'y{st+1}')})")
                if grp == 0 and j == 2 and st < 17:
                    g_ = GB + 4 * ((st + 1) & 1)
                    k("v_add_u32 v16, v16, v19")
                    k(f"ds_read_b128 v[{g_}:{g_+3}], v16")
                if q + LA < NQ:
                    read_frag(q + LA)
                    k(f"s_waitcnt lgkmcnt({2*LA})")
                else:
                    k(f"s_waitcnt lgkmcnt({2*(NQ-1-q)})")
                kind, idx = seq[j]
                a = areg(q)
                if kind == "m":
                    m, ft = frs[idx]
                    for tt in range(2):
                        c = acc(tt, m, ft)
                        y = ybuf(st, tt)
                        cs = "0" if st == 0 else f"v[{c}:{c+3}]"
                        k(f"v_mfma_f32_16x16x32_bf16 v[{c}:{c+3}], v[{a}:{a+3}], v[{y}:{y+3}], {cs}")
                else:
                    gc = 28 + 4 * idx
                    g_ = GB + 4 * (st & 1)
                    cs = "0" if st == 0 else f"v[{gc}:{gc+3}]"
                    k(f"v_mfma_f32_16x16x32_bf16 v[{gc}:{gc+3}], v[{a}:{a+3}], v[{g_}:{g_+3}], {cs}")
                if grp == 1 and j == BJ and "spread1" not in ABL:
                    emit(parts, vm, True)
                    pi = len(parts)
                elif j >= VJ and pi < len(parts):
                    emit(parts[pi:pi + 1], vm, True)
                    pi += 1
                if t == 14 and j == per - 1:
                    (lambda *a: None)(k, f"k3g{grp}", "ffn2_kernel", 2, 2)
                    vm.add("pf")
                    k(f"""
                    v_min_u32 v5, 161, v0
                    s_mul_i32 s31, s2, {162*128}
                    v_lshl_add_u32 v5, v5, 7, s31
                    global_load_dword v0, v5, s[56:57]
                    """)
                    vm.add("pf")
            assert pi == len(parts)
        stamp(k, 5)
        if grp == 0:
            k(f"""
            v_and_b32 v5, 15, v1
            v_mul_u32_u24 v5, 576, v5
            v_lshl_add_u32 v5, v4, 4, v5
            s_and_b32 s31, s3, 1
            s_mul_i32 s31, s31, 1152
            s_lshr_b32 s32, s3, 1
            s_lshl_b32 s32, s32, 6
            s_add_u32 s31, s31, s32
            s_add_u32 s31, s31, {K3_GSL}
            v_add_u32 v5, s31, v5
            s_mov_b32 exec_lo, 0x00030003
            s_mov_b32 exec_hi, 0x00030003
            ds_write_b128 v5, v[28:31]
            ds_write_b128 v5, v[32:35] offset:128
            ds_write_b128 v5, v[36:39] offset:256
            ds_write_b128 v5, v[40:43] offset:384
            s_cmp_ge_u32 s3, 2
            s_cbranch_scc1 k3_gs_w
            ds_write_b128 v5, v[44:47] offset:512
            """)
            k.label("k3_gs_w")
            k("""
            s_mov_b64 exec, -1
            s_waitcnt lgkmcnt(0)
            s_barrier
            """)

    k("s_cmp_ge_u32 s3, 4")
    k("s_cbranch_scc1 k3_grp1")
    body(0)
    k("s_branch k3_epi")
    k.label("k3_grp1")
    body(1)
    k.label("k3_epi")
    k("""
    s_nop 7
    v_add_f32 v20, v6, v8
    v_add_f32 v21, v7, v9
    v_mov_b32 v22, v20
    v_mov_b32 v23, v21
    v_permlane32_swap_b32 v20, v22
    v_permlane32_swap_b32 v21, v23
    v_add_f32 v20, v20, v22
    v_add_f32 v21, v21, v23
    v_mul_f32 v20, 0x3ae38e39, v20
    v_mul_f32 v21, 0x3ae38e39, v21
    v_fma_f32 v21, -v20, v20, v21
    v_max_f32 v21, 0, v21
    """)
    bf16_round(k, 21, 21)
    k("v_add_f32 v21, 0x3727c5ac, v21")
    bf16_round(k, 21, 21)
    k("v_sqrt_f32 v21, v21")
    bf16_round(k, 21, 21)
    k("v_rcp_f32 v21, v21")
    bf16_round(k, 20, 20)
    k("""
    v_mul_f32 v20, v20, v21
    v_sub_f32 v20, 0, v20
    v_mov_b32 v24, v21
    v_mov_b32 v26, v21
    v_mov_b32 v28, v20
    v_mov_b32 v30, v20
    v_permlane16_swap_b32 v24, v26
    v_permlane16_swap_b32 v28, v30
    """)
    k(f"""
    v_lshlrev_b32 v5, 4, v4
    v_add_u32 v5, {K3_GSL}, v5
    s_mul_i32 s27, s24, {144*1024}
    s_add_u32 s27, s27, {HH}
    s_lshr_b32 s28, s20, 1
    s_mul_i32 s28, s28, {9*1024}
    s_add_u32 s27, s27, s28
    s_and_b32 s28, s20, 1
    s_lshl_b32 s42, s28, 3
    s_add_u32 s42, s42, s27
    s_add_u32 s42, s42, 8192
    s_add_u32 s43, s42, {144*1024}
    s_lshl_b32 s28, s28, 12
    s_add_u32 s32, s27, s28
    s_add_u32 s33, s32, {144*1024}
    s_mov_b32 s40, 0xbfb8aa3b
    s_mov_b32 s41, 0xbfb8aa3b
    """)

    def gsreg(ft):
        return 48 + 16 * (ft % 2)

    def read_gs(ft):
        g = gsreg(ft)
        for a in range(4):
            k(f"ds_read_b128 v[{g+4*a}:{g+4*a+3}], v5 offset:{a*576 + ft*64}")

    read_gs(0)
    for ft in range(9):
        g = gsreg(ft)
        if ft < 8:
            read_gs(ft + 1)
        k(f"s_waitcnt lgkmcnt({4 if ft < 8 else 0})")
        U4 = [(tt, h) for tt in range(2) for h in range(2)]
        for u, (tt, h) in enumerate(U4):
            mr = 28 + 2 * tt
            k(f"v_pk_fma_f32 v[{80+2*u}:{81+2*u}], v[{g+2*h}:{g+2*h+1}], v[{mr}:{mr+1}], v[{g+4+2*h}:{g+4+2*h+1}] op_sel_hi:[1,0,1]")
        for u, (tt, h) in enumerate(U4):
            mr = 28 + 2 * tt
            k(f"v_pk_fma_f32 v[{88+2*u}:{89+2*u}], v[{g+8+2*h}:{g+8+2*h+1}], v[{mr}:{mr+1}], v[{g+12+2*h}:{g+12+2*h+1}] op_sel_hi:[1,0,1]")
        for u, (tt, h) in enumerate(U4):
            r = 24 + 2 * tt
            ga = acc(tt, 0, ft)
            k(f"v_pk_fma_f32 v[{80+2*u}:{81+2*u}], v[{ga+2*h}:{ga+2*h+1}], v[{r}:{r+1}], v[{80+2*u}:{81+2*u}] op_sel_hi:[1,0,1]")
        for u, (tt, h) in enumerate(U4):
            k(f"v_pk_mul_f32 v[{96+2*u}:{97+2*u}], v[{80+2*u}:{81+2*u}], s[40:41]")
        for u, (tt, h) in enumerate(U4):
            r = 24 + 2 * tt
            ua = acc(tt, 1, ft)
            k(f"v_pk_fma_f32 v[{88+2*u}:{89+2*u}], v[{ua+2*h}:{ua+2*h+1}], v[{r}:{r+1}], v[{88+2*u}:{89+2*u}] op_sel_hi:[1,0,1]")
        for e in range(8):
            if "notrans" not in ABL:
                k(f"v_exp_f32 v{96+e}, v{96+e}")
        for u in range(4):
            k(f"v_pk_mul_f32 v[{80+2*u}:{81+2*u}], v[{80+2*u}:{81+2*u}], v[{88+2*u}:{89+2*u}]")
        for u in range(4):
            k(f"v_pk_add_f32 v[{96+2*u}:{97+2*u}], v[{96+2*u}:{97+2*u}], 1.0 op_sel_hi:[1,0]")
        for e in range(8):
            if "notrans" not in ABL:
                k(f"v_rcp_f32 v{96+e}, v{96+e}")
        for u in range(4):
            k(f"v_pk_mul_f32 v[{80+2*u}:{81+2*u}], v[{80+2*u}:{81+2*u}], v[{96+2*u}:{97+2*u}]")
        pb = (ft >> 1) & 1
        for u, (tt, h) in enumerate(U4):
            o = (32 if pb == 0 else 40) + 4 * tt + 2 * (ft & 1) + h
            k(f"v_cvt_pk_bf16_f32 v{o}, v{80+2*u}, v{81+2*u}")
        for tt in range(2):
            o = (32 if pb == 0 else 40) + 4 * tt
            if "nostore" in ABL:
                continue
            if ft == 8:
                k(f"buffer_store_dwordx2 v[{o}:{o+1}], v3, s[12:15], s{42+tt} offen")
            elif ft & 1:
                k(f"buffer_store_dwordx4 v[{o}:{o+3}], v3, s[12:15], s{32+tt} offen offset:{(ft>>1)*1024}")
    stamp(k, 6)
    if DIAG:
        k("s_memrealtime s[92:93]")
        k("s_waitcnt lgkmcnt(0)")
        k("s_sub_u32 s77, s92, s90")
        k("s_add_u32 s77, s77, s70")
    stamp_flush(k, 8, 3, "k3")
    k.label("k3_done")
    tl_end(k, 3)
    k("s_endpgm")
    return k, 256, K3_LDS


K4_NS = 3
K4_LDS = 140 * 1024
K4_GRID = 240


def gen_k4():
    k = K("ffn2_kernel")
    tl_start(k)
    NS = K4_NS
    k(f"""
    s_cmp_ge_u32 s2, {K4_GRID}
    s_cbranch_scc1 k4_done
    s_and_b32 s20, s2, 7
    s_mul_i32 s20, s20, 30
    s_lshr_b32 s21, s2, 3
    s_add_u32 s22, s20, s21
    s_cmp_ge_u32 s22, 234
    s_cbranch_scc1 k4_done
    s_load_dwordx2 s[16:17], s[0:1], 48
    s_load_dwordx2 s[18:19], s[0:1], 72
    s_load_dwordx2 s[6:7], s[0:1], 88
    v_and_b32 v1, 63, v0
    v_lshrrev_b32 v2, 6, v0
    v_lshlrev_b32 v3, 4, v1
    v_lshrrev_b32 v4, 4, v1
    v_readfirstlane_b32 s3, v2
    s_mul_i32 s20, s22, 0x1c72
    s_lshr_b32 s20, s20, 16
    s_mul_i32 s21, s20, 9
    s_sub_u32 s21, s22, s21
    s_waitcnt lgkmcnt(0)
    """)
    stamp(k, 0)
    srd(k, 12, 6, WS_BYTES)
    srd(k, 8, 16, 4608 * 576 * 2)
    srd(k, 44, 18, 2048 * 576 * 2)
    k(f"s_mul_i32 s22, s20, 5")
    k(f"s_mul_i32 s23, s3, {18*1024}")
    for tt in range(5):
        k(f"""
        s_add_u32 s29, s22, {tt}
        s_min_u32 s29, s29, 127
        s_mul_i32 s29, s29, {144*1024}
        s_add_u32 s29, s29, s23
        s_add_u32 s{24+tt}, s29, {HH}
        """)
    k(f"""
    s_mul_i32 s30, s3, {NS*4096}
    s_mul_i32 s31, s3, {576*1152}
    s_lshl_b32 s29, s21, 7
    s_add_u32 s31, s31, s29
    v_lshrrev_b32 v7, 3, v1
    v_and_b32 v8, 7, v1
    v_bfe_u32 v9, v7, 1, 2
    v_lshlrev_b32 v9, 1, v9
    v_xor_b32 v8, v8, v9
    v_mul_u32_u24 v7, 1152, v7
    v_lshl_add_u32 v7, v8, 4, v7
    v_add_u32 v10, s31, v7
    v_add_u32 v11, {8*1152}, v10
    """)
    k(f"""
    v_bfe_u32 v7, v1, 2, 2
    v_lshl_add_u32 v7, v4, 2, v7
    v_bfe_u32 v8, v7, 1, 2
    v_lshlrev_b32 v8, 1, v8
    v_bfe_u32 v9, v1, 1, 1
    v_lshlrev_b32 v7, 7, v7
    v_and_b32 v16, 1, v1
    v_lshl_add_u32 v7, v16, 3, v7
    v_add_u32 v7, s30, v7
    """)
    for nt in range(4):
        k(f"""
        v_or_b32 v16, {2*nt}, v9
        v_xor_b32 v16, v16, v8
        v_lshl_add_u32 v{12+nt}, v16, 4, v7
        """)

    def hbuf(it, tt):
        return 32 + 20 * (it % NS) + 4 * tt

    def issue(it):
        for i in range(4):
            half = i >> 1
            k(f"s_mov_b32 s29, {tile_of(it, half) * 16 * 1152}")
            k(f"s_add_u32 m0, s30, {(it % NS) * 4096 + 1024 * i}")
            k(f"buffer_load_dwordx4 v{10 + (i & 1)}, s[8:11], s29 offen lds")
        if it % 4 == 0 and it > 0:
            for tt in range(5):
                k(f"s_add_u32 s{24+tt}, s{24+tt}, 4096")
        for tt in range(5):
            h = hbuf(it, tt)
            k(f"buffer_load_dwordx4 v[{h}:{h+3}], v3, s[12:15], s{24+tt} offen offset:{(it % 4) * 1024}")

    def acc(tt, nt):
        return 128 + (tt * 4 + nt) * 4

    NIT = 18
    for it in range(NS - 1):
        issue(it)
    for it in range(NIT):
        if it + NS - 1 < NIT:
            issue(it + NS - 1)
        n_after = 9 * (min(it + NS - 1, NIT - 1) - it)
        k(f"s_waitcnt vmcnt({n_after})")
        if it in (0, 1, 9):
            stamp(k, 1 + (0, 1, 9).index(it))
        for nt in range(4):
            a = 96 + 4 * nt
            off = (it % NS) * 4096
            k(f"ds_read_b64_tr_b16 v[{a}:{a+1}], v{12+nt} offset:{off}")
            k(f"ds_read_b64_tr_b16 v[{a+2}:{a+3}], v{12+nt} offset:{off + 2048}")
        for nt in range(4):
            a = 96 + 4 * nt
            k(f"s_waitcnt lgkmcnt({2*(3-nt)})")
            for tt in range(5):
                c = acc(tt, nt)
                h = hbuf(it, tt)
                cs = "0" if it == 0 else f"v[{c}:{c+3}]"
                k(f"v_mfma_f32_16x16x32_bf16 v[{c}:{c+3}], v[{a}:{a+3}], v[{h}:{h+3}], {cs}")
    stamp(k, 4)
    k("s_barrier")
    stamp(k, 5)
    for u in range(20):
        owner = u % 8
        c = 128 + 4 * u
        k(f"""
        s_sub_u32 s33, s3, {owner + 1}
        s_and_b32 s33, s33, 7
        s_cmp_eq_u32 s33, 7
        s_cbranch_scc1 k4_skip_{u}
        s_lshl_b32 s33, s33, 10
        s_add_u32 s33, s33, {u * 7 * 1024}
        v_add_u32 v5, s33, v3
        ds_write_b128 v5, v[{c}:{c+3}]
        """)
        k.label(f"k4_skip_{u}")
    for w in range(8):
        k(f"s_cmp_lg_u32 s3, {w}")
        k(f"s_cbranch_scc1 k4_mv_{w}")
        for j in range(3):
            u = w + 8 * j if w + 8 * j < 20 else w + 8
            for r in range(4):
                k(f"v_mov_b32 v{16+4*j+r}, v{128+4*u+r}")
        k.label(f"k4_mv_{w}")
    k("""
    s_mov_b32 s34, s3
    s_add_u32 s35, s3, 8
    s_add_u32 s36, s3, 16
    s_cmp_lt_u32 s3, 4
    s_cselect_b32 s36, s36, s35
    v_lshlrev_b32 v9, 3, v1
    v_lshlrev_b32 v11, 4, v4
    v_and_b32 v12, 15, v1
    v_mul_u32_u24 v12, 1152, v12
    v_lshl_add_u32 v12, v4, 3, v12
    """)
    for j in range(3):
        k(f"""
        s_lshr_b32 s37, s{34+j}, 2
        s_and_b32 s38, s{34+j}, 3
        s_add_u32 s37, s37, s22
        s_min_u32 s39, s37, 127
        s_mul_i32 s40, s39, {144*128}
        s_lshl_b32 s41, s21, 11
        s_add_u32 s40, s40, s41
        s_lshl_b32 s41, s38, 9
        s_add_u32 s40, s40, s41
        s_add_u32 s40, s40, {X1}
        buffer_load_dwordx2 v[{120+2*j}:{121+2*j}], v9, s[12:15], s40 offen
        s_lshl_b32 s40, s21, 8
        s_lshl_b32 s41, s38, 6
        s_add_u32 s40, s40, s41
        s_add_u32 s40, s40, {MOD + 5*576*4}
        buffer_load_dwordx4 v[{208+4*j}:{211+4*j}], v11, s[12:15], s40 offen
        s_mul_i32 s40, s37, {16*1152}
        s_lshl_b32 s41, s21, 7
        s_add_u32 s40, s40, s41
        s_lshl_b32 s41, s38, 5
        s_add_u32 s{50+j}, s40, s41
        s_mul_i32 s40, s{34+j}, {7*1024}
        v_add_u32 v{6+j}, s40, v3
        """)
    k("s_waitcnt lgkmcnt(0)")
    k("s_barrier")
    for j in range(3):
        for sl in range(7):
            r = 32 + (j * 7 + sl) * 4
            k(f"ds_read_b128 v[{r}:{r+3}], v{6+j} offset:{sl*1024}")
    for j in range(3):
        k(f"s_waitcnt lgkmcnt({min(15, 7*(2-j))})")
        for sl in range(7):
            r = 32 + (j * 7 + sl) * 4
            k(f"v_pk_add_f32 v[{16+4*j}:{17+4*j}], v[{16+4*j}:{17+4*j}], v[{r}:{r+1}]")
            k(f"v_pk_add_f32 v[{18+4*j}:{19+4*j}], v[{18+4*j}:{19+4*j}], v[{r+2}:{r+3}]")
    k("s_waitcnt vmcnt(0)")
    for j in range(3):
        c = 16 + 4 * j
        gb = 208 + 4 * j
        xr = 120 + 2 * j
        t = 32 + 8 * j
        k(f"""
        v_cvt_pk_bf16_f32 v{t}, v{c}, v{c+1}
        v_cvt_pk_bf16_f32 v{t+1}, v{c+2}, v{c+3}
        v_lshlrev_b32 v{c}, 16, v{t}
        v_and_b32 v{c+1}, 0xffff0000, v{t}
        v_lshlrev_b32 v{c+2}, 16, v{t+1}
        v_and_b32 v{c+3}, 0xffff0000, v{t+1}
        v_pk_mul_f32 v[{c}:{c+1}], v[{c}:{c+1}], v[{gb}:{gb+1}]
        v_pk_mul_f32 v[{c+2}:{c+3}], v[{c+2}:{c+3}], v[{gb+2}:{gb+3}]
        v_cvt_pk_bf16_f32 v{t}, v{c}, v{c+1}
        v_cvt_pk_bf16_f32 v{t+1}, v{c+2}, v{c+3}
        v_lshlrev_b32 v{c}, 16, v{t}
        v_and_b32 v{c+1}, 0xffff0000, v{t}
        v_lshlrev_b32 v{c+2}, 16, v{t+1}
        v_and_b32 v{c+3}, 0xffff0000, v{t+1}
        v_lshlrev_b32 v{t+2}, 16, v{xr}
        v_and_b32 v{t+3}, 0xffff0000, v{xr}
        v_lshlrev_b32 v{t+4}, 16, v{xr+1}
        v_and_b32 v{t+5}, 0xffff0000, v{xr+1}
        v_pk_add_f32 v[{c}:{c+1}], v[{c}:{c+1}], v[{t+2}:{t+3}]
        v_pk_add_f32 v[{c+2}:{c+3}], v[{c+2}:{c+3}], v[{t+4}:{t+5}]
        v_cvt_pk_bf16_f32 v{t+6}, v{c}, v{c+1}
        v_cvt_pk_bf16_f32 v{t+7}, v{c+2}, v{c+3}
        buffer_store_dwordx2 v[{t+6}:{t+7}], v12, s[44:47], s{50+j} offen
        """)
    stamp(k, 6)
    stamp_flush(k, 7, 3, "k4")
    k.label("k4_done")
    tl_end(k, 4)
    k("s_endpgm")
    return k, 224, K4_LDS


KERNELS = []


def build(kernels, path):
    head = ["; adaLN + sliding dilated local attention + SwiGLU block, multi-kernel pipeline (generated)"]
    texts, descs = [], []
    for (gen, grid, block) in kernels:
        k, vgpr, lds = gen()
        head.append(f"; @launch kernel={k.name} grid=({grid},1,1) block=({block},1,1) lds={lds}")
        t, d = kernel_text(k, vgpr)
        texts.append(t)
        descs.append(d)
    out = "\n".join(head) + "\n.amdgcn_target \"amdgcn-amd-amdhsa--gfx950\"\n.text\n" + "\n".join(texts) + \
        "\n.section .rodata,\"a\"\n" + "".join(descs)
    open(path, "w").write(out)


if __name__ == "__main__":
    if len(sys.argv) > 2 and sys.argv[2] == "diag":
        DIAG = True
    for a_ in sys.argv[3:]:
        ABL.add(a_)
    build([(gen_k0, K0_GRID, 256), (gen_k1, 256, 512), (gen_k2, K2_GRID, 576), (gen_k3, 256, 512), (gen_k4, K4_GRID, 512)], sys.argv[1] if len(sys.argv) > 1 else "k.s")
```

```python
import sys
from asmlib import K, kernel_text

NAME = "adaLN_cond__sliding_local_dilated__glu_gated_swiglu__prompt"

MOD = 0x0000000
GSB = 0x0010000
CNT = 0x0020000
STAT = 0x0040000
XN = 0x0100000
WQ = 0x0400000
WOP = 0x0700000
OO = 0x0800000
X1 = 0x0B00000
YY = 0x0E00000
HH = 0x1100000
W2P = 0x2400000
WS_BYTES = 268435456

LOG2E = "0x3fb8aa3b"
PART = 0x2400000


def tile_of(ks, half):
    p, i = divmod(ks, 9)
    if i < 8:
        return (2 * p + (i >> 2)) * 9 + 2 * (i & 3) + half
    return (2 * p + half) * 9 + 8


def srd(k, d, lo, nbytes):
    k(f"""
    s_mov_b32 s{d}, s{lo}
    s_and_b32 s{d+1}, s{lo+1}, 0xffff
    s_mov_b32 s{d+2}, {nbytes}
    s_mov_b32 s{d+3}, 0x00020000
    """)


DIAG = False
ABL = set()
PRM = {}


def stamp(k, idx):
    if DIAG:
        k("s_memtime s[68:69]")
        k("s_waitcnt lgkmcnt(0)")
        k(f"s_mov_b32 s{70+idx}, s68")


def stamp_flush(k, n, wave_sgpr, tag, vb=200):
    if not DIAG:
        return
    k(f"""
    s_cmp_lg_u32 s2, 5
    s_cbranch_scc1 {tag}_nostamp
    s_load_dwordx2 s[66:67], s[0:1], 80
    s_lshl_b32 s68, s{wave_sgpr}, 5
    v_mov_b32 v{vb}, s68
    s_waitcnt lgkmcnt(0)
    """)
    for i in range(n):
        k(f"s_sub_u32 s69, s{70+i}, s70")
        k(f"v_mov_b32 v{vb+1}, s69")
        k(f"global_store_dword v{vb}, v{vb+1}, s[66:67] offset:{4*i}")
    k(f"{tag}_nostamp:")


TL = 0x3000000


def tl_start(k):
    if DIAG:
        k("s_memrealtime s[94:95]")
        k("s_mov_b32 s96, s2")


def tl_end(k, kid):
    if DIAG:
        k(f"""
        s_mov_b64 exec, 1
        s_waitcnt vmcnt(0) lgkmcnt(0)
        s_memrealtime s[98:99]
        s_load_dwordx2 s[66:67], s[0:1], 88
        s_lshl_b32 s97, s96, 3
        s_add_u32 s97, s97, {TL + kid*8192}
        v_mov_b32 v2, s97
        s_waitcnt lgkmcnt(0)
        v_mov_b32 v0, s94
        v_mov_b32 v1, s98
        global_atomic_umax v2, v1, s[66:67] offset:4
        global_store_dword v2, v0, s[66:67]
        """)


def code_pf(k, tag, target, wg_sgpr, vt, wave_sgpr=None, wave=0):
    if wave_sgpr is not None:
        k(f"s_cmp_lg_u32 s{wave_sgpr}, {wave}")
        k(f"s_cbranch_scc1 {tag}_nocpf")
    k("s_getpc_b64 s[86:87]")
    k.label(f"{tag}_cpc")
    k(f"""
    s_add_u32 s86, s86, {target}-{tag}_cpc
    s_addc_u32 s87, s87, 0
    s_lshr_b32 s88, s{wg_sgpr}, 3
    s_lshl_b32 s88, s88, 13
    v_and_b32 v{vt}, 63, v0
    v_lshlrev_b32 v{vt}, 7, v{vt}
    v_add_u32 v{vt}, s88, v{vt}
    v_min_u32 v{vt}, {target}_end-{target}-4, v{vt}
    global_load_dword v{vt}, v{vt}, s[86:87]
    """)
    if wave_sgpr is not None:
        k.label(f"{tag}_nocpf")


def bf16_round(k, dst, src, tmp=None):
    k(f"v_cvt_pk_bf16_f32 v{dst}, v{src}, v{src}")
    k(f"v_lshlrev_b32 v{dst}, 16, v{dst}")


K0_MOD, K0_XN, K0_WQ, K0_WO = 108, 64, 144, 54
K0_GRID = K0_MOD + K0_XN + K0_WQ + K0_WO


def pack_chunk(k, srd_src, rowstride, zero_hi_mask_sgpr=None):
    for r in range(8):
        k(f"s_mov_b32 s{24+r}, {r*rowstride}")
    for r in range(8):
        k(f"buffer_load_dwordx2 v[{16+2*r}:{17+2*r}], v10, s[{srd_src}:{srd_src+3}], s{24+r} offen")
    k("s_mov_b32 s32, 0x05040100")
    k("s_mov_b32 s33, 0x07060302")
    k("s_waitcnt vmcnt(0)")
    if zero_hi_mask_sgpr is not None:
        for r in range(8):
            k(f"v_cndmask_b32 v{17+2*r}, v{17+2*r}, 0, s[{zero_hi_mask_sgpr}:{zero_hi_mask_sgpr+1}]")
    for j in range(4):
        d = j >> 1
        sel = 32 + (j & 1)
        for q in range(4):
            lo = 16 + 2 * (2 * q) + d
            hi = 16 + 2 * (2 * q + 1) + d
            k(f"v_perm_b32 v{32+4*j+q}, v{hi}, v{lo}, s{sel}")
    for j in range(4):
        k(f"buffer_store_dwordx4 v[{32+4*j}:{35+4*j}], v11, s[12:15], 0 offen offset:{16*j}")


def gen_k0():
    k = K("prep_kernel")
    tl_start(k)
    k(f"""
    s_cmp_ge_u32 s2, {K0_GRID}
    s_cbranch_scc1 k0_done
    s_load_dwordx2 s[4:5], s[0:1], 0
    s_load_dwordx4 s[16:19], s[0:1], 8
    s_load_dwordx4 s[20:23], s[0:1], 56
    s_load_dwordx2 s[6:7], s[0:1], 88
    v_and_b32 v1, 63, v0
    v_lshrrev_b32 v2, 6, v0
    s_waitcnt lgkmcnt(0)
    """)
    srd(k, 12, 6, WS_BYTES)
    k(f"""
    v_readfirstlane_b32 s3, v2
    s_cmp_ge_u32 s2, {K0_MOD}
    s_cbranch_scc1 k0_not_mod
    """)
    k("""
    v_and_b32 v3, 3, v0
    v_lshrrev_b32 v4, 2, v0
    v_mul_u32_u24 v5, 6912, v4
    v_lshl_add_u32 v5, v3, 4, v5
    s_lshl_b32 s10, s2, 6
    v_add_u32 v5, s10, v5
    v_lshlrev_b32 v6, 1, v4
    """)
    for i in range(9):
        k(f"global_load_ushort v{60+i}, v6, s[20:21] offset:{128*i}")
    for i in range(9):
        k(f"global_load_dwordx4 v[{16+4*i}:{19+4*i}], v5, s[22:23]")
        if i < 8:
            k(f"v_add_u32 v5, {64*6912}, v5")
    for j in range(8):
        k(f"v_mov_b32 v{80+j}, 0")
    k("s_waitcnt vmcnt(9)")
    for i in range(9):
        c = 60 + i
        k(f"""
        v_lshlrev_b32 v{c}, 16, v{c}
        v_mul_f32 v70, 0xbfb8aa3b, v{c}
        v_exp_f32 v70, v70
        v_add_f32 v70, 1.0, v70
        v_rcp_f32 v70, v70
        v_mul_f32 v{c}, v{c}, v70
        """)
        bf16_round(k, c, c)
    for i in range(9):
        k(f"s_waitcnt vmcnt({8-i})")
        for q in range(4):
            w = 16 + 4 * i + q
            k(f"""
            v_lshlrev_b32 v71, 16, v{w}
            v_and_b32 v72, 0xffff0000, v{w}
            v_fmac_f32 v{80+2*q}, v{60+i}, v71
            v_fmac_f32 v{81+2*q}, v{60+i}, v72
            """)
    k("""
    v_lshlrev_b32 v7, 5, v0
    ds_write_b128 v7, v[80:83]
    ds_write_b128 v7, v[84:87] offset:16
    s_waitcnt lgkmcnt(0)
    s_barrier
    v_and_b32 v8, 31, v0
    v_lshrrev_b32 v9, 5, v0
    v_lshlrev_b32 v10, 10, v9
    v_lshl_add_u32 v10, v8, 2, v10
    """)
    for i in range(8):
        k(f"ds_read_b32 v{16+i}, v10 offset:{128*i}")
    k("s_waitcnt lgkmcnt(0)")
    k("""
    v_add_f32 v16, v16, v17
    v_add_f32 v18, v18, v19
    v_add_f32 v20, v20, v21
    v_add_f32 v22, v22, v23
    v_add_f32 v16, v16, v18
    v_add_f32 v20, v20, v22
    v_add_f32 v16, v16, v20
    v_lshlrev_b32 v11, 2, v0
    ds_write_b32 v11, v16 offset:8192
    s_waitcnt lgkmcnt(0)
    s_barrier
    v_cmp_gt_u32 vcc, 32, v0
    s_and_saveexec_b64 s[36:37], vcc
    s_cbranch_execz k0_done
    """)
    for i in range(8):
        k(f"ds_read_b32 v{16+i}, v11 offset:{8192+128*i}")
    k("s_waitcnt lgkmcnt(0)")
    k("""
    v_add_f32 v16, v16, v17
    v_add_f32 v18, v18, v19
    v_add_f32 v20, v20, v21
    v_add_f32 v22, v22, v23
    v_add_f32 v16, v16, v18
    v_add_f32 v20, v20, v22
    v_add_f32 v16, v16, v20
    """)
    bf16_round(k, 16, 16)
    k("""
    s_mov_b32 s11, 0
    s_cmp_ge_u32 s2, 18
    s_cselect_b32 s24, 1, 0
    s_cmp_lt_u32 s2, 36
    s_cselect_b32 s25, 1, 0
    s_and_b32 s24, s24, s25
    s_cmp_ge_u32 s2, 72
    s_cselect_b32 s25, 1, 0
    s_cmp_lt_u32 s2, 90
    s_cselect_b32 s26, 1, 0
    s_and_b32 s25, s25, s26
    s_or_b32 s24, s24, s25
    s_cmp_eq_u32 s24, 0
    s_cbranch_scc1 k0_mod_store
    v_add_f32 v16, 1.0, v16
    """)
    bf16_round(k, 16, 16)
    k.label("k0_mod_store")
    k(f"""
    s_lshl_b32 s10, s2, 8
    s_add_u32 s10, s10, {CNT}
    v_mov_b32 v17, 0
    buffer_store_dword v17, v11, s[12:15], s10 offen
    s_lshl_b32 s10, s2, 7
    v_add_u32 v11, s10, v11
    buffer_store_dword v16, v11, s[12:15], 0 offen offset:{MOD}
    s_cmp_lt_u32 s2, 54
    s_cbranch_scc1 k0_done
    s_cmp_ge_u32 s2, 90
    s_cbranch_scc1 k0_done
    """)
    k(f"""
    s_sub_u32 s24, s2, 54
    s_sub_u32 s25, s2, 72
    s_cmp_ge_u32 s2, 72
    s_cselect_b32 s24, s25, s24
    s_cselect_b32 s25, 0, 16
    s_lshl_b32 s26, s24, 1
    v_lshrrev_b32 v12, 4, v0
    v_add_u32 v12, s26, v12
    v_mul_u32_u24 v13, 57, v12
    v_lshrrev_b32 v13, 9, v13
    v_mul_u32_u24 v14, 9, v13
    v_sub_u32 v14, v12, v14
    v_lshrrev_b32 v15, 1, v13
    v_mul_u32_u24 v15, 9, v15
    v_and_b32 v17, 1, v13
    v_lshrrev_b32 v18, 1, v14
    v_lshl_add_u32 v18, v17, 2, v18
    v_and_b32 v19, 1, v14
    v_cmp_eq_u32 vcc, 8, v14
    v_cndmask_b32 v18, v18, 8, vcc
    v_cndmask_b32 v19, v19, v17, vcc
    v_add_u32 v15, v15, v18
    v_lshlrev_b32 v12, 7, v15
    v_bfe_u32 v13, v0, 2, 2
    v_lshl_add_u32 v12, v13, 5, v12
    v_lshl_add_u32 v12, v19, 3, v12
    v_and_b32 v13, 3, v0
    v_lshl_add_u32 v12, v13, 1, v12
    s_add_u32 s25, s25, {GSB}
    v_lshrrev_b32 v16, 16, v16
    buffer_store_short v16, v12, s[12:15], s25 offen
    s_branch k0_done
    """)
    k.label("k0_not_mod")
    k(f"""
    s_sub_u32 s2, s2, {K0_MOD}
    s_cmp_ge_u32 s2, {K0_XN}
    s_cbranch_scc1 k0_not_xn
    """)
    (lambda *a: None)(k, "k0", "qkv_attn_kernel", 2, 15, 3, 3)
    k("""
    s_lshl_b32 s10, s2, 2
    s_add_u32 s10, s10, s3
    s_lshl_b32 s10, s10, 3
    v_lshrrev_b32 v3, 3, v1
    v_add_u32 v3, s10, v3
    v_and_b32 v4, 7, v1
    v_mul_u32_u24 v5, 1152, v3
    v_lshl_add_u32 v5, v4, 4, v5
    """)
    for i in range(9):
        k(f"global_load_dwordx4 v[{16+4*i}:{19+4*i}], v5, s[4:5] offset:{128*i}")
    k(f"""
    v_lshrrev_b32 v6, 4, v3
    v_mul_u32_u24 v6, {18*1024}, v6
    v_and_b32 v7, 15, v3
    v_lshl_add_u32 v6, v7, 4, v6
    v_lshrrev_b32 v7, 2, v4
    v_lshl_add_u32 v6, v7, 10, v6
    v_and_b32 v7, 3, v4
    v_lshl_add_u32 v6, v7, 8, v6
    v_add_u32 v6, {XN}, v6
    v_mov_b32 v8, 0
    v_mov_b32 v9, 0
    """)
    for i in range(9):
        k(f"s_waitcnt vmcnt({8-i})")
        for q in range(4):
            w = 16 + 4 * i + q
            d = 64 + 8 * i + 2 * q
            k(f"v_lshlrev_b32 v{d}, 16, v{w}")
            k(f"v_and_b32 v{d+1}, 0xffff0000, v{w}")
        for q in range(4):
            d = 64 + 8 * i + 2 * q
            k(f"v_pk_add_f32 v[8:9], v[8:9], v[{d}:{d+1}]")

    def red8(r):
        k(f"v_add_f32_dpp v{r}, v{r}, v{r} quad_perm:[1,0,3,2] row_mask:0xf bank_mask:0xf")
        k(f"v_add_f32_dpp v{r}, v{r}, v{r} quad_perm:[2,3,0,1] row_mask:0xf bank_mask:0xf")
        k(f"v_add_f32_dpp v{r}, v{r}, v{r} row_half_mirror row_mask:0xf bank_mask:0xf")

    k("v_add_f32 v8, v8, v9")
    red8(8)
    k(f"v_mul_f32 v10, 0x3ae38e39, v8")
    k("v_mov_b32 v11, v10")
    k("v_mov_b32 v8, 0")
    k("v_mov_b32 v9, 0")
    for e in range(36):
        d = 64 + 2 * e
        k(f"v_pk_add_f32 v[12:13], v[{d}:{d+1}], v[10:11] neg_lo:[0,1] neg_hi:[0,1]")
        k(f"v_pk_fma_f32 v[8:9], v[12:13], v[12:13], v[8:9]")
    k("v_add_f32 v8, v8, v9")
    red8(8)
    k(f"v_mul_f32 v8, 0x3ae38e39, v8")
    bf16_round(k, 8, 8)
    k("v_add_f32 v8, 0x3727c5ac, v8")
    bf16_round(k, 8, 8)
    k("v_sqrt_f32 v8, v8")
    bf16_round(k, 8, 8)
    k("v_rcp_f32 v8, v8")
    bf16_round(k, 10, 10)
    k("v_mov_b32 v11, v10")
    k("v_mov_b32 v9, v8")
    for i in range(9):
        for q in range(4):
            d = 64 + 8 * i + 2 * q
            k(f"""
            v_pk_add_f32 v[12:13], v[{d}:{d+1}], v[10:11] neg_lo:[0,1] neg_hi:[0,1]
            v_cvt_pk_bf16_f32 v14, v12, v13
            v_lshlrev_b32 v12, 16, v14
            v_and_b32 v13, 0xffff0000, v14
            v_pk_mul_f32 v[12:13], v[12:13], v[8:9]
            v_cvt_pk_bf16_f32 v{16+4*i+q}, v12, v13
            """)
        k(f"buffer_store_dwordx4 v[{16+4*i}:{19+4*i}], v6, s[12:15], 0 offen offset:{(2*i*1024) % 4096}")
        if i % 2 == 1:
            k("v_add_u32 v6, 4096, v6")
    k("s_branch k0_done")
    k.label("k0_not_xn")
    k(f"""
    s_sub_u32 s2, s2, {K0_XN}
    s_cmp_ge_u32 s2, {K0_WQ}
    s_cbranch_scc1 k0_not_wq
    """)
    srd(k, 8, 16, 576 * 1728 * 2)
    k(f"""
    s_lshl_b32 s10, s2, 2
    s_add_u32 s34, s10, s3
    s_mov_b32 s10, {576*1728*2}
    s_and_b32 s35, s34, 7
    s_lshr_b32 s38, s34, 3
    v_cmp_gt_u32 vcc, 60, v1
    s_and_saveexec_b64 s[36:37], vcc
    v_mul_u32_u24 v3, 13, v1
    v_lshrrev_b32 v3, 8, v3
    v_mul_u32_u24 v4, 20, v3
    v_sub_u32 v4, v1, v4
    v_mul_u32_u24 v5, 13, v4
    v_lshrrev_b32 v5, 6, v5
    v_mul_u32_u24 v6, 5, v5
    v_sub_u32 v6, v4, v6
    v_cmp_eq_u32 s[40:41], 4, v6
    v_mul_u32_u24 v10, 1152, v3
    v_mul_u32_u24 v7, 36, v5
    v_add_u32 v10, v10, v7
    v_lshl_add_u32 v10, v6, 3, v10
    s_mul_i32 s39, s35, 144
    s_mul_i32 s42, s38, {8*3456}
    s_add_u32 s39, s39, s42
    v_add_u32 v10, s39, v10
    """)
    k(f"""
    v_lshrrev_b32 v7, 2, v1
    v_mul_u32_u24 v11, {18*1024}, v7
    v_and_b32 v7, 3, v1
    v_lshl_add_u32 v11, v7, 6, v11
    s_mul_i32 s39, s35, {16*18*1024}
    s_lshr_b32 s42, s38, 2
    s_lshl_b32 s42, s42, 10
    s_add_u32 s39, s39, s42
    s_and_b32 s42, s38, 3
    s_lshl_b32 s42, s42, 8
    s_add_u32 s39, s39, s42
    s_add_u32 s39, s39, {WQ}
    v_add_u32 v11, s39, v11
    """)
    pack_chunk(k, 8, 3456, zero_hi_mask_sgpr=40)
    k("s_branch k0_done")
    k.label("k0_not_wq")
    k(f"s_sub_u32 s2, s2, {K0_WQ}")
    srd(k, 8, 18, 576 * 576 * 2)
    k(f"""
    s_lshl_b32 s34, s2, 2
    s_add_u32 s34, s34, s3
    s_mul_hi_u32 s38, s34, 0x55555556
    s_mul_i32 s35, s38, 3
    s_sub_u32 s35, s34, s35
    v_cmp_gt_u32 vcc, 48, v1
    s_and_saveexec_b64 s[36:37], vcc
    s_mul_i32 s39, s35, 48
    v_add_u32 v3, s39, v1
    v_lshlrev_b32 v10, 3, v3
    s_mul_i32 s42, s38, {8*1152}
    v_add_u32 v10, s42, v10
    v_lshrrev_b32 v7, 2, v3
    v_mul_u32_u24 v11, {18*1024}, v7
    v_and_b32 v7, 3, v3
    v_lshl_add_u32 v11, v7, 6, v11
    s_lshr_b32 s42, s38, 2
    s_lshl_b32 s39, s42, 10
    s_and_b32 s42, s38, 3
    s_lshl_b32 s42, s42, 8
    s_add_u32 s39, s39, s42
    s_add_u32 s39, s39, {WOP}
    v_add_u32 v11, s39, v11
    """)
    pack_chunk(k, 8, 1152)
    k.label("k0_done")
    tl_end(k, 0)
    k("s_endpgm")
    return k, 136, 9216 + 256


K1_QB = 92160
K1_TS = 488
K1_ML = K1_QB + 80 * K1_TS
K1_LDS = K1_ML + 4608
K1_OL = 16384
K1_YL = K1_OL + 36864
K1_SL = K1_YL + 10240


def gen_k1():
    k = K("qkv_attn_kernel")
    tl_start(k)
    TS = K1_TS
    QB = K1_QB
    k(f"""
    s_cmp_ge_u32 s2, 256
    s_cbranch_scc1 k1_done
    s_load_dwordx4 s[84:87], s[0:1], 80
    s_load_dwordx4 s[16:19], s[0:1], 32
    s_load_dwordx2 s[8:9], s[0:1], 0
    v_and_b32 v1, 63, v0
    v_lshrrev_b32 v2, 6, v0
    v_lshlrev_b32 v3, 4, v1
    v_lshrrev_b32 v4, 4, v1
    v_readfirstlane_b32 s3, v2
    s_and_b32 s4, s2, 1
    s_lshl_b32 s4, s4, 2
    s_bfe_u32 s31, s2, 0x20003
    s_add_u32 s4, s4, s31
    s_bfe_u32 s5, s2, 0x20001
    s_lshl_b32 s5, s5, 3
    s_lshr_b32 s31, s2, 5
    s_add_u32 s5, s5, s31
    v_lshlrev_b32 v5, 5, v4
    s_waitcnt lgkmcnt(0)
    """)
    stamp(k, 0)
    srd(k, 12, 86, WS_BYTES)
    k(f"""
    s_mul_i32 s31, s3, 576
    s_add_u32 s32, s31, {K1_ML}
    s_mov_b32 m0, s32
    s_mov_b32 exec_hi, 0xf
    buffer_load_dwordx4 v3, s[12:15], s31 offen lds
    s_mov_b64 exec, -1
    """)
    k("""
    s_lshl_b32 s23, s5, 2
    s_sub_u32 s24, s23, 1
    s_max_i32 s24, s24, 0
    """)
    for i in range(5):
        if i == 0:
            k(f"s_mul_i32 s25, s24, {18*1024}")
            k(f"s_add_u32 s25, s25, {XN}")
        else:
            k(f"s_add_u32 s30, s23, {i-1}")
            k(f"s_mul_i32 s{25+i}, s30, {18*1024}")
            k(f"s_add_u32 s{25+i}, s{25+i}, {XN}")
    k("s_lshl_b32 s20, s3, 10")
    k("s_add_u32 s21, s20, 8192")
    for j in range(2):
        for i in range(5):
            x = 64 + 20 * j + 4 * i
            k(f"s_add_u32 s34, s{25+i}, s{20+j}")
            k(f"buffer_load_dwordx4 v[{x}:{x+3}], v3, s[12:15], s34 offen")
    k("""
    s_add_u32 s36, s3, 8
    s_cmp_lt_u32 s3, 2
    s_cselect_b32 s36, s36, s3
    s_mov_b32 s35, s3
    """)
    for e in range(2):
        k(f"""
        s_cmp_ge_u32 s{35+e}, 5
        s_cselect_b32 s{44+e}, 17, 16
        s_cselect_b32 s37, 5, 0
        s_sub_u32 s{46+e}, s{35+e}, s37
        s_add_u32 s37, s23, s{46+e}
        s_sub_u32 s37, s37, 1
        s_max_i32 s37, s37, 0
        s_mul_i32 s37, s37, 18
        s_add_u32 s37, s37, s{44+e}
        s_lshl_b32 s37, s37, 10
        s_add_u32 s37, s37, {XN}
        buffer_load_dwordx4 v[{104+4*e}:{107+4*e}], v3, s[12:15], s37 offen
        """)
    k("s_waitcnt vmcnt(12)")
    k("s_barrier")
    k(f"""
    s_lshl_b32 s40, s4, 4
    s_lshl_b32 s41, s3, 1
    s_add_u32 s42, s41, 1
    s_min_u32 s42, s42, 14
    s_add_u32 s41, s41, s40
    s_add_u32 s42, s42, s40
    s_mul_i32 s41, s41, {18*1024}
    s_mul_i32 s42, s42, {18*1024}
    s_add_u32 s41, s41, {WQ}
    s_add_u32 s42, s42, {WQ}
    """)

    NAS = 10

    def areg(kk, tt):
        return 124 + 8 * (kk % NAS) + 4 * tt

    def load_a(kk):
        if kk % 4 == 0 and kk > 0:
            k("s_add_u32 s41, s41, 4096")
            k("s_add_u32 s42, s42, 4096")
        for tt in range(2):
            a = areg(kk, tt)
            k(f"buffer_load_dwordx4 v[{a}:{a+3}], v3, s[12:15], s{41+tt} offen offset:{(kk%4)*1024}")

    k(f"s_lshl_b32 s31, s3, 7")
    k(f"v_add_u32 v6, s31, v5")
    k(f"s_lshl_b32 s31, s44, 7")
    k(f"v_add_u32 v7, s31, v5")
    k(f"s_lshl_b32 s31, s45, 7")
    k(f"v_add_u32 v11, s31, v5")
    k(f"v_add_u32 v6, {K1_ML}, v6")
    k(f"v_add_u32 v7, {K1_ML}, v7")
    k(f"v_add_u32 v11, {K1_ML}, v11")
    for j, (va, off) in enumerate(((6, 0), (6, 1024), (7, 0), (11, 0))):
        b = 16 + 16 * j if j < 3 else 208
        k(f"ds_read_b128 v[{b}:{b+3}], v{va} offset:{off + 2304}")
        k(f"ds_read_b128 v[{b+4}:{b+7}], v{va} offset:{off + 2304 + 16}")
        k(f"ds_read_b128 v[{b+8}:{b+11}], v{va} offset:{off}")
        k(f"ds_read_b128 v[{b+12}:{b+15}], v{va} offset:{off + 16}")

    def xform(x, b):
        T = 224
        for q in range(4):
            k(f"v_lshlrev_b32 v{T+2*q}, 16, v{x+q}")
            k(f"v_and_b32 v{T+2*q+1}, 0xffff0000, v{x+q}")
        for q in range(4):
            k(f"v_pk_mul_f32 v[{T+2*q}:{T+2*q+1}], v[{T+2*q}:{T+2*q+1}], v[{b+2*q}:{b+2*q+1}]")
        for q in range(4):
            k(f"v_cvt_pk_bf16_f32 v{T+8+q}, v{T+2*q}, v{T+2*q+1}")
        for q in range(4):
            k(f"v_lshlrev_b32 v{T+2*q}, 16, v{T+8+q}")
            k(f"v_and_b32 v{T+2*q+1}, 0xffff0000, v{T+8+q}")
        for q in range(4):
            k(f"v_pk_add_f32 v[{T+2*q}:{T+2*q+1}], v[{T+2*q}:{T+2*q+1}], v[{b+8+2*q}:{b+8+2*q+1}]")
        for q in range(4):
            k(f"v_cvt_pk_bf16_f32 v{x+q}, v{T+2*q}, v{T+2*q+1}")

    k("s_waitcnt lgkmcnt(0)")
    nw = 0
    for f in range(12):
        if f < 10:
            j, i = divmod(f, 5)
            x = 64 + 20 * j + 4 * i
            b = 16 + 16 * j
            if i == 0:
                k(f"v_add_u32 v6, s{20+j}, v3")
                k(f"v_add_u32 v7, 18432, v6")
        else:
            e = f - 10
            x = 104 + 4 * e
            b = 48 if e == 0 else 208
            k(f"""
            s_mul_i32 s37, s{46+e}, 18
            s_add_u32 s37, s37, s{44+e}
            s_lshl_b32 s37, s37, 10
            v_add_u32 v6, s37, v3
            """)
        k(f"s_waitcnt vmcnt({(11 - f) + 2 * nw})")
        xform(x, b)
        if f < 10:
            if i < 4:
                k(f"ds_write_b128 v6, v[{x}:{x+3}] offset:{i*18432}")
            else:
                k(f"ds_write_b128 v7, v[{x}:{x+3}] offset:{3*18432}")
        else:
            k(f"ds_write_b128 v6, v[{x}:{x+3}]")
        if nw < NAS - 1 and f >= 2:
            load_a(nw)
            nw += 1
    k("s_waitcnt lgkmcnt(0)")
    stamp(k, 1)
    k("s_barrier")
    stamp(k, 2)
    k("v_add_u32 v6, 55296, v3")

    def breg(kk, i):
        return 56 + 20 * (kk & 1) + 4 * i

    def read_b(kk):
        for i in range(5):
            b = breg(kk, i)
            if i < 3:
                k(f"ds_read_b128 v[{b}:{b+3}], v3 offset:{i*18432 + kk*1024}")
            else:
                k(f"ds_read_b128 v[{b}:{b+3}], v6 offset:{(i-3)*18432 + kk*1024}")

    def acc(tt, i):
        return 16 + 20 * tt + 4 * i

    read_b(0)
    for kk in range(18):
        if kk < 17:
            read_b(kk + 1)
        if nw < 18:
            load_a(nw)
            nw += 1
        k(f"s_waitcnt vmcnt({2 * (nw - 1 - kk)})")
        k(f"s_waitcnt lgkmcnt({5 if kk < 17 else 0})")
        for i in range(5):
            for tt in range(2):
                a = areg(kk, tt); b = breg(kk, i); c = acc(tt, i)
                cs = "0" if kk == 0 else f"v[{c}:{c+3}]"
                k(f"v_mfma_f32_16x16x32_bf16 v[{c}:{c+3}], v[{a}:{a+3}], v[{b}:{b+3}], {cs}")
    stamp(k, 3)
    k(f"""
    v_and_b32 v6, 15, v1
    v_mul_u32_u24 v6, {TS}, v6
    v_lshl_add_u32 v6, v4, 3, v6
    s_lshl_b32 s31, s3, 6
    s_add_u32 s31, s31, {QB}
    v_add_u32 v6, s31, v6
    """)
    for tt in range(2):
        if tt == 1:
            k("s_cmp_eq_u32 s3, 7")
            k("s_cbranch_scc1 k1_skip_t1")
        for i in range(5):
            c = acc(tt, i)
            k(f"v_cvt_pk_bf16_f32 v{60+2*i}, v{c}, v{c+1}")
            k(f"v_cvt_pk_bf16_f32 v{61+2*i}, v{c+2}, v{c+3}")
            k(f"ds_write_b64 v6, v[{60+2*i}:{61+2*i}] offset:{i*16*TS + tt*32}")
    k.label("k1_skip_t1")
    k("s_waitcnt lgkmcnt(0)")
    k("s_barrier")
    stamp(k, 4)
    (lambda *a: None)(k, "k1", "wo_kernel", 2, 250, 3, 7)

    k(f"""
    s_and_b32 s50, s4, 1
    s_lshr_b32 s51, s4, 1
    s_lshl_b32 s52, s5, 2
    s_lshl_b32 s53, s50, 1
    s_add_u32 s52, s52, s53
    s_mul_i32 s53, s51, 9
    s_add_u32 s54, s53, s3
    s_mul_i32 s55, s54, {18*1024}
    s_add_u32 s55, s55, {WOP}
    v_add_u32 v216, 4096, v3
    v_add_u32 v217, 8192, v3
    v_add_u32 v218, 12288, v3
    v_add_u32 v219, 16384, v3
    v_and_b32 v220, 15, v1
    s_lshl_b32 s31, s52, 4
    v_add_u32 v220, s31, v220
    v_mul_u32_u24 v221, 1152, v220
    v_lshl_add_u32 v221, v4, 3, v221
    s_lshl_b32 s31, s54, 5
    v_add_u32 v222, s31, v221
    v_add_u32 v223, {16*1152}, v222
    v_lshlrev_b32 v224, 4, v4
    s_lshl_b32 s31, s54, 6
    v_add_u32 v225, s31, v224
    s_mov_b32 s56, {MOD + 2*576*4}
    s_mov_b32 s57, {MOD + 4*576*4}
    """)
    side = []
    for kk in range(18):
        vo = 3 if kk < 4 else 215 + kk // 4
        side.append(f"buffer_load_dwordx4 v[{128+4*kk}:{131+4*kk}], v{vo}, s[12:15], s55 offen offset:{(kk%4)*1024}")
    side.append("global_load_dwordx2 v[200:201], v222, s[8:9]")
    side.append("global_load_dwordx2 v[202:203], v223, s[8:9]")
    side.append("buffer_load_dwordx4 v[204:207], v225, s[12:15], s56 offen")
    side.append("buffer_load_dwordx4 v[208:211], v225, s[12:15], s57 offen")
    kreal = k
    cnt = [0]

    class KS:
        def __call__(self, txt):
            for ln in txt.strip("\n").split("\n"):
                ln = ln.strip()
                if not ln:
                    continue
                kreal(ln)
                if ln.startswith("v_") and side:
                    cnt[0] += 1
                    if cnt[0] % 10 == 0:
                        kreal(side.pop(0))

        def label(self, l):
            kreal.label(l)

    k = KS()
    k(f"""
    v_and_b32 v6, 1, v1
    v_bfe_u32 v7, v1, 1, 2
    v_lshrrev_b32 v8, 3, v1
    s_lshl_b32 s31, s3, 3
    v_add_u32 v8, s31, v8
    v_mul_u32_u24 v9, {TS}, v8
    v_mul_u32_u24 v10, 40, v7
    v_add_u32 v9, v9, v10
    v_add_u32 v9, {QB + 16*TS}, v9
    v_mul_u32_u24 v10, {8*TS}, v6
    v_sub_u32 v11, v9, v10
    v_add_u32 v12, {160 - 6*TS}, v11
    v_lshl_add_u32 v13, v6, 4, v11
    v_add_u32 v13, {320 - 6*TS}, v13
    v_add_u32 v14, v9, v10
    v_lshl_add_u32 v14, v6, 4, v14
    v_add_u32 v14, {320 - 14*TS}, v14
    """)
    for j in range(5):
        k(f"ds_read_b64 v[{16+2*j}:{17+2*j}], v9 offset:{8*j}")
    for u in range(4):
        for j in range(5):
            r = 32 + 10 * u + 2 * j
            k(f"ds_read_b64 v[{r}:{r+1}], v12 offset:{(3-u)*2*TS + 8*j}")
    for u in range(4):
        for j in range(3):
            r = 80 + 6 * u + 2 * j
            k(f"ds_read_b64 v[{r}:{r+1}], v13 offset:{(3-u)*2*TS + 8*j}")
    for u in range(4):
        for j in range(3):
            r = 104 + 6 * u + 2 * j
            k(f"ds_read_b64 v[{r}:{r+1}], v14 offset:{(3-u)*2*TS + 8*j}")
    k(f"""
    s_lshl_b32 s31, s5, 6
    v_add_u32 v15, s31, v8
    v_lshlrev_b32 v26, 3, v6
    v_sub_u32 v15, v15, v26
    v_mov_b32 v27, 0xce6e6b28
    s_waitcnt lgkmcnt(15)
    """)
    k("s_waitcnt lgkmcnt(0)")
    stamp(k, 5)
    for j in range(9):
        for u in range(4):
            src = "0" if j == 0 else f"v{28+u}"
            k(f"v_dot2_f32_bf16 v{28+u}, v{16+j}, v{32+10*u+j}, {src}")
    for u in range(4):
        bf16_round(k, 28 + u, 28 + u)
        k(f"v_mul_f32 v{28+u}, 0x3e715bef, v{28+u}")
        bf16_round(k, 28 + u, 28 + u)
        k(f"v_cmp_gt_i32 vcc, {2*u}, v15")
        k(f"v_cndmask_b32 v{28+u}, v{28+u}, v27, vcc")
    for u in range(4):
        k(f"v_mov_b32_dpp v{32+u}, v{28+u} quad_perm:[1,0,3,2] row_mask:0xf bank_mask:0xf")
    k("""
    v_max3_f32 v36, v28, v29, v30
    v_max3_f32 v36, v36, v31, v32
    v_max3_f32 v36, v36, v33, v34
    v_max_f32 v36, v36, v35
    """)
    for u in range(8):
        k(f"v_sub_f32 v{28+u}, v{28+u}, v36")
        k(f"v_mul_f32 v{28+u}, {LOG2E}, v{28+u}")
        k(f"v_exp_f32 v{28+u}, v{28+u}")
    k("""
    v_add_f32 v36, v28, v29
    v_add_f32 v37, v30, v31
    v_add_f32 v38, v32, v33
    v_add_f32 v39, v34, v35
    v_add_f32 v36, v36, v37
    v_add_f32 v38, v38, v39
    v_add_f32 v36, v36, v38
    v_rcp_f32 v36, v36
    """)
    for u in range(8):
        k(f"v_mul_f32 v{28+u}, v{28+u}, v36")
        k(f"v_cvt_pk_bf16_f32 v{40+u}, v{28+u}, 0")
        k(f"v_lshlrev_b32 v{48+u}, 16, v{40+u}")
    for u in range(8):
        vb = (80 + 6 * u) if u < 4 else (104 + 6 * (u - 4))
        for j in range(5):
            s0 = "0" if u == 0 else f"v{60+2*j}"
            s1 = "0" if u == 0 else f"v{61+2*j}"
            k(f"v_dot2_f32_bf16 v{60+2*j}, v{vb+j}, v{40+u}, {s0}")
            k(f"v_dot2_f32_bf16 v{61+2*j}, v{vb+j}, v{48+u}, {s1}")
    k(f"""
    v_mul_u32_u24 v9, 160, v8
    v_mul_u32_u24 v10, 36, v7
    v_add_u32 v9, v9, v10
    v_lshl_add_u32 v9, v6, 4, v9
    """)
    for j in range(5):
        k(f"v_cvt_pk_bf16_f32 v{70+j}, v{60+2*j}, v{61+2*j}")
        k(f"ds_write_b32 v9, v{70+j} offset:{4*j}")
    k("s_waitcnt lgkmcnt(0)")
    k = kreal
    for ln in side:
        k(ln)
    stamp(k, 6)
    k("s_barrier")
    k(f"""
    v_mul_u32_u24 v6, 160, v1
    s_lshl_b32 s31, s3, 4
    v_add_u32 v6, s31, v6
    ds_read_b128 v[16:19], v6
    ds_read_b128 v[20:23], v6 offset:128
    v_mul_u32_u24 v7, {18*1024}, v4
    v_and_b32 v8, 15, v1
    v_lshl_add_u32 v7, v8, 4, v7
    s_mul_i32 s31, s5, {4*18*1024}
    s_mul_i32 s32, s4, 9
    s_add_u32 s32, s32, s3
    s_lshl_b32 s32, s32, 8
    s_add_u32 s31, s31, s32
    s_add_u32 s31, s31, {OO}
    s_waitcnt lgkmcnt(0)
    buffer_store_dwordx4 v[16:19], v7, s[12:15], s31 offen sc1
    s_cmp_lg_u32 s3, 0
    s_cbranch_scc1 k1_st1
    buffer_store_dwordx4 v[20:23], v7, s[12:15], s31 offen offset:2048 sc1
    """)
    k.label("k1_st1")
    k(f"""
    s_waitcnt vmcnt(0)
    s_barrier
    s_lshl_b32 s33, s5, 8
    s_add_u32 s33, s33, {CNT}
    v_mov_b32 v9, s33
    s_cmp_lg_u32 s3, 7
    s_cbranch_scc1 k1_nosig
    v_mov_b32 v8, 1
    s_mov_b64 exec, 1
    global_atomic_add v9, v8, s[86:87]
    s_mov_b64 exec, -1
    """)
    k.label("k1_nosig")
    k(f"""
    s_cmp_ge_u32 s3, 2
    s_cbranch_scc1 k1_noextra
    s_add_u32 s58, s53, 8
    s_mul_i32 s59, s58, {18*1024}
    s_add_u32 s59, s59, {WOP}
    """)
    for kk in range(18):
        vo = 3 if kk < 4 else 215 + kk // 4
        k(f"buffer_load_dwordx4 v[{16+4*kk}:{19+4*kk}], v{vo}, s[12:15], s59 offen offset:{(kk%4)*1024}")
    k(f"""
    s_lshl_b32 s31, s58, 5
    s_mul_i32 s32, s3, {16*1152}
    s_add_u32 s31, s31, s32
    v_add_u32 v10, s31, v221
    global_load_dwordx2 v[88:89], v10, s[8:9]
    s_lshl_b32 s31, s58, 6
    v_add_u32 v10, s31, v224
    buffer_load_dwordx4 v[92:95], v10, s[12:15], s56 offen
    buffer_load_dwordx4 v[96:99], v10, s[12:15], s57 offen
    """)
    k.label("k1_noextra")
    k("s_mov_b32 s37, 0")
    k("s_cmp_lg_u32 s3, 7")
    k("s_cbranch_scc1 k1_ready")
    k("s_mov_b64 exec, 1")
    k.label("k1_poll")
    k("""
    global_load_dword v8, v9, s[86:87] sc1
    s_waitcnt vmcnt(0)
    v_readfirstlane_b32 s38, v8
    s_add_u32 s37, s37, 1
    s_cmp_ge_u32 s38, 8
    s_cbranch_scc1 k1_ready
    s_cmp_lt_u32 s37, 0x400000
    s_cbranch_scc0 k1_ready
    s_sleep 2
    s_branch k1_poll
    """)
    k.label("k1_ready")
    k("s_mov_b64 exec, -1")
    k("s_barrier")
    stamp(k, 7)
    k(f"""
    s_mul_i32 s31, s52, {18*1024}
    s_add_u32 s31, s31, {OO}
    s_lshl_b32 s32, s3, 10
    s_add_u32 s31, s31, s32
    s_add_u32 s34, s32, 32768
    s_add_u32 s35, s32, 24576
    s_cmp_lt_u32 s3, 4
    s_cselect_b32 s34, s34, s35
    s_sub_u32 s35, s34, s32
    s_add_u32 s35, s35, s31
    v_add_u32 v10, 24576, v3
    buffer_load_dwordx4 v[100:103], v3, s[12:15], s31 offen sc1
    buffer_load_dwordx4 v[104:107], v217, s[12:15], s31 offen sc1
    buffer_load_dwordx4 v[108:111], v219, s[12:15], s31 offen sc1
    buffer_load_dwordx4 v[112:115], v10, s[12:15], s31 offen sc1
    buffer_load_dwordx4 v[116:119], v3, s[12:15], s35 offen sc1
    v_add_u32 v11, s32, v3
    v_add_u32 v11, {K1_OL}, v11
    v_add_u32 v12, s34, v3
    v_add_u32 v12, {K1_OL}, v12
    s_waitcnt vmcnt(4)
    ds_write_b128 v11, v[100:103]
    s_waitcnt vmcnt(3)
    ds_write_b128 v11, v[104:107] offset:8192
    s_waitcnt vmcnt(2)
    ds_write_b128 v11, v[108:111] offset:16384
    s_waitcnt vmcnt(1)
    ds_write_b128 v11, v[112:115] offset:24576
    s_waitcnt vmcnt(0)
    ds_write_b128 v12, v[116:119]
    v_add_u32 v13, {K1_OL}, v3
    s_mul_i32 s31, s3, {18*1024}
    v_add_u32 v14, s31, v13
    s_waitcnt lgkmcnt(0)
    s_barrier
    """)

    stamp(k, 4)
    BB = [100, 108, 116, 212]

    def b2(kk, tt):
        return BB[kk % 4] + 4 * tt

    def read_b2(kk):
        for tt in range(2):
            b = b2(kk, tt)
            k(f"ds_read_b128 v[{b}:{b+3}], v13 offset:{(tt*18 + kk)*1024}")

    A2 = [232, 236]

    def gemm2(extra):
        for kk in range(3):
            read_b2(kk)
        for kk in range(18):
            if kk + 3 < 18:
                read_b2(kk + 3)
            k(f"s_waitcnt lgkmcnt({2 * min(3, 17 - kk)})")
            for tt in range(2):
                c = A2[tt]; b = b2(kk, tt)
                cs = "0" if kk == 0 else f"v[{c}:{c+3}]"
                k(f"v_mfma_f32_16x16x32_bf16 v[{c}:{c+3}], v[{128+4*kk}:{131+4*kk}], v[{b}:{b+3}], {cs}")
            if extra is not None:
                b = b2(kk, extra)
                cs = "0" if kk == 0 else "v[240:243]"
                k(f"v_mfma_f32_16x16x32_bf16 v[240:243], v[{16+4*kk}:{19+4*kk}], v[{b}:{b+3}], {cs}")

    k("s_cmp_eq_u32 s3, 0")
    k("s_cbranch_scc1 k1_g2a")
    k("s_cmp_eq_u32 s3, 1")
    k("s_cbranch_scc1 k1_g2b")
    gemm2(None)
    k("s_branch k1_g2e")
    k.label("k1_g2a")
    gemm2(0)
    k("s_branch k1_g2e")
    k.label("k1_g2b")
    gemm2(1)
    k.label("k1_g2e")
    k("s_nop 7")
    stamp(k, 5)

    def unit_epi(c, xr, ga, g2, sm, x1o, yo, first):
        k(f"""
        v_cvt_pk_bf16_f32 v110, v{c}, v{c+1}
        v_cvt_pk_bf16_f32 v111, v{c+2}, v{c+3}
        v_lshlrev_b32 v112, 16, v110
        v_and_b32 v113, 0xffff0000, v110
        v_lshlrev_b32 v114, 16, v111
        v_and_b32 v115, 0xffff0000, v111
        v_pk_mul_f32 v[112:113], v[112:113], v[{ga}:{ga+1}]
        v_pk_mul_f32 v[114:115], v[114:115], v[{ga+2}:{ga+3}]
        v_cvt_pk_bf16_f32 v110, v112, v113
        v_cvt_pk_bf16_f32 v111, v114, v115
        v_lshlrev_b32 v112, 16, v110
        v_and_b32 v113, 0xffff0000, v110
        v_lshlrev_b32 v114, 16, v111
        v_and_b32 v115, 0xffff0000, v111
        v_lshlrev_b32 v116, 16, v{xr}
        v_and_b32 v117, 0xffff0000, v{xr}
        v_lshlrev_b32 v118, 16, v{xr+1}
        v_and_b32 v119, 0xffff0000, v{xr+1}
        v_pk_add_f32 v[112:113], v[112:113], v[116:117]
        v_pk_add_f32 v[114:115], v[114:115], v[118:119]
        v_cvt_pk_bf16_f32 v{x1o}, v112, v113
        v_cvt_pk_bf16_f32 v{x1o+1}, v114, v115
        v_lshlrev_b32 v112, 16, v{x1o}
        v_and_b32 v113, 0xffff0000, v{x1o}
        v_lshlrev_b32 v114, 16, v{x1o+1}
        v_and_b32 v115, 0xffff0000, v{x1o+1}
        """)
        if first:
            k(f"v_add_f32 v{sm}, v112, v113")
            k(f"v_mul_f32 v{sm+1}, v112, v112")
        else:
            k(f"v_add_f32 v{sm}, v{sm}, v112")
            k(f"v_fmac_f32 v{sm+1}, v112, v112")
            k(f"v_add_f32 v{sm}, v{sm}, v113")
        k(f"""
        v_fmac_f32 v{sm+1}, v113, v113
        v_add_f32 v{sm}, v{sm}, v114
        v_fmac_f32 v{sm+1}, v114, v114
        v_add_f32 v{sm}, v{sm}, v115
        v_fmac_f32 v{sm+1}, v115, v115
        v_pk_mul_f32 v[112:113], v[112:113], v[{g2}:{g2+1}]
        v_pk_mul_f32 v[114:115], v[114:115], v[{g2+2}:{g2+3}]
        v_cvt_pk_bf16_f32 v{yo}, v112, v113
        v_cvt_pk_bf16_f32 v{yo+1}, v114, v115
        """)

    k(f"""
    s_lshr_b32 s33, s3, 1
    s_lshl_b32 s33, s33, 10
    s_and_b32 s32, s3, 1
    s_lshl_b32 s32, s32, 3
    s_add_u32 s33, s33, s32
    s_add_u32 s33, s33, {K1_YL}
    v_add_u32 v6, s33, v3
    s_mul_i32 s36, s52, {144*128}
    s_lshl_b32 s37, s54, 9
    s_add_u32 s36, s36, s37
    s_add_u32 s36, s36, {X1}
    s_add_u32 s37, s36, {144*128}
    v_lshlrev_b32 v7, 3, v1
    """)
    for tt in range(2):
        unit_epi(A2[tt], 200 + 2 * tt, 204, 208, 120 + 2 * tt, 244 + 2 * tt, 248 + 2 * tt, True)
        k(f"ds_write_b64 v6, v[{248+2*tt}:{249+2*tt}] offset:{5120*tt}")
        k(f"buffer_store_dwordx2 v[{244+2*tt}:{245+2*tt}], v7, s[12:15], s{36+tt} offen")
    for w in range(2):
        k(f"s_cmp_lg_u32 s3, {w}")
        k(f"s_cbranch_scc1 k1_noex3_{w}")
        unit_epi(240, 88, 92, 96, 120 + 2 * w, 252, 254, False)
        k(f"""
        v_add_u32 v8, {K1_YL + 5120*w + 4096}, v3
        ds_write_b64 v8, v[254:255]
        s_add_u32 s38, s52, {w}
        s_mul_i32 s38, s38, {144*128}
        s_add_u32 s39, s53, 8
        s_lshl_b32 s39, s39, 9
        s_add_u32 s38, s38, s39
        s_add_u32 s38, s38, {X1}
        buffer_store_dwordx2 v[252:253], v7, s[12:15], s38 offen
        """)
        k.label(f"k1_noex3_{w}")
    for r in range(120, 124):
        k(f"v_mov_b32 v{r+4}, v{r}")
    for r in range(120, 124):
        k(f"v_permlane16_swap_b32 v{r}, v{r+4}")
    for r in range(120, 124):
        k(f"v_add_f32 v{r}, v{r}, v{r+4}")
    for r in range(120, 124):
        k(f"v_mov_b32 v{r+4}, v{r}")
    for r in range(120, 124):
        k(f"v_permlane32_swap_b32 v{r}, v{r+4}")
    for r in range(120, 124):
        k(f"v_add_f32 v{r}, v{r}, v{r+4}")
    k(f"""
    v_cmp_gt_u32 vcc, 16, v1
    v_cndmask_b32 v120, v122, v120, vcc
    v_cndmask_b32 v121, v123, v121, vcc
    s_lshl_b32 s31, s3, 8
    s_add_u32 s31, s31, {K1_SL}
    v_lshlrev_b32 v5, 3, v1
    v_add_u32 v5, s31, v5
    s_mov_b32 exec_hi, 0
    ds_write_b64 v5, v[120:121]
    s_mov_b64 exec, -1
    s_waitcnt lgkmcnt(0)
    s_barrier
    """)
    if DIAG:
        k("s_mov_b32 s71, s76")
        k("s_mov_b32 s72, s77")
    stamp(k, 3)
    stamp_flush(k, 7, 3, "k1", 60)
    k(f"""
    s_lshr_b32 s32, s3, 2
    s_and_b32 s31, s3, 3
    s_mul_i32 s33, s32, 5120
    s_lshl_b32 s34, s31, 10
    s_add_u32 s33, s33, s34
    s_add_u32 s33, s33, {K1_YL}
    v_add_u32 v6, s33, v3
    ds_read_b128 v[24:27], v6
    s_lshr_b32 s35, s51, 1
    s_mul_i32 s35, s35, 9
    s_and_b32 s36, s51, 1
    s_lshl_b32 s37, s36, 2
    s_add_u32 s37, s37, s35
    s_add_u32 s37, s37, s31
    s_add_u32 s38, s52, s32
    s_mul_i32 s38, s38, 18
    s_add_u32 s37, s37, s38
    s_lshl_b32 s37, s37, 10
    s_add_u32 s37, s37, {YY}
    s_waitcnt lgkmcnt(0)
    buffer_store_dwordx4 v[24:27], v3, s[12:15], s37 offen
    s_cmp_eq_u32 s3, 1
    s_cbranch_scc1 k1_stats
    s_cmp_lg_u32 s31, 0
    s_cbranch_scc1 k1_pfw
    ds_read_b64 v[28:29], v6 offset:4096
    s_add_u32 s37, s35, 8
    s_add_u32 s37, s37, s38
    s_lshl_b32 s37, s37, 10
    s_lshl_b32 s36, s36, 3
    s_add_u32 s37, s37, s36
    s_add_u32 s37, s37, {YY}
    s_waitcnt lgkmcnt(0)
    buffer_store_dwordx2 v[28:29], v3, s[12:15], s37 offen
    s_branch k1_done
    """)
    k.label("k1_stats")
    k("v_lshlrev_b32 v5, 2, v1")
    for w in range(8):
        k(f"ds_read_b32 v{32+w}, v5 offset:{K1_SL + 256*w}")
    k("s_waitcnt lgkmcnt(0)")
    k(f"""
    v_add_f32 v32, v32, v33
    v_add_f32 v34, v34, v35
    v_add_f32 v36, v36, v37
    v_add_f32 v38, v38, v39
    v_add_f32 v32, v32, v34
    v_add_f32 v36, v36, v38
    v_add_f32 v32, v32, v36
    s_lshl_b32 s31, s51, 14
    s_lshl_b32 s32, s52, 7
    s_add_u32 s31, s31, s32
    s_add_u32 s31, s31, {STAT}
    buffer_store_dword v32, v5, s[12:15], s31 offen
    s_branch k1_done
    """)
    k.label("k1_pfw")
    k(f"""
    s_cmp_ge_u32 s3, 4
    s_cbranch_scc1 k1_done
    v_subrev_u32 v24, 128, v0
    v_min_u32 v24, 71, v24
    v_cmp_le_u32 vcc, 36, v24
    v_subrev_u32 v25, 36, v24
    v_cndmask_b32 v24, v24, v25, vcc
    v_mul_u32_u24 v25, 57, v24
    v_lshrrev_b32 v25, 9, v25
    v_mul_u32_u24 v26, 9, v25
    v_sub_u32 v26, v24, v26
    v_mul_u32_u24 v25, 9216, v25
    v_lshl_add_u32 v25, v26, 7, v25
    s_lshr_b32 s31, s2, 3
    s_mul_i32 s31, s31, {4*9216}
    s_and_b32 s32, s2, 7
    s_mul_i32 s32, s32, 1152
    s_add_u32 s31, s31, s32
    v_add_u32 v25, s31, v25
    v_mov_b32 v26, s16
    v_mov_b32 v27, s17
    v_mov_b32 v28, s18
    v_mov_b32 v29, s19
    v_cndmask_b32 v26, v26, v28, vcc
    v_cndmask_b32 v27, v27, v29, vcc
    v_add_co_u32 v26, vcc, v26, v25
    v_addc_co_u32 v27, vcc, 0, v27, vcc
    global_load_dword v30, v[26:27], off
    """)
    k.label("k1_done")
    tl_end(k, 1)
    k("s_endpgm")
    return k, 256, K1_LDS


K2_GRID = 256
K2_YL = 36864 + 2304
K2_LDS = K2_YL + 10240


def gen_k2():
    k = K("wo_kernel")
    tl_start(k)
    k(f"""
    s_cmp_ge_u32 s2, {K2_GRID}
    s_cbranch_scc1 k2_done
    s_load_dwordx2 s[4:5], s[0:1], 0
    s_load_dwordx4 s[16:19], s[0:1], 32
    s_load_dwordx2 s[6:7], s[0:1], 88
    v_and_b32 v1, 63, v0
    v_lshrrev_b32 v2, 6, v0
    v_lshlrev_b32 v3, 4, v1
    v_lshrrev_b32 v4, 4, v1
    v_readfirstlane_b32 s3, v2
    s_waitcnt lgkmcnt(0)
    """)
    srd(k, 12, 6, WS_BYTES)
    k(f"""
    s_and_b32 s20, s2, 7
    s_lshl_b32 s20, s20, 3
    s_bfe_u32 s21, s2, 0x30003
    s_add_u32 s20, s20, s21
    s_lshr_b32 s21, s2, 6
    s_lshl_b32 s24, s20, 1
    s_mul_i32 s25, s21, 9
    s_add_u32 s25, s25, s3
    s_mul_i32 s27, s24, {18*1024}
    s_add_u32 s27, s27, {OO}
    s_lshl_b32 s26, s3, 12
    s_add_u32 s27, s27, s26
    s_mul_i32 s28, s25, {18*1024}
    s_add_u32 s28, s28, {WOP}
    """)
    stamp(k, 0)
    k("s_mov_b32 m0, s26")
    for i in range(4):
        k(f"buffer_load_dwordx4 v3, s[12:15], s27 offen offset:{1024*i} lds")
    for q in range(5):
        k(f"v_add_u32 v{5+q}, {4096*q}, v3")

    def areg(kk):
        return 24 + 4 * (kk % 11)

    def load_a(kk):
        a = areg(kk)
        k(f"buffer_load_dwordx4 v[{a}:{a+3}], v{5+kk//4}, s[12:15], s28 offen offset:{(kk%4)*1024}")

    for kk in range(11):
        load_a(kk)
    k(f"""
    v_and_b32 v10, 15, v1
    s_lshl_b32 s31, s24, 4
    v_add_u32 v10, s31, v10
    v_mul_u32_u24 v11, 1152, v10
    v_lshl_add_u32 v11, v4, 3, v11
    s_lshl_b32 s31, s25, 5
    v_add_u32 v11, s31, v11
    v_add_u32 v13, {16*1152}, v11
    v_lshlrev_b32 v12, 4, v4
    s_lshl_b32 s31, s25, 6
    v_add_u32 v12, s31, v12
    s_mov_b32 s34, {MOD + 2*576*4}
    s_mov_b32 s35, {MOD + 4*576*4}
    global_load_dwordx2 v[14:15], v11, s[4:5]
    global_load_dwordx2 v[16:17], v13, s[4:5]
    buffer_load_dwordx4 v[72:75], v12, s[12:15], s34 offen
    buffer_load_dwordx4 v[76:79], v12, s[12:15], s35 offen
    s_waitcnt vmcnt(15)
    s_barrier
    """)
    stamp(k, 1)

    def breg(kk, tt):
        return 80 + 8 * (kk & 1) + 4 * tt

    def read_b(kk):
        for tt in range(2):
            b = breg(kk, tt)
            k(f"ds_read_b128 v[{b}:{b+3}], v3 offset:{(tt*18 + kk)*1024}")

    accs = [18, 68]
    read_b(0)
    for kk in range(18):
        if kk < 17:
            read_b(kk + 1)
        if kk < 11:
            n_after = (10 - kk) + 4 + min(kk, 7)
        else:
            n_after = 17 - kk
        k(f"s_waitcnt vmcnt({n_after}) lgkmcnt({2 if kk < 17 else 0})")
        a = areg(kk)
        for tt in range(2):
            c = accs[tt]
            b = breg(kk, tt)
            cs = "0" if kk == 0 else f"v[{c}:{c+3}]"
            k(f"v_mfma_f32_16x16x32_bf16 v[{c}:{c+3}], v[{a}:{a+3}], v[{b}:{b+3}], {cs}")
        if kk + 11 < 18:
            load_a(kk + 11)
    stamp(k, 2)
    k(f"""
    s_cmp_ge_u32 s3, 2
    s_cbranch_scc1 k2_nopf
    v_min_u32 v24, 71, v0
    v_cmp_le_u32 vcc, 36, v24
    v_subrev_u32 v25, 36, v24
    v_cndmask_b32 v24, v24, v25, vcc
    v_mul_u32_u24 v25, 57, v24
    v_lshrrev_b32 v25, 9, v25
    v_mul_u32_u24 v26, 9, v25
    v_sub_u32 v26, v24, v26
    v_mul_u32_u24 v25, 9216, v25
    v_lshl_add_u32 v25, v26, 7, v25
    s_lshr_b32 s31, s2, 3
    s_mul_i32 s31, s31, {4*9216}
    s_and_b32 s32, s2, 7
    s_mul_i32 s32, s32, 1152
    s_add_u32 s31, s31, s32
    v_add_u32 v25, s31, v25
    v_mov_b32 v26, s16
    v_mov_b32 v27, s17
    v_mov_b32 v28, s18
    v_mov_b32 v29, s19
    v_cndmask_b32 v26, v26, v28, vcc
    v_cndmask_b32 v27, v27, v29, vcc
    v_add_co_u32 v26, vcc, v26, v25
    v_addc_co_u32 v27, vcc, 0, v27, vcc
    global_load_dword v95, v[26:27], off
    """)
    k.label("k2_nopf")
    (lambda *a: None)(k, "k2", "ffn1_kernel", 2, 94, 3, 8)
    k(f"""
    s_lshr_b32 s33, s3, 1
    s_lshl_b32 s33, s33, 10
    s_and_b32 s32, s3, 1
    s_lshl_b32 s32, s32, 3
    s_add_u32 s33, s33, s32
    s_add_u32 s33, s33, {K2_YL}
    v_add_u32 v6, s33, v3
    s_mul_i32 s36, s24, {144*128}
    s_lshl_b32 s37, s25, 9
    s_add_u32 s36, s36, s37
    s_add_u32 s36, s36, {X1}
    s_add_u32 s37, s36, {144*128}
    v_lshlrev_b32 v7, 3, v1
    """)
    ga, g2 = 72, 76
    for tt in range(2):
        c = accs[tt]
        xr = 14 + 2 * tt
        sm, sq = 40 + 2 * tt, 41 + 2 * tt
        k(f"""
        v_cvt_pk_bf16_f32 v24, v{c}, v{c+1}
        v_cvt_pk_bf16_f32 v25, v{c+2}, v{c+3}
        v_lshlrev_b32 v26, 16, v24
        v_and_b32 v27, 0xffff0000, v24
        v_lshlrev_b32 v28, 16, v25
        v_and_b32 v29, 0xffff0000, v25
        v_pk_mul_f32 v[26:27], v[26:27], v[{ga}:{ga+1}]
        v_pk_mul_f32 v[28:29], v[28:29], v[{ga+2}:{ga+3}]
        v_cvt_pk_bf16_f32 v24, v26, v27
        v_cvt_pk_bf16_f32 v25, v28, v29
        v_lshlrev_b32 v26, 16, v24
        v_and_b32 v27, 0xffff0000, v24
        v_lshlrev_b32 v28, 16, v25
        v_and_b32 v29, 0xffff0000, v25
        v_lshlrev_b32 v30, 16, v{xr}
        v_and_b32 v31, 0xffff0000, v{xr}
        v_lshlrev_b32 v32, 16, v{xr+1}
        v_and_b32 v33, 0xffff0000, v{xr+1}
        v_pk_add_f32 v[26:27], v[26:27], v[30:31]
        v_pk_add_f32 v[28:29], v[28:29], v[32:33]
        v_cvt_pk_bf16_f32 v{34+2*tt}, v26, v27
        v_cvt_pk_bf16_f32 v{35+2*tt}, v28, v29
        v_lshlrev_b32 v26, 16, v{34+2*tt}
        v_and_b32 v27, 0xffff0000, v{34+2*tt}
        v_lshlrev_b32 v28, 16, v{35+2*tt}
        v_and_b32 v29, 0xffff0000, v{35+2*tt}
        v_add_f32 v{sm}, v26, v27
        v_mul_f32 v{sq}, v26, v26
        v_fmac_f32 v{sq}, v27, v27
        v_add_f32 v{sm}, v{sm}, v28
        v_fmac_f32 v{sq}, v28, v28
        v_add_f32 v{sm}, v{sm}, v29
        v_fmac_f32 v{sq}, v29, v29
        v_pk_mul_f32 v[26:27], v[26:27], v[{g2}:{g2+1}]
        v_pk_mul_f32 v[28:29], v[28:29], v[{g2+2}:{g2+3}]
        v_cvt_pk_bf16_f32 v{44+2*tt}, v26, v27
        v_cvt_pk_bf16_f32 v{45+2*tt}, v28, v29
        ds_write_b64 v6, v[{44+2*tt}:{45+2*tt}] offset:{5120*tt}
        buffer_store_dwordx2 v[{34+2*tt}:{35+2*tt}], v7, s[12:15], s{36+tt} offen
        """)
    for r in range(40, 44):
        k(f"v_mov_b32 v{r+8}, v{r}")
    for r in range(40, 44):
        k(f"v_permlane16_swap_b32 v{r}, v{r+8}")
    for r in range(40, 44):
        k(f"v_add_f32 v{r}, v{r}, v{r+8}")
    for r in range(40, 44):
        k(f"v_mov_b32 v{r+8}, v{r}")
    for r in range(40, 44):
        k(f"v_permlane32_swap_b32 v{r}, v{r+8}")
    for r in range(40, 44):
        k(f"v_add_f32 v{r}, v{r}, v{r+8}")
    k(f"""
    v_cmp_gt_u32 vcc, 16, v1
    v_cndmask_b32 v40, v42, v40, vcc
    v_cndmask_b32 v41, v43, v41, vcc
    s_lshl_b32 s31, s3, 8
    s_add_u32 s31, s31, 36864
    v_lshlrev_b32 v5, 3, v1
    v_add_u32 v5, s31, v5
    s_mov_b32 exec_hi, 0
    ds_write_b64 v5, v[40:41]
    s_mov_b64 exec, -1
    s_waitcnt lgkmcnt(0)
    s_barrier
    s_cmp_eq_u32 s3, 0
    s_cbranch_scc1 k2_stats
    """)
    k(f"""
    s_sub_u32 s31, s3, 1
    s_lshr_b32 s32, s31, 2
    s_and_b32 s31, s31, 3
    s_mul_i32 s33, s32, 5120
    s_lshl_b32 s34, s31, 10
    s_add_u32 s33, s33, s34
    s_add_u32 s33, s33, {K2_YL}
    v_add_u32 v6, s33, v3
    ds_read_b128 v[24:27], v6
    s_lshr_b32 s35, s21, 1
    s_mul_i32 s35, s35, 9
    s_and_b32 s36, s21, 1
    s_lshl_b32 s37, s36, 2
    s_add_u32 s37, s37, s35
    s_add_u32 s37, s37, s31
    s_add_u32 s38, s24, s32
    s_mul_i32 s38, s38, 18
    s_add_u32 s37, s37, s38
    s_lshl_b32 s37, s37, 10
    s_add_u32 s37, s37, {YY}
    s_waitcnt lgkmcnt(0)
    buffer_store_dwordx4 v[24:27], v3, s[12:15], s37 offen
    s_cmp_lg_u32 s31, 0
    s_cbranch_scc1 k2_done
    ds_read_b64 v[28:29], v6 offset:4096
    s_add_u32 s37, s35, 8
    s_add_u32 s37, s37, s38
    s_lshl_b32 s37, s37, 10
    s_lshl_b32 s36, s36, 3
    s_add_u32 s37, s37, s36
    s_add_u32 s37, s37, {YY}
    s_waitcnt lgkmcnt(0)
    buffer_store_dwordx2 v[28:29], v3, s[12:15], s37 offen
    s_branch k2_done
    """)
    k.label("k2_stats")
    k("v_lshlrev_b32 v5, 2, v1")
    for w in range(9):
        k(f"ds_read_b32 v{24+w}, v5 offset:{36864 + 256*w}")
    k("s_waitcnt lgkmcnt(0)")
    k("""
    v_add_f32 v24, v24, v25
    v_add_f32 v26, v26, v27
    v_add_f32 v28, v28, v29
    v_add_f32 v30, v30, v31
    v_add_f32 v24, v24, v26
    v_add_f32 v28, v28, v30
    v_add_f32 v24, v24, v32
    v_add_f32 v24, v24, v28
    """)
    k(f"""
    s_lshl_b32 s31, s21, 14
    s_lshl_b32 s32, s24, 7
    s_add_u32 s31, s31, s32
    s_add_u32 s31, s31, {STAT}
    buffer_store_dword v24, v5, s[12:15], s31 offen
    """)
    stamp(k, 3)
    stamp_flush(k, 4, 3, "k2", 90)
    k.label("k2_done")
    tl_end(k, 2)
    k("s_endpgm")
    return k, 96, K2_LDS


K3_R = 8
K3_ST = 18432
K3_GSL = K3_R * K3_ST
K3_GBL = K3_GSL + 2304
K3_LDS = K3_GBL + 2304 + 16


class VM:
    def __init__(self):
        self.ops = []

    def add(self, tag, n=1):
        self.ops += [tag] * n

    def need(self, *tags):
        last = max((i for i, t in enumerate(self.ops) if t in tags), default=-1)
        return len(self.ops) - 1 - last


def gen_k3():
    k = K("ffn1_kernel")
    tl_start(k)
    R, ST = K3_R, K3_ST
    LA = PRM.get("LA", 4)
    NA = 6
    S, D, DY = PRM.get("S", 3), 4, 4
    k(f"""
    s_cmp_ge_u32 s2, 256
    s_cbranch_scc1 k3_done
    s_load_dwordx4 s[16:19], s[0:1], 32
    s_load_dwordx2 s[56:57], s[0:1], 48
    s_load_dwordx2 s[6:7], s[0:1], 88
    v_and_b32 v1, 63, v0
    v_lshrrev_b32 v2, 6, v0
    v_lshlrev_b32 v3, 4, v1
    v_lshrrev_b32 v4, 4, v1
    v_readfirstlane_b32 s3, v2
    s_and_b32 s20, s2, 7
    s_lshl_b32 s20, s20, 2
    s_bfe_u32 s21, s2, 0x20003
    s_add_u32 s20, s20, s21
    s_lshr_b32 s21, s2, 5
    s_waitcnt lgkmcnt(0)
    """)
    stamp(k, 0)
    if DIAG:
        k("s_memrealtime s[90:91]")
    srd(k, 12, 6, WS_BYTES)
    k(f"""
    s_cmp_ge_u32 s3, 4
    s_cselect_b32 s8, s18, s16
    s_cselect_b32 s9, s19, s17
    s_cselect_b32 s22, 9216, 0
    s_and_b32 s9, s9, 0xffff
    s_mov_b32 s10, {576*4608*2}
    s_mov_b32 s11, 0x00020000
    s_and_b32 s23, s3, 3
    s_mul_i32 s24, s23, 2304
    s_add_u32 s22, s22, s24
    s_lshl_b32 s24, s21, 4
    s_lshl_b32 s25, s3, 1
    s_add_u32 s24, s24, s25
    s_mul_i32 s25, s24, {18*1024}
    s_add_u32 s25, s25, {YY}
    s_add_u32 s26, s25, {18*1024}
    s_mov_b32 s50, -1
    s_mov_b32 s51, 0xffff
    s_mov_b32 s52, 0x3ffff
    s_mov_b32 s53, 0
    s_and_b32 s27, s23, 1
    s_mul_i32 s27, s27, {8*9216}
    s_mul_i32 s28, s20, 288
    s_add_u32 s27, s27, s28
    s_lshr_b32 s28, s23, 1
    s_mul_i32 s54, s28, {16*9216}
    s_mul_i32 s55, s28, {144*9216}
    """)
    for i in range(3):
        k(f"""
        v_add_u32 v7, {48*i}, v1
        v_mul_u32_u24 v8, 0xe39, v7
        v_lshrrev_b32 v8, 16, v8
        v_mul_u32_u24 v9, 18, v8
        v_sub_u32 v9, v7, v9
        v_mul_u32_u24 v8, 9216, v8
        v_lshl_add_u32 v8, v9, 4, v8
        v_add_u32 v{10+i}, s27, v8
        """)

    def ybuf(st, tt):
        return 72 + 8 * (st % 5) + 4 * tt

    def dma_parts(st):
        parts = []
        for i in range(3):
            p = []
            if i == 0:
                p += [f"s_add_u32 s30, s22, {(st % R) * ST}",
                      f"s_add_u32 s29, s{54 if st % 9 < 8 else 55}, {tile_of(st, 0) * 16 * 9216}"]
            p += [f"s_add_u32 m0, s30, {768*i}", "s_mov_b64 exec, s[50:51]",
                  f"buffer_load_dwordx4 v{10+i}, s[8:11], s29 offen lds", "s_mov_b64 exec, -1"]
            parts.append((p, f"w{st}"))
        return parts

    def y_parts(st):
        parts = []
        for tt in range(2):
            p = []
            if tt == 0 and st % 4 == 0 and st > 0:
                p += ["s_add_u32 s25, s25, 4096", "s_add_u32 s26, s26, 4096"]
            y = ybuf(st, tt)
            p.append(f"buffer_load_dwordx4 v[{y}:{y+3}], v3, s[12:15], s{25+tt} offen offset:{(st * 1024) % 4096}")
            parts.append((p, f"y{st}"))
        return parts

    vm0 = VM()

    def emit(parts, vm, loop=False):
        for p, tag in parts:
            if loop and "nodma" in ABL:
                continue
            for ln in p:
                k(ln)
            vm.add(tag)

    emit(dma_parts(0) + y_parts(0), vm0)
    k(f"""
    v_bfe_u32 v7, v1, 2, 2
    v_lshl_add_u32 v7, v4, 2, v7
    v_mul_u32_u24 v7, 288, v7
    v_and_b32 v8, 3, v1
    v_lshl_add_u32 v13, v8, 3, v7
    v_add_u32 v14, {3*ST}, v13
    v_add_u32 v15, {6*ST}, v13
    v_and_b32 v7, 15, v1
    v_lshlrev_b32 v8, 5, v4
    v_lshl_add_u32 v8, v7, 4, v8
    v_add_u32 v8, {K3_GBL}, v8
    v_mov_b32 v9, {K3_GBL + 2304}
    v_cmp_gt_u32 vcc, 2, v7
    v_cndmask_b32 v16, v9, v8, vcc
    v_mov_b32 v19, 128
    v_cndmask_b32 v19, 0, v19, vcc
    v_mov_b32 v20, 0
    v_mov_b32 v21, 0
    v_mov_b32 v22, 0
    v_mov_b32 v23, 0
    ds_write_b128 v9, v[20:23]
    s_mul_i32 s27, s3, 288
    s_add_u32 s28, s27, {K3_GBL}
    s_add_u32 s27, s27, {GSB}
    s_mov_b32 m0, s28
    s_mov_b64 exec, s[52:53]
    buffer_load_dwordx4 v3, s[12:15], s27 offen lds
    s_mov_b64 exec, -1
    """)
    vm0.add("gsb")
    for st in range(1, D):
        emit(dma_parts(st) + y_parts(st), vm0)
    k(f"""
    v_and_b32 v17, 31, v1
    s_lshl_b32 s27, s24, 4
    v_add_u32 v17, s27, v17
    v_lshlrev_b32 v17, 3, v17
    v_lshrrev_b32 v18, 5, v1
    v_mul_u32_u24 v18, {2*16384}, v18
    v_add_u32 v17, v17, v18
    s_mov_b32 s27, {STAT}
    s_mov_b32 s28, {STAT + 16384}
    buffer_load_dwordx2 v[6:7], v17, s[12:15], s27 offen
    buffer_load_dwordx2 v[8:9], v17, s[12:15], s28 offen
    """)
    vm0.add("stat", 2)
    k("""
    s_and_b32 s60, s23, 1
    s_mul_i32 s60, s60, 9216
    s_lshr_b32 s61, s23, 1
    s_lshl_b32 s61, s61, 5
    s_add_u32 s60, s60, s61
    s_add_u32 s61, s60, 64
    s_add_u32 s62, s60, 128
    s_add_u32 s63, s60, 192
    s_add_u32 s64, s60, 256
    s_cmp_lt_u32 s23, 2
    s_cselect_b32 s64, s64, s63
    """)

    def acc(tt, m, ft):
        return 112 + ((tt * 2 + m) * 9 + ft) * 4

    frs = [(m, ft) for ft in range(9) for m in range(2)]
    GB = 20

    def body(grp):
        import copy
        vm = copy.deepcopy(vm0)
        nx = 5 if grp == 0 and "nogs" not in ABL else 0
        per = 18 + nx
        seq = []
        xi = 0
        for j in range(18):
            seq.append(("m", j))
            if nx and j % 4 == 1 and xi < nx:
                seq.append(("x", xi)); xi += 1
        while xi < nx:
            seq.append(("x", xi)); xi += 1
        NQ = 18 * per

        def areg(q):
            return 48 + 4 * (q % NA)

        def read_frag(q):
            st, j = divmod(q, per)
            kind, idx = seq[j]
            sl = st % R
            base = 13 + sl // 3
            a = areg(q)
            if kind == "m":
                m, ft = frs[idx]
                off = (sl % 3) * ST + m * 9216 + ft * 32
                k(f"ds_read_b64_tr_b16 v[{a}:{a+1}], v{base} offset:{off}")
                k(f"ds_read_b64_tr_b16 v[{a+2}:{a+3}], v{base} offset:{off + 4608}")
            else:
                t = 17 + (idx & 1)
                off = (sl % 3) * ST
                k(f"v_add_u32 v{t}, s{60+idx}, v{base}")
                k(f"ds_read_b64_tr_b16 v[{a}:{a+1}], v{t} offset:{off}")
                k(f"ds_read_b64_tr_b16 v[{a+2}:{a+3}], v{t} offset:{off + 4608}")

        BJ = PRM.get("BJ0", 8) if grp == 0 else PRM.get("BJ1", 2)
        VJ = PRM.get("VJ0", 12) if grp == 0 else BJ
        if PRM.get("P%d" % grp, 0):
            k(f"s_setprio {PRM['P%d' % grp]}")
        k(f"s_waitcnt vmcnt({vm.need('w0', 'y0', 'gsb')}) lgkmcnt(0)")
        k("s_barrier")
        stamp(k, 1)
        for t in range(18 + S * grp):
            st = t - S * grp
            parts = []
            if t + D < 18:
                parts += dma_parts(t + D)
            ys = st + DY
            if grp == 0:
                if ys < 18:
                    parts += y_parts(ys)
            else:
                if D <= ys < 18:
                    parts += y_parts(ys)
            if st < 0:
                k(f"s_waitcnt vmcnt({vm.need(f'w{t+1}')})")
                k("s_barrier")
                emit(parts, vm)
                continue
            if st == 0:
                if grp == 0:
                    k(f"ds_read_b128 v[{GB}:{GB+3}], v16")
                else:
                    k(f"s_waitcnt vmcnt({vm.need('y0')})")
                for q in range(LA):
                    read_frag(q)
            pi = 0
            for j in range(per):
                q = st * per + j
                if j == BJ and t <= 18:
                    need = []
                    if t + 1 < 18:
                        need.append(f"w{t+1}")
                    if st + 1 < 18:
                        need.append(f"y{st+1}")
                    if need:
                        k(f"s_waitcnt vmcnt({vm.need(*need)})")
                    if t < 17 or (grp == 1 and t == 18):
                        k("s_barrier")
                    if st in (0, 6, 12):
                        stamp(k, 2 + (0, 6, 12).index(st))
                elif j == BJ and st + 1 < 18:
                    k(f"s_waitcnt vmcnt({vm.need(f'y{st+1}')})")
                if grp == 0 and j == 2 and st < 17:
                    g_ = GB + 4 * ((st + 1) & 1)
                    k("v_add_u32 v16, v16, v19")
                    k(f"ds_read_b128 v[{g_}:{g_+3}], v16")
                if q + LA < NQ:
                    read_frag(q + LA)
                    k(f"s_waitcnt lgkmcnt({2*LA})")
                else:
                    k(f"s_waitcnt lgkmcnt({2*(NQ-1-q)})")
                kind, idx = seq[j]
                a = areg(q)
                if kind == "m":
                    m, ft = frs[idx]
                    for tt in range(2):
                        c = acc(tt, m, ft)
                        y = ybuf(st, tt)
                        cs = "0" if st == 0 else f"v[{c}:{c+3}]"
                        k(f"v_mfma_f32_16x16x32_bf16 v[{c}:{c+3}], v[{a}:{a+3}], v[{y}:{y+3}], {cs}")
                else:
                    gc = 28 + 4 * idx
                    g_ = GB + 4 * (st & 1)
                    cs = "0" if st == 0 else f"v[{gc}:{gc+3}]"
                    k(f"v_mfma_f32_16x16x32_bf16 v[{gc}:{gc+3}], v[{a}:{a+3}], v[{g_}:{g_+3}], {cs}")
                if grp == 1 and j == BJ and "spread1" not in ABL:
                    emit(parts, vm, True)
                    pi = len(parts)
                elif j >= VJ and pi < len(parts):
                    emit(parts[pi:pi + 1], vm, True)
                    pi += 1
                if t == 14 and j == per - 1:
                    (lambda *a: None)(k, f"k3g{grp}", "ffn2_kernel", 2, 2)
                    vm.add("pf")
                    k(f"""
                    v_min_u32 v5, 161, v0
                    s_mul_i32 s31, s2, {162*128}
                    v_lshl_add_u32 v5, v5, 7, s31
                    global_load_dword v0, v5, s[56:57]
                    """)
                    vm.add("pf")
            assert pi == len(parts)
        stamp(k, 5)
        if grp == 0:
            k(f"""
            v_and_b32 v5, 15, v1
            v_mul_u32_u24 v5, 576, v5
            v_lshl_add_u32 v5, v4, 4, v5
            s_and_b32 s31, s3, 1
            s_mul_i32 s31, s31, 1152
            s_lshr_b32 s32, s3, 1
            s_lshl_b32 s32, s32, 6
            s_add_u32 s31, s31, s32
            s_add_u32 s31, s31, {K3_GSL}
            v_add_u32 v5, s31, v5
            s_mov_b32 exec_lo, 0x00030003
            s_mov_b32 exec_hi, 0x00030003
            ds_write_b128 v5, v[28:31]
            ds_write_b128 v5, v[32:35] offset:128
            ds_write_b128 v5, v[36:39] offset:256
            ds_write_b128 v5, v[40:43] offset:384
            s_cmp_ge_u32 s3, 2
            s_cbranch_scc1 k3_gs_w
            ds_write_b128 v5, v[44:47] offset:512
            """)
            k.label("k3_gs_w")
            k("""
            s_mov_b64 exec, -1
            s_waitcnt lgkmcnt(0)
            s_barrier
            """)

    k("s_cmp_ge_u32 s3, 4")
    k("s_cbranch_scc1 k3_grp1")
    body(0)
    k("s_branch k3_epi")
    k.label("k3_grp1")
    body(1)
    k.label("k3_epi")
    k("s_setprio 0")
    k("""
    s_nop 7
    v_add_f32 v20, v6, v8
    v_add_f32 v21, v7, v9
    v_mov_b32 v22, v20
    v_mov_b32 v23, v21
    v_permlane32_swap_b32 v20, v22
    v_permlane32_swap_b32 v21, v23
    v_add_f32 v20, v20, v22
    v_add_f32 v21, v21, v23
    v_mul_f32 v20, 0x3ae38e39, v20
    v_mul_f32 v21, 0x3ae38e39, v21
    v_fma_f32 v21, -v20, v20, v21
    v_max_f32 v21, 0, v21
    """)
    bf16_round(k, 21, 21)
    k("v_add_f32 v21, 0x3727c5ac, v21")
    bf16_round(k, 21, 21)
    k("v_sqrt_f32 v21, v21")
    bf16_round(k, 21, 21)
    k("v_rcp_f32 v21, v21")
    bf16_round(k, 20, 20)
    k("""
    v_mul_f32 v20, v20, v21
    v_sub_f32 v20, 0, v20
    v_mov_b32 v24, v21
    v_mov_b32 v26, v21
    v_mov_b32 v28, v20
    v_mov_b32 v30, v20
    v_permlane16_swap_b32 v24, v26
    v_permlane16_swap_b32 v28, v30
    """)
    k(f"""
    v_lshlrev_b32 v5, 4, v4
    v_add_u32 v5, {K3_GSL}, v5
    s_mul_i32 s27, s24, {144*1024}
    s_add_u32 s27, s27, {HH}
    s_lshr_b32 s28, s20, 1
    s_mul_i32 s28, s28, {9*1024}
    s_add_u32 s27, s27, s28
    s_and_b32 s28, s20, 1
    s_lshl_b32 s42, s28, 3
    s_add_u32 s42, s42, s27
    s_add_u32 s42, s42, 8192
    s_add_u32 s43, s42, {144*1024}
    s_lshl_b32 s28, s28, 12
    s_add_u32 s32, s27, s28
    s_add_u32 s33, s32, {144*1024}
    s_mov_b32 s40, 0xbfb8aa3b
    s_mov_b32 s41, 0xbfb8aa3b
    """)

    def gsreg(ft):
        return 48 + 16 * (ft % 2)

    def read_gs(ft):
        g = gsreg(ft)
        for a in range(4):
            k(f"ds_read_b128 v[{g+4*a}:{g+4*a+3}], v5 offset:{a*576 + ft*64}")

    read_gs(0)
    for ft in range(9):
        g = gsreg(ft)
        if ft < 8:
            read_gs(ft + 1)
        k(f"s_waitcnt lgkmcnt({4 if ft < 8 else 0})")
        U4 = [(tt, h) for tt in range(2) for h in range(2)]
        for u, (tt, h) in enumerate(U4):
            mr = 28 + 2 * tt
            k(f"v_pk_fma_f32 v[{80+2*u}:{81+2*u}], v[{g+2*h}:{g+2*h+1}], v[{mr}:{mr+1}], v[{g+4+2*h}:{g+4+2*h+1}] op_sel_hi:[1,0,1]")
        for u, (tt, h) in enumerate(U4):
            mr = 28 + 2 * tt
            k(f"v_pk_fma_f32 v[{88+2*u}:{89+2*u}], v[{g+8+2*h}:{g+8+2*h+1}], v[{mr}:{mr+1}], v[{g+12+2*h}:{g+12+2*h+1}] op_sel_hi:[1,0,1]")
        for u, (tt, h) in enumerate(U4):
            r = 24 + 2 * tt
            ga = acc(tt, 0, ft)
            k(f"v_pk_fma_f32 v[{80+2*u}:{81+2*u}], v[{ga+2*h}:{ga+2*h+1}], v[{r}:{r+1}], v[{80+2*u}:{81+2*u}] op_sel_hi:[1,0,1]")
        for u, (tt, h) in enumerate(U4):
            k(f"v_pk_mul_f32 v[{96+2*u}:{97+2*u}], v[{80+2*u}:{81+2*u}], s[40:41]")
        for u, (tt, h) in enumerate(U4):
            r = 24 + 2 * tt
            ua = acc(tt, 1, ft)
            k(f"v_pk_fma_f32 v[{88+2*u}:{89+2*u}], v[{ua+2*h}:{ua+2*h+1}], v[{r}:{r+1}], v[{88+2*u}:{89+2*u}] op_sel_hi:[1,0,1]")
        for e in range(8):
            if "notrans" not in ABL:
                k(f"v_exp_f32 v{96+e}, v{96+e}")
        for u in range(4):
            k(f"v_pk_mul_f32 v[{80+2*u}:{81+2*u}], v[{80+2*u}:{81+2*u}], v[{88+2*u}:{89+2*u}]")
        for u in range(4):
            k(f"v_pk_add_f32 v[{96+2*u}:{97+2*u}], v[{96+2*u}:{97+2*u}], 1.0 op_sel_hi:[1,0]")
        for e in range(8):
            if "notrans" not in ABL:
                k(f"v_rcp_f32 v{96+e}, v{96+e}")
        for u in range(4):
            k(f"v_pk_mul_f32 v[{80+2*u}:{81+2*u}], v[{80+2*u}:{81+2*u}], v[{96+2*u}:{97+2*u}]")
        pb = (ft >> 1) & 1
        for u, (tt, h) in enumerate(U4):
            o = (32 if pb == 0 else 40) + 4 * tt + 2 * (ft & 1) + h
            k(f"v_cvt_pk_bf16_f32 v{o}, v{80+2*u}, v{81+2*u}")
        for tt in range(2):
            o = (32 if pb == 0 else 40) + 4 * tt
            if "nostore" in ABL:
                continue
            if ft == 8:
                k(f"buffer_store_dwordx2 v[{o}:{o+1}], v3, s[12:15], s{42+tt} offen")
            elif ft & 1:
                k(f"buffer_store_dwordx4 v[{o}:{o+3}], v3, s[12:15], s{32+tt} offen offset:{(ft>>1)*1024}")
    stamp(k, 6)
    if DIAG:
        k("s_memrealtime s[92:93]")
        k("s_waitcnt lgkmcnt(0)")
        k("s_sub_u32 s77, s92, s90")
        k("s_add_u32 s77, s77, s70")
    stamp_flush(k, 8, 3, "k3")
    k.label("k3_done")
    tl_end(k, 3)
    k("s_endpgm")
    return k, 256, K3_LDS


K4_NS = 3
K4_LDS = 140 * 1024
K4_GRID = 240


def gen_k4():
    k = K("ffn2_kernel")
    tl_start(k)
    NS = K4_NS
    k(f"""
    s_cmp_ge_u32 s2, {K4_GRID}
    s_cbranch_scc1 k4_done
    s_and_b32 s20, s2, 7
    s_mul_i32 s20, s20, 30
    s_lshr_b32 s21, s2, 3
    s_add_u32 s22, s20, s21
    s_cmp_ge_u32 s22, 234
    s_cbranch_scc1 k4_done
    s_load_dwordx2 s[16:17], s[0:1], 48
    s_load_dwordx2 s[18:19], s[0:1], 72
    s_load_dwordx2 s[6:7], s[0:1], 88
    v_and_b32 v1, 63, v0
    v_lshrrev_b32 v2, 6, v0
    v_lshlrev_b32 v3, 4, v1
    v_lshrrev_b32 v4, 4, v1
    v_readfirstlane_b32 s3, v2
    s_mul_i32 s20, s22, 0x1c72
    s_lshr_b32 s20, s20, 16
    s_mul_i32 s21, s20, 9
    s_sub_u32 s21, s22, s21
    s_waitcnt lgkmcnt(0)
    """)
    stamp(k, 0)
    srd(k, 12, 6, WS_BYTES)
    srd(k, 8, 16, 4608 * 576 * 2)
    srd(k, 44, 18, 2048 * 576 * 2)
    k(f"s_mul_i32 s22, s20, 5")
    k(f"s_mul_i32 s23, s3, {18*1024}")
    for tt in range(5):
        k(f"""
        s_add_u32 s29, s22, {tt}
        s_min_u32 s29, s29, 127
        s_mul_i32 s29, s29, {144*1024}
        s_add_u32 s29, s29, s23
        s_add_u32 s{24+tt}, s29, {HH}
        """)
    k(f"""
    s_mul_i32 s30, s3, {NS*4096}
    s_mul_i32 s31, s3, {576*1152}
    s_lshl_b32 s29, s21, 7
    s_add_u32 s31, s31, s29
    v_lshrrev_b32 v7, 3, v1
    v_and_b32 v8, 7, v1
    v_bfe_u32 v9, v7, 1, 2
    v_lshlrev_b32 v9, 1, v9
    v_xor_b32 v8, v8, v9
    v_mul_u32_u24 v7, 1152, v7
    v_lshl_add_u32 v7, v8, 4, v7
    v_add_u32 v10, s31, v7
    v_add_u32 v11, {8*1152}, v10
    """)
    k(f"""
    v_bfe_u32 v7, v1, 2, 2
    v_lshl_add_u32 v7, v4, 2, v7
    v_bfe_u32 v8, v7, 1, 2
    v_lshlrev_b32 v8, 1, v8
    v_bfe_u32 v9, v1, 1, 1
    v_lshlrev_b32 v7, 7, v7
    v_and_b32 v16, 1, v1
    v_lshl_add_u32 v7, v16, 3, v7
    v_add_u32 v7, s30, v7
    """)
    for nt in range(4):
        k(f"""
        v_or_b32 v16, {2*nt}, v9
        v_xor_b32 v16, v16, v8
        v_lshl_add_u32 v{12+nt}, v16, 4, v7
        """)

    def hbuf(it, tt):
        return 32 + 20 * (it % NS) + 4 * tt

    def issue(it):
        for i in range(4):
            half = i >> 1
            k(f"s_mov_b32 s29, {tile_of(it, half) * 16 * 1152}")
            k(f"s_add_u32 m0, s30, {(it % NS) * 4096 + 1024 * i}")
            k(f"buffer_load_dwordx4 v{10 + (i & 1)}, s[8:11], s29 offen lds")
        if it % 4 == 0 and it > 0:
            for tt in range(5):
                k(f"s_add_u32 s{24+tt}, s{24+tt}, 4096")
        for tt in range(5):
            h = hbuf(it, tt)
            k(f"buffer_load_dwordx4 v[{h}:{h+3}], v3, s[12:15], s{24+tt} offen offset:{(it % 4) * 1024}")

    def acc(tt, nt):
        return 128 + (tt * 4 + nt) * 4

    NIT = 18
    for it in range(NS - 1):
        issue(it)
    for it in range(NIT):
        if it + NS - 1 < NIT:
            issue(it + NS - 1)
        n_after = 9 * (min(it + NS - 1, NIT - 1) - it)
        k(f"s_waitcnt vmcnt({n_after})")
        if it in (0, 1, 9):
            stamp(k, 1 + (0, 1, 9).index(it))
        for nt in range(4):
            a = 96 + 4 * nt
            off = (it % NS) * 4096
            k(f"ds_read_b64_tr_b16 v[{a}:{a+1}], v{12+nt} offset:{off}")
            k(f"ds_read_b64_tr_b16 v[{a+2}:{a+3}], v{12+nt} offset:{off + 2048}")
        for nt in range(4):
            a = 96 + 4 * nt
            k(f"s_waitcnt lgkmcnt({2*(3-nt)})")
            for tt in range(5):
                c = acc(tt, nt)
                h = hbuf(it, tt)
                cs = "0" if it == 0 else f"v[{c}:{c+3}]"
                k(f"v_mfma_f32_16x16x32_bf16 v[{c}:{c+3}], v[{a}:{a+3}], v[{h}:{h+3}], {cs}")
    stamp(k, 4)
    k("s_barrier")
    stamp(k, 5)
    for u in range(20):
        owner = u % 8
        c = 128 + 4 * u
        k(f"""
        s_sub_u32 s33, s3, {owner + 1}
        s_and_b32 s33, s33, 7
        s_cmp_eq_u32 s33, 7
        s_cbranch_scc1 k4_skip_{u}
        s_lshl_b32 s33, s33, 10
        s_add_u32 s33, s33, {u * 7 * 1024}
        v_add_u32 v5, s33, v3
        ds_write_b128 v5, v[{c}:{c+3}]
        """)
        k.label(f"k4_skip_{u}")
    for w in range(8):
        k(f"s_cmp_lg_u32 s3, {w}")
        k(f"s_cbranch_scc1 k4_mv_{w}")
        for j in range(3):
            u = w + 8 * j if w + 8 * j < 20 else w + 8
            for r in range(4):
                k(f"v_mov_b32 v{16+4*j+r}, v{128+4*u+r}")
        k.label(f"k4_mv_{w}")
    k("""
    s_mov_b32 s34, s3
    s_add_u32 s35, s3, 8
    s_add_u32 s36, s3, 16
    s_cmp_lt_u32 s3, 4
    s_cselect_b32 s36, s36, s35
    v_lshlrev_b32 v9, 3, v1
    v_lshlrev_b32 v11, 4, v4
    v_and_b32 v12, 15, v1
    v_mul_u32_u24 v12, 1152, v12
    v_lshl_add_u32 v12, v4, 3, v12
    """)
    for j in range(3):
        k(f"""
        s_lshr_b32 s37, s{34+j}, 2
        s_and_b32 s38, s{34+j}, 3
        s_add_u32 s37, s37, s22
        s_min_u32 s39, s37, 127
        s_mul_i32 s40, s39, {144*128}
        s_lshl_b32 s41, s21, 11
        s_add_u32 s40, s40, s41
        s_lshl_b32 s41, s38, 9
        s_add_u32 s40, s40, s41
        s_add_u32 s40, s40, {X1}
        buffer_load_dwordx2 v[{120+2*j}:{121+2*j}], v9, s[12:15], s40 offen
        s_lshl_b32 s40, s21, 8
        s_lshl_b32 s41, s38, 6
        s_add_u32 s40, s40, s41
        s_add_u32 s40, s40, {MOD + 5*576*4}
        buffer_load_dwordx4 v[{208+4*j}:{211+4*j}], v11, s[12:15], s40 offen
        s_mul_i32 s40, s37, {16*1152}
        s_lshl_b32 s41, s21, 7
        s_add_u32 s40, s40, s41
        s_lshl_b32 s41, s38, 5
        s_add_u32 s{50+j}, s40, s41
        s_mul_i32 s40, s{34+j}, {7*1024}
        v_add_u32 v{6+j}, s40, v3
        """)
    k("s_waitcnt lgkmcnt(0)")
    k("s_barrier")
    for j in range(3):
        for sl in range(7):
            r = 32 + (j * 7 + sl) * 4
            k(f"ds_read_b128 v[{r}:{r+3}], v{6+j} offset:{sl*1024}")
    for j in range(3):
        k(f"s_waitcnt lgkmcnt({min(15, 7*(2-j))})")
        for sl in range(7):
            r = 32 + (j * 7 + sl) * 4
            k(f"v_pk_add_f32 v[{16+4*j}:{17+4*j}], v[{16+4*j}:{17+4*j}], v[{r}:{r+1}]")
            k(f"v_pk_add_f32 v[{18+4*j}:{19+4*j}], v[{18+4*j}:{19+4*j}], v[{r+2}:{r+3}]")
    k("s_waitcnt vmcnt(0)")
    for j in range(3):
        c = 16 + 4 * j
        gb = 208 + 4 * j
        xr = 120 + 2 * j
        t = 32 + 8 * j
        k(f"""
        v_cvt_pk_bf16_f32 v{t}, v{c}, v{c+1}
        v_cvt_pk_bf16_f32 v{t+1}, v{c+2}, v{c+3}
        v_lshlrev_b32 v{c}, 16, v{t}
        v_and_b32 v{c+1}, 0xffff0000, v{t}
        v_lshlrev_b32 v{c+2}, 16, v{t+1}
        v_and_b32 v{c+3}, 0xffff0000, v{t+1}
        v_pk_mul_f32 v[{c}:{c+1}], v[{c}:{c+1}], v[{gb}:{gb+1}]
        v_pk_mul_f32 v[{c+2}:{c+3}], v[{c+2}:{c+3}], v[{gb+2}:{gb+3}]
        v_cvt_pk_bf16_f32 v{t}, v{c}, v{c+1}
        v_cvt_pk_bf16_f32 v{t+1}, v{c+2}, v{c+3}
        v_lshlrev_b32 v{c}, 16, v{t}
        v_and_b32 v{c+1}, 0xffff0000, v{t}
        v_lshlrev_b32 v{c+2}, 16, v{t+1}
        v_and_b32 v{c+3}, 0xffff0000, v{t+1}
        v_lshlrev_b32 v{t+2}, 16, v{xr}
        v_and_b32 v{t+3}, 0xffff0000, v{xr}
        v_lshlrev_b32 v{t+4}, 16, v{xr+1}
        v_and_b32 v{t+5}, 0xffff0000, v{xr+1}
        v_pk_add_f32 v[{c}:{c+1}], v[{c}:{c+1}], v[{t+2}:{t+3}]
        v_pk_add_f32 v[{c+2}:{c+3}], v[{c+2}:{c+3}], v[{t+4}:{t+5}]
        v_cvt_pk_bf16_f32 v{t+6}, v{c}, v{c+1}
        v_cvt_pk_bf16_f32 v{t+7}, v{c+2}, v{c+3}
        buffer_store_dwordx2 v[{t+6}:{t+7}], v12, s[44:47], s{50+j} offen
        """)
    stamp(k, 6)
    stamp_flush(k, 7, 3, "k4")
    k.label("k4_done")
    tl_end(k, 4)
    k("s_endpgm")
    return k, 224, K4_LDS


KERNELS = []


def build(kernels, path):
    head = ["; adaLN + sliding dilated local attention + SwiGLU block, multi-kernel pipeline (generated)"]
    texts, descs = [], []
    for (gen, grid, block) in kernels:
        k, vgpr, lds = gen()
        head.append(f"; @launch kernel={k.name} grid=({grid},1,1) block=({block},1,1) lds={lds}")
        t, d = kernel_text(k, vgpr)
        texts.append(t)
        descs.append(d)
    out = "\n".join(head) + "\n.amdgcn_target \"amdgcn-amd-amdhsa--gfx950\"\n.text\n" + "\n".join(texts) + \
        "\n.section .rodata,\"a\"\n" + "".join(descs)
    open(path, "w").write(out)


if __name__ == "__main__":
    if len(sys.argv) > 2 and sys.argv[2] == "diag":
        DIAG = True
    for a_ in sys.argv[3:]:
        if "=" in a_:
            PRM[a_.split("=")[0]] = int(a_.split("=")[1])
        else:
            ABL.add(a_)
    build([(gen_k0, K0_GRID, 256), (gen_k1, 256, 512), (gen_k3, 256, 512), (gen_k4, K4_GRID, 512)], sys.argv[1] if len(sys.argv) > 1 else "k.s")
```

```python
import gen
from asmlib import K

def gen_nop():
    k = K("nop_kernel")
    k("s_endpgm")
    return k, 8, 0

full = [(gen.gen_k0, gen.K0_GRID, 256), (gen.gen_k1, 256, 512), (gen.gen_k3, 256, 512), (gen.gen_k4, gen.K4_GRID, 512)]
def build(order, path):
    texts = {}
    gen.build(full + [(gen_nop, 256, 64)], path)
    s = open(path).read().split("\n")
    launches = [l for l in s if l.startswith("; @launch")]
    rest = [l for l in s if not l.startswith("; @launch")]
    sel = [launches[4 if o == 'n' else o] for o in order]
    open(path, "w").write("\n".join([rest[0]] + sel + rest[1:]))
D = "cdna_kernels/"
build([0, 1, 2, 3, 'n', 'n', 'n', 'n'], D + "c_nopend.s")
build(['n', 'n', 'n', 'n', 0, 1, 2, 3], D + "c_nopstart.s")
build([0, 1, 2, 2, 3], D + "c_k3x2.s")
build([0, 1, 2, 3, 3], D + "c_k4x2.s")
build([0, 0, 1, 2, 3], D + "c_k0x2.s")
```

```python
import sys
from asmlib import K, kernel_text

NAME = "adaLN_cond__sliding_local_dilated__glu_gated_swiglu__prompt"

MOD = 0x0000000
GSB = 0x0010000
STAT = 0x0040000
XN = 0x0100000
WQ = 0x0400000
WOP = 0x0700000
OO = 0x0800000
X1 = 0x0B00000
YY = 0x0E00000
HH = 0x1100000
W2P = 0x2400000
WS_BYTES = 268435456

LOG2E = "0x3fb8aa3b"
PART = 0x2400000


def tile_of(ks, half):
    p, i = divmod(ks, 9)
    if i < 8:
        return (2 * p + (i >> 2)) * 9 + 2 * (i & 3) + half
    return (2 * p + half) * 9 + 8


def srd(k, d, lo, nbytes):
    k(f"""
    s_mov_b32 s{d}, s{lo}
    s_and_b32 s{d+1}, s{lo+1}, 0xffff
    s_mov_b32 s{d+2}, {nbytes}
    s_mov_b32 s{d+3}, 0x00020000
    """)


DIAG = False
ABL = set()
PRM = {}


def stamp(k, idx):
    if DIAG:
        k("s_memtime s[68:69]")
        k("s_waitcnt lgkmcnt(0)")
        k(f"s_mov_b32 s{70+idx}, s68")


def stamp_flush(k, n, wave_sgpr, tag, vb=200):
    if not DIAG:
        return
    k(f"""
    s_cmp_lg_u32 s2, 5
    s_cbranch_scc1 {tag}_nostamp
    s_load_dwordx2 s[66:67], s[0:1], 80
    s_lshl_b32 s68, s{wave_sgpr}, 5
    v_mov_b32 v{vb}, s68
    s_waitcnt lgkmcnt(0)
    """)
    for i in range(n):
        k(f"s_sub_u32 s69, s{70+i}, s70")
        k(f"v_mov_b32 v{vb+1}, s69")
        k(f"global_store_dword v{vb}, v{vb+1}, s[66:67] offset:{4*i}")
    k(f"{tag}_nostamp:")


TL = 0x3000000


def tl_start(k):
    if DIAG:
        k("s_memrealtime s[94:95]")
        k("s_mov_b32 s96, s2")


def tl_end(k, kid):
    if DIAG:
        k(f"""
        s_mov_b64 exec, 1
        s_waitcnt vmcnt(0) lgkmcnt(0)
        s_memrealtime s[98:99]
        s_load_dwordx2 s[66:67], s[0:1], 88
        s_lshl_b32 s97, s96, 3
        s_add_u32 s97, s97, {TL + kid*8192}
        v_mov_b32 v2, s97
        s_waitcnt lgkmcnt(0)
        v_mov_b32 v0, s94
        v_mov_b32 v1, s98
        global_atomic_umax v2, v1, s[66:67] offset:4
        global_store_dword v2, v0, s[66:67]
        """)


def code_pf(k, tag, target, wg_sgpr, vt, wave_sgpr=None, wave=0):
    if wave_sgpr is not None:
        k(f"s_cmp_lg_u32 s{wave_sgpr}, {wave}")
        k(f"s_cbranch_scc1 {tag}_nocpf")
    k("s_getpc_b64 s[86:87]")
    k.label(f"{tag}_cpc")
    k(f"""
    s_add_u32 s86, s86, {target}-{tag}_cpc
    s_addc_u32 s87, s87, 0
    s_lshr_b32 s88, s{wg_sgpr}, 3
    s_lshl_b32 s88, s88, 13
    v_and_b32 v{vt}, 63, v0
    v_lshlrev_b32 v{vt}, 7, v{vt}
    v_add_u32 v{vt}, s88, v{vt}
    v_min_u32 v{vt}, {target}_end-{target}-4, v{vt}
    global_load_dword v{vt}, v{vt}, s[86:87]
    """)
    if wave_sgpr is not None:
        k.label(f"{tag}_nocpf")


def bf16_round(k, dst, src, tmp=None):
    k(f"v_cvt_pk_bf16_f32 v{dst}, v{src}, v{src}")
    k(f"v_lshlrev_b32 v{dst}, 16, v{dst}")


K0_MOD, K0_XN, K0_WQ, K0_WO = 108, 64, 144, 54
K0_GRID = K0_MOD + K0_XN + K0_WQ + K0_WO


def pack_chunk(k, srd_src, rowstride, zero_hi_mask_sgpr=None):
    for r in range(8):
        k(f"s_mov_b32 s{24+r}, {r*rowstride}")
    for r in range(8):
        k(f"buffer_load_dwordx2 v[{16+2*r}:{17+2*r}], v10, s[{srd_src}:{srd_src+3}], s{24+r} offen")
    k("s_mov_b32 s32, 0x05040100")
    k("s_mov_b32 s33, 0x07060302")
    k("s_waitcnt vmcnt(0)")
    if zero_hi_mask_sgpr is not None:
        for r in range(8):
            k(f"v_cndmask_b32 v{17+2*r}, v{17+2*r}, 0, s[{zero_hi_mask_sgpr}:{zero_hi_mask_sgpr+1}]")
    for j in range(4):
        d = j >> 1
        sel = 32 + (j & 1)
        for q in range(4):
            lo = 16 + 2 * (2 * q) + d
            hi = 16 + 2 * (2 * q + 1) + d
            k(f"v_perm_b32 v{32+4*j+q}, v{hi}, v{lo}, s{sel}")
    for j in range(4):
        k(f"buffer_store_dwordx4 v[{32+4*j}:{35+4*j}], v11, s[12:15], 0 offen offset:{16*j}")


def gen_k0():
    k = K("prep_kernel")
    tl_start(k)
    k(f"""
    s_cmp_ge_u32 s2, {K0_GRID}
    s_cbranch_scc1 k0_done
    s_load_dwordx2 s[4:5], s[0:1], 0
    s_load_dwordx4 s[16:19], s[0:1], 8
    s_load_dwordx4 s[20:23], s[0:1], 56
    s_load_dwordx2 s[6:7], s[0:1], 88
    v_and_b32 v1, 63, v0
    v_lshrrev_b32 v2, 6, v0
    s_waitcnt lgkmcnt(0)
    """)
    srd(k, 12, 6, WS_BYTES)
    k(f"""
    v_readfirstlane_b32 s3, v2
    s_cmp_ge_u32 s2, {K0_MOD}
    s_cbranch_scc1 k0_not_mod
    """)
    k("""
    v_and_b32 v3, 3, v0
    v_lshrrev_b32 v4, 2, v0
    v_mul_u32_u24 v5, 6912, v4
    v_lshl_add_u32 v5, v3, 4, v5
    s_lshl_b32 s10, s2, 6
    v_add_u32 v5, s10, v5
    v_lshlrev_b32 v6, 1, v4
    """)
    for i in range(9):
        k(f"global_load_ushort v{60+i}, v6, s[20:21] offset:{128*i}")
    for i in range(9):
        k(f"global_load_dwordx4 v[{16+4*i}:{19+4*i}], v5, s[22:23]")
        if i < 8:
            k(f"v_add_u32 v5, {64*6912}, v5")
    for j in range(8):
        k(f"v_mov_b32 v{80+j}, 0")
    k("s_waitcnt vmcnt(9)")
    for i in range(9):
        c = 60 + i
        k(f"""
        v_lshlrev_b32 v{c}, 16, v{c}
        v_mul_f32 v70, 0xbfb8aa3b, v{c}
        v_exp_f32 v70, v70
        v_add_f32 v70, 1.0, v70
        v_rcp_f32 v70, v70
        v_mul_f32 v{c}, v{c}, v70
        """)
        bf16_round(k, c, c)
    for i in range(9):
        k(f"s_waitcnt vmcnt({8-i})")
        for q in range(4):
            w = 16 + 4 * i + q
            k(f"""
            v_lshlrev_b32 v71, 16, v{w}
            v_and_b32 v72, 0xffff0000, v{w}
            v_fmac_f32 v{80+2*q}, v{60+i}, v71
            v_fmac_f32 v{81+2*q}, v{60+i}, v72
            """)
    k("""
    v_lshlrev_b32 v7, 5, v0
    ds_write_b128 v7, v[80:83]
    ds_write_b128 v7, v[84:87] offset:16
    s_waitcnt lgkmcnt(0)
    s_barrier
    v_and_b32 v8, 31, v0
    v_lshrrev_b32 v9, 5, v0
    v_lshlrev_b32 v10, 10, v9
    v_lshl_add_u32 v10, v8, 2, v10
    """)
    for i in range(8):
        k(f"ds_read_b32 v{16+i}, v10 offset:{128*i}")
    k("s_waitcnt lgkmcnt(0)")
    k("""
    v_add_f32 v16, v16, v17
    v_add_f32 v18, v18, v19
    v_add_f32 v20, v20, v21
    v_add_f32 v22, v22, v23
    v_add_f32 v16, v16, v18
    v_add_f32 v20, v20, v22
    v_add_f32 v16, v16, v20
    v_lshlrev_b32 v11, 2, v0
    ds_write_b32 v11, v16 offset:8192
    s_waitcnt lgkmcnt(0)
    s_barrier
    v_cmp_gt_u32 vcc, 32, v0
    s_and_saveexec_b64 s[36:37], vcc
    s_cbranch_execz k0_done
    """)
    for i in range(8):
        k(f"ds_read_b32 v{16+i}, v11 offset:{8192+128*i}")
    k("s_waitcnt lgkmcnt(0)")
    k("""
    v_add_f32 v16, v16, v17
    v_add_f32 v18, v18, v19
    v_add_f32 v20, v20, v21
    v_add_f32 v22, v22, v23
    v_add_f32 v16, v16, v18
    v_add_f32 v20, v20, v22
    v_add_f32 v16, v16, v20
    """)
    bf16_round(k, 16, 16)
    k("""
    s_mov_b32 s11, 0
    s_cmp_ge_u32 s2, 18
    s_cselect_b32 s24, 1, 0
    s_cmp_lt_u32 s2, 36
    s_cselect_b32 s25, 1, 0
    s_and_b32 s24, s24, s25
    s_cmp_ge_u32 s2, 72
    s_cselect_b32 s25, 1, 0
    s_cmp_lt_u32 s2, 90
    s_cselect_b32 s26, 1, 0
    s_and_b32 s25, s25, s26
    s_or_b32 s24, s24, s25
    s_cmp_eq_u32 s24, 0
    s_cbranch_scc1 k0_mod_store
    v_add_f32 v16, 1.0, v16
    """)
    bf16_round(k, 16, 16)
    k.label("k0_mod_store")
    k(f"""
    s_lshl_b32 s10, s2, 7
    v_add_u32 v11, s10, v11
    buffer_store_dword v16, v11, s[12:15], 0 offen offset:{MOD}
    s_cmp_lt_u32 s2, 54
    s_cbranch_scc1 k0_done
    s_cmp_ge_u32 s2, 90
    s_cbranch_scc1 k0_done
    """)
    k(f"""
    s_sub_u32 s24, s2, 54
    s_sub_u32 s25, s2, 72
    s_cmp_ge_u32 s2, 72
    s_cselect_b32 s24, s25, s24
    s_cselect_b32 s25, 0, 16
    s_lshl_b32 s26, s24, 1
    v_lshrrev_b32 v12, 4, v0
    v_add_u32 v12, s26, v12
    v_mul_u32_u24 v13, 57, v12
    v_lshrrev_b32 v13, 9, v13
    v_mul_u32_u24 v14, 9, v13
    v_sub_u32 v14, v12, v14
    v_lshrrev_b32 v15, 1, v13
    v_mul_u32_u24 v15, 9, v15
    v_and_b32 v17, 1, v13
    v_lshrrev_b32 v18, 1, v14
    v_lshl_add_u32 v18, v17, 2, v18
    v_and_b32 v19, 1, v14
    v_cmp_eq_u32 vcc, 8, v14
    v_cndmask_b32 v18, v18, 8, vcc
    v_cndmask_b32 v19, v19, v17, vcc
    v_add_u32 v15, v15, v18
    v_lshlrev_b32 v12, 7, v15
    v_bfe_u32 v13, v0, 2, 2
    v_lshl_add_u32 v12, v13, 5, v12
    v_lshl_add_u32 v12, v19, 3, v12
    v_and_b32 v13, 3, v0
    v_lshl_add_u32 v12, v13, 1, v12
    s_add_u32 s25, s25, {GSB}
    v_lshrrev_b32 v16, 16, v16
    buffer_store_short v16, v12, s[12:15], s25 offen
    s_branch k0_done
    """)
    k.label("k0_not_mod")
    k(f"""
    s_sub_u32 s2, s2, {K0_MOD}
    s_cmp_ge_u32 s2, {K0_XN}
    s_cbranch_scc1 k0_not_xn
    """)
    (lambda *a: None)(k, "k0", "qkv_attn_kernel", 2, 15, 3, 3)
    k("""
    s_lshl_b32 s10, s2, 2
    s_add_u32 s10, s10, s3
    s_lshl_b32 s10, s10, 3
    v_lshrrev_b32 v3, 3, v1
    v_add_u32 v3, s10, v3
    v_and_b32 v4, 7, v1
    v_mul_u32_u24 v5, 1152, v3
    v_lshl_add_u32 v5, v4, 4, v5
    """)
    for i in range(9):
        k(f"global_load_dwordx4 v[{16+4*i}:{19+4*i}], v5, s[4:5] offset:{128*i}")
    k(f"""
    v_lshrrev_b32 v6, 4, v3
    v_mul_u32_u24 v6, {18*1024}, v6
    v_and_b32 v7, 15, v3
    v_lshl_add_u32 v6, v7, 4, v6
    v_lshrrev_b32 v7, 2, v4
    v_lshl_add_u32 v6, v7, 10, v6
    v_and_b32 v7, 3, v4
    v_lshl_add_u32 v6, v7, 8, v6
    v_add_u32 v6, {XN}, v6
    v_mov_b32 v8, 0
    v_mov_b32 v9, 0
    """)
    for i in range(9):
        k(f"s_waitcnt vmcnt({8-i})")
        for q in range(4):
            w = 16 + 4 * i + q
            d = 64 + 8 * i + 2 * q
            k(f"v_lshlrev_b32 v{d}, 16, v{w}")
            k(f"v_and_b32 v{d+1}, 0xffff0000, v{w}")
        for q in range(4):
            d = 64 + 8 * i + 2 * q
            k(f"v_pk_add_f32 v[8:9], v[8:9], v[{d}:{d+1}]")

    def red8(r):
        k(f"v_add_f32_dpp v{r}, v{r}, v{r} quad_perm:[1,0,3,2] row_mask:0xf bank_mask:0xf")
        k(f"v_add_f32_dpp v{r}, v{r}, v{r} quad_perm:[2,3,0,1] row_mask:0xf bank_mask:0xf")
        k(f"v_add_f32_dpp v{r}, v{r}, v{r} row_half_mirror row_mask:0xf bank_mask:0xf")

    k("v_add_f32 v8, v8, v9")
    red8(8)
    k(f"v_mul_f32 v10, 0x3ae38e39, v8")
    k("v_mov_b32 v11, v10")
    k("v_mov_b32 v8, 0")
    k("v_mov_b32 v9, 0")
    for e in range(36):
        d = 64 + 2 * e
        k(f"v_pk_add_f32 v[12:13], v[{d}:{d+1}], v[10:11] neg_lo:[0,1] neg_hi:[0,1]")
        k(f"v_pk_fma_f32 v[8:9], v[12:13], v[12:13], v[8:9]")
    k("v_add_f32 v8, v8, v9")
    red8(8)
    k(f"v_mul_f32 v8, 0x3ae38e39, v8")
    bf16_round(k, 8, 8)
    k("v_add_f32 v8, 0x3727c5ac, v8")
    bf16_round(k, 8, 8)
    k("v_sqrt_f32 v8, v8")
    bf16_round(k, 8, 8)
    k("v_rcp_f32 v8, v8")
    bf16_round(k, 10, 10)
    k("v_mov_b32 v11, v10")
    k("v_mov_b32 v9, v8")
    for i in range(9):
        for q in range(4):
            d = 64 + 8 * i + 2 * q
            k(f"""
            v_pk_add_f32 v[12:13], v[{d}:{d+1}], v[10:11] neg_lo:[0,1] neg_hi:[0,1]
            v_cvt_pk_bf16_f32 v14, v12, v13
            v_lshlrev_b32 v12, 16, v14
            v_and_b32 v13, 0xffff0000, v14
            v_pk_mul_f32 v[12:13], v[12:13], v[8:9]
            v_cvt_pk_bf16_f32 v{16+4*i+q}, v12, v13
            """)
        k(f"buffer_store_dwordx4 v[{16+4*i}:{19+4*i}], v6, s[12:15], 0 offen offset:{(2*i*1024) % 4096}")
        if i % 2 == 1:
            k("v_add_u32 v6, 4096, v6")
    k("s_branch k0_done")
    k.label("k0_not_xn")
    k(f"""
    s_sub_u32 s2, s2, {K0_XN}
    s_cmp_ge_u32 s2, {K0_WQ}
    s_cbranch_scc1 k0_not_wq
    """)
    srd(k, 8, 16, 576 * 1728 * 2)
    k(f"""
    s_lshl_b32 s10, s2, 2
    s_add_u32 s34, s10, s3
    s_mov_b32 s10, {576*1728*2}
    s_and_b32 s35, s34, 7
    s_lshr_b32 s38, s34, 3
    v_cmp_gt_u32 vcc, 60, v1
    s_and_saveexec_b64 s[36:37], vcc
    v_mul_u32_u24 v3, 13, v1
    v_lshrrev_b32 v3, 8, v3
    v_mul_u32_u24 v4, 20, v3
    v_sub_u32 v4, v1, v4
    v_mul_u32_u24 v5, 13, v4
    v_lshrrev_b32 v5, 6, v5
    v_mul_u32_u24 v6, 5, v5
    v_sub_u32 v6, v4, v6
    v_cmp_eq_u32 s[40:41], 4, v6
    v_mul_u32_u24 v10, 1152, v3
    v_mul_u32_u24 v7, 36, v5
    v_add_u32 v10, v10, v7
    v_lshl_add_u32 v10, v6, 3, v10
    s_mul_i32 s39, s35, 144
    s_mul_i32 s42, s38, {8*3456}
    s_add_u32 s39, s39, s42
    v_add_u32 v10, s39, v10
    """)
    k(f"""
    v_lshrrev_b32 v7, 2, v1
    v_mul_u32_u24 v11, {18*1024}, v7
    v_and_b32 v7, 3, v1
    v_lshl_add_u32 v11, v7, 6, v11
    s_mul_i32 s39, s35, {16*18*1024}
    s_lshr_b32 s42, s38, 2
    s_lshl_b32 s42, s42, 10
    s_add_u32 s39, s39, s42
    s_and_b32 s42, s38, 3
    s_lshl_b32 s42, s42, 8
    s_add_u32 s39, s39, s42
    s_add_u32 s39, s39, {WQ}
    v_add_u32 v11, s39, v11
    """)
    pack_chunk(k, 8, 3456, zero_hi_mask_sgpr=40)
    k("s_branch k0_done")
    k.label("k0_not_wq")
    k(f"s_sub_u32 s2, s2, {K0_WQ}")
    srd(k, 8, 18, 576 * 576 * 2)
    k(f"""
    s_lshl_b32 s34, s2, 2
    s_add_u32 s34, s34, s3
    s_mul_hi_u32 s38, s34, 0x55555556
    s_mul_i32 s35, s38, 3
    s_sub_u32 s35, s34, s35
    v_cmp_gt_u32 vcc, 48, v1
    s_and_saveexec_b64 s[36:37], vcc
    s_mul_i32 s39, s35, 48
    v_add_u32 v3, s39, v1
    v_lshlrev_b32 v10, 3, v3
    s_mul_i32 s42, s38, {8*1152}
    v_add_u32 v10, s42, v10
    v_lshrrev_b32 v7, 2, v3
    v_mul_u32_u24 v11, {18*1024}, v7
    v_and_b32 v7, 3, v3
    v_lshl_add_u32 v11, v7, 6, v11
    s_lshr_b32 s42, s38, 2
    s_lshl_b32 s39, s42, 10
    s_and_b32 s42, s38, 3
    s_lshl_b32 s42, s42, 8
    s_add_u32 s39, s39, s42
    s_add_u32 s39, s39, {WOP}
    v_add_u32 v11, s39, v11
    """)
    pack_chunk(k, 8, 1152)
    k.label("k0_done")
    tl_end(k, 0)
    k("s_endpgm")
    return k, 136, 9216 + 256


K1_QB = 92160
K1_TS = 488
K1_ML = K1_QB + 80 * K1_TS
K1_LDS = K1_ML + 4608


def gen_k1():
    k = K("qkv_attn_kernel")
    tl_start(k)
    TS = K1_TS
    QB = K1_QB
    k(f"""
    s_cmp_ge_u32 s2, 256
    s_cbranch_scc1 k1_done
    s_load_dwordx2 s[6:7], s[0:1], 88
    s_load_dwordx4 s[16:19], s[0:1], 32
    s_load_dwordx2 s[8:9], s[0:1], 48
    v_and_b32 v1, 63, v0
    v_lshrrev_b32 v2, 6, v0
    v_lshlrev_b32 v3, 4, v1
    v_lshrrev_b32 v4, 4, v1
    v_readfirstlane_b32 s3, v2
    s_and_b32 s4, s2, 1
    s_lshl_b32 s4, s4, 2
    s_bfe_u32 s31, s2, 0x20003
    s_add_u32 s4, s4, s31
    s_bfe_u32 s5, s2, 0x20001
    s_lshl_b32 s5, s5, 3
    s_lshr_b32 s31, s2, 5
    s_add_u32 s5, s5, s31
    v_lshlrev_b32 v5, 5, v4
    s_waitcnt lgkmcnt(0)
    """)
    stamp(k, 0)
    srd(k, 12, 6, WS_BYTES)
    k(f"""
    s_mul_i32 s31, s3, 576
    s_add_u32 s32, s31, {K1_ML}
    s_mov_b32 m0, s32
    s_mov_b32 exec_hi, 0xf
    buffer_load_dwordx4 v3, s[12:15], s31 offen lds
    s_mov_b64 exec, -1
    """)
    k("""
    s_lshl_b32 s23, s5, 2
    s_sub_u32 s24, s23, 1
    s_max_i32 s24, s24, 0
    """)
    for i in range(5):
        if i == 0:
            k(f"s_mul_i32 s25, s24, {18*1024}")
            k(f"s_add_u32 s25, s25, {XN}")
        else:
            k(f"s_add_u32 s30, s23, {i-1}")
            k(f"s_mul_i32 s{25+i}, s30, {18*1024}")
            k(f"s_add_u32 s{25+i}, s{25+i}, {XN}")
    k("s_lshl_b32 s20, s3, 10")
    k("s_add_u32 s21, s20, 8192")
    for j in range(2):
        for i in range(5):
            x = 64 + 20 * j + 4 * i
            k(f"s_add_u32 s34, s{25+i}, s{20+j}")
            k(f"buffer_load_dwordx4 v[{x}:{x+3}], v3, s[12:15], s34 offen")
    k("""
    s_add_u32 s36, s3, 8
    s_cmp_lt_u32 s3, 2
    s_cselect_b32 s36, s36, s3
    s_mov_b32 s35, s3
    """)
    for e in range(2):
        k(f"""
        s_cmp_ge_u32 s{35+e}, 5
        s_cselect_b32 s{44+e}, 17, 16
        s_cselect_b32 s37, 5, 0
        s_sub_u32 s{46+e}, s{35+e}, s37
        s_add_u32 s37, s23, s{46+e}
        s_sub_u32 s37, s37, 1
        s_max_i32 s37, s37, 0
        s_mul_i32 s37, s37, 18
        s_add_u32 s37, s37, s{44+e}
        s_lshl_b32 s37, s37, 10
        s_add_u32 s37, s37, {XN}
        buffer_load_dwordx4 v[{104+4*e}:{107+4*e}], v3, s[12:15], s37 offen
        """)
    k("s_waitcnt vmcnt(12)")
    k("s_barrier")
    k(f"""
    s_lshl_b32 s40, s4, 4
    s_lshl_b32 s41, s3, 1
    s_add_u32 s42, s41, 1
    s_min_u32 s42, s42, 14
    s_add_u32 s41, s41, s40
    s_add_u32 s42, s42, s40
    s_mul_i32 s41, s41, {18*1024}
    s_mul_i32 s42, s42, {18*1024}
    s_add_u32 s41, s41, {WQ}
    s_add_u32 s42, s42, {WQ}
    """)

    NAS = 10

    def areg(kk, tt):
        return 124 + 8 * (kk % NAS) + 4 * tt

    def load_a(kk):
        if kk % 4 == 0 and kk > 0:
            k("s_add_u32 s41, s41, 4096")
            k("s_add_u32 s42, s42, 4096")
        for tt in range(2):
            a = areg(kk, tt)
            k(f"buffer_load_dwordx4 v[{a}:{a+3}], v3, s[12:15], s{41+tt} offen offset:{(kk%4)*1024}")

    k(f"s_lshl_b32 s31, s3, 7")
    k(f"v_add_u32 v6, s31, v5")
    k(f"s_lshl_b32 s31, s44, 7")
    k(f"v_add_u32 v7, s31, v5")
    k(f"s_lshl_b32 s31, s45, 7")
    k(f"v_add_u32 v11, s31, v5")
    k(f"v_add_u32 v6, {K1_ML}, v6")
    k(f"v_add_u32 v7, {K1_ML}, v7")
    k(f"v_add_u32 v11, {K1_ML}, v11")
    for j, (va, off) in enumerate(((6, 0), (6, 1024), (7, 0), (11, 0))):
        b = 16 + 16 * j if j < 3 else 208
        k(f"ds_read_b128 v[{b}:{b+3}], v{va} offset:{off + 2304}")
        k(f"ds_read_b128 v[{b+4}:{b+7}], v{va} offset:{off + 2304 + 16}")
        k(f"ds_read_b128 v[{b+8}:{b+11}], v{va} offset:{off}")
        k(f"ds_read_b128 v[{b+12}:{b+15}], v{va} offset:{off + 16}")

    def xform(x, b):
        T = 224
        for q in range(4):
            k(f"v_lshlrev_b32 v{T+2*q}, 16, v{x+q}")
            k(f"v_and_b32 v{T+2*q+1}, 0xffff0000, v{x+q}")
        for q in range(4):
            k(f"v_pk_mul_f32 v[{T+2*q}:{T+2*q+1}], v[{T+2*q}:{T+2*q+1}], v[{b+2*q}:{b+2*q+1}]")
        for q in range(4):
            k(f"v_cvt_pk_bf16_f32 v{T+8+q}, v{T+2*q}, v{T+2*q+1}")
        for q in range(4):
            k(f"v_lshlrev_b32 v{T+2*q}, 16, v{T+8+q}")
            k(f"v_and_b32 v{T+2*q+1}, 0xffff0000, v{T+8+q}")
        for q in range(4):
            k(f"v_pk_add_f32 v[{T+2*q}:{T+2*q+1}], v[{T+2*q}:{T+2*q+1}], v[{b+8+2*q}:{b+8+2*q+1}]")
        for q in range(4):
            k(f"v_cvt_pk_bf16_f32 v{x+q}, v{T+2*q}, v{T+2*q+1}")

    k("s_waitcnt lgkmcnt(0)")
    nw = 0
    for f in range(12):
        if f < 10:
            j, i = divmod(f, 5)
            x = 64 + 20 * j + 4 * i
            b = 16 + 16 * j
            if i == 0:
                k(f"v_add_u32 v6, s{20+j}, v3")
                k(f"v_add_u32 v7, 18432, v6")
        else:
            e = f - 10
            x = 104 + 4 * e
            b = 48 if e == 0 else 208
            k(f"""
            s_mul_i32 s37, s{46+e}, 18
            s_add_u32 s37, s37, s{44+e}
            s_lshl_b32 s37, s37, 10
            v_add_u32 v6, s37, v3
            """)
        k(f"s_waitcnt vmcnt({(11 - f) + 2 * nw})")
        xform(x, b)
        if f < 10:
            if i < 4:
                k(f"ds_write_b128 v6, v[{x}:{x+3}] offset:{i*18432}")
            else:
                k(f"ds_write_b128 v7, v[{x}:{x+3}] offset:{3*18432}")
        else:
            k(f"ds_write_b128 v6, v[{x}:{x+3}]")
        if nw < NAS - 1 and f >= 2:
            load_a(nw)
            nw += 1
    k("s_waitcnt lgkmcnt(0)")
    stamp(k, 1)
    k("s_barrier")
    stamp(k, 2)
    k("v_add_u32 v6, 55296, v3")

    def breg(kk, i):
        return 56 + 20 * (kk & 1) + 4 * i

    def read_b(kk):
        for i in range(5):
            b = breg(kk, i)
            if i < 3:
                k(f"ds_read_b128 v[{b}:{b+3}], v3 offset:{i*18432 + kk*1024}")
            else:
                k(f"ds_read_b128 v[{b}:{b+3}], v6 offset:{(i-3)*18432 + kk*1024}")

    def acc(tt, i):
        return 16 + 20 * tt + 4 * i

    read_b(0)
    for kk in range(18):
        if kk < 17:
            read_b(kk + 1)
        if nw < 18:
            load_a(nw)
            nw += 1
        k(f"s_waitcnt vmcnt({2 * (nw - 1 - kk)})")
        k(f"s_waitcnt lgkmcnt({5 if kk < 17 else 0})")
        for i in range(5):
            for tt in range(2):
                a = areg(kk, tt); b = breg(kk, i); c = acc(tt, i)
                cs = "0" if kk == 0 else f"v[{c}:{c+3}]"
                k(f"v_mfma_f32_16x16x32_bf16 v[{c}:{c+3}], v[{a}:{a+3}], v[{b}:{b+3}], {cs}")
    stamp(k, 3)
    k(f"""
    v_and_b32 v6, 15, v1
    v_mul_u32_u24 v6, {TS}, v6
    v_lshl_add_u32 v6, v4, 3, v6
    s_lshl_b32 s31, s3, 6
    s_add_u32 s31, s31, {QB}
    v_add_u32 v6, s31, v6
    """)
    for tt in range(2):
        if tt == 1:
            k("s_cmp_eq_u32 s3, 7")
            k("s_cbranch_scc1 k1_skip_t1")
        for i in range(5):
            c = acc(tt, i)
            k(f"v_cvt_pk_bf16_f32 v{60+2*i}, v{c}, v{c+1}")
            k(f"v_cvt_pk_bf16_f32 v{61+2*i}, v{c+2}, v{c+3}")
            k(f"ds_write_b64 v6, v[{60+2*i}:{61+2*i}] offset:{i*16*TS + tt*32}")
    k.label("k1_skip_t1")
    k("s_waitcnt lgkmcnt(0)")
    k("s_barrier")
    stamp(k, 4)
    (lambda *a: None)(k, "k1", "wo_kernel", 2, 250, 3, 7)

    k(f"""
    v_and_b32 v6, 1, v1
    v_bfe_u32 v7, v1, 1, 2
    v_lshrrev_b32 v8, 3, v1
    s_lshl_b32 s31, s3, 3
    v_add_u32 v8, s31, v8
    v_mul_u32_u24 v9, {TS}, v8
    v_mul_u32_u24 v10, 40, v7
    v_add_u32 v9, v9, v10
    v_add_u32 v9, {QB + 16*TS}, v9
    v_mul_u32_u24 v10, {8*TS}, v6
    v_sub_u32 v11, v9, v10
    v_add_u32 v12, {160 - 6*TS}, v11
    v_lshl_add_u32 v13, v6, 4, v11
    v_add_u32 v13, {320 - 6*TS}, v13
    v_add_u32 v14, v9, v10
    v_lshl_add_u32 v14, v6, 4, v14
    v_add_u32 v14, {320 - 14*TS}, v14
    """)
    for j in range(5):
        k(f"ds_read_b64 v[{16+2*j}:{17+2*j}], v9 offset:{8*j}")
    for u in range(4):
        for j in range(5):
            r = 32 + 10 * u + 2 * j
            k(f"ds_read_b64 v[{r}:{r+1}], v12 offset:{(3-u)*2*TS + 8*j}")
    for u in range(4):
        for j in range(3):
            r = 80 + 6 * u + 2 * j
            k(f"ds_read_b64 v[{r}:{r+1}], v13 offset:{(3-u)*2*TS + 8*j}")
    for u in range(4):
        for j in range(3):
            r = 104 + 6 * u + 2 * j
            k(f"ds_read_b64 v[{r}:{r+1}], v14 offset:{(3-u)*2*TS + 8*j}")
    k(f"""
    s_lshl_b32 s31, s5, 6
    v_add_u32 v15, s31, v8
    v_lshlrev_b32 v26, 3, v6
    v_sub_u32 v15, v15, v26
    v_mov_b32 v27, 0xce6e6b28
    s_waitcnt lgkmcnt(15)
    """)
    k("s_waitcnt lgkmcnt(0)")
    stamp(k, 5)
    for j in range(9):
        for u in range(4):
            src = "0" if j == 0 else f"v{28+u}"
            k(f"v_dot2_f32_bf16 v{28+u}, v{16+j}, v{32+10*u+j}, {src}")
    for u in range(4):
        bf16_round(k, 28 + u, 28 + u)
        k(f"v_mul_f32 v{28+u}, 0x3e715bef, v{28+u}")
        bf16_round(k, 28 + u, 28 + u)
        k(f"v_cmp_gt_i32 vcc, {2*u}, v15")
        k(f"v_cndmask_b32 v{28+u}, v{28+u}, v27, vcc")
    for u in range(4):
        k(f"v_mov_b32_dpp v{32+u}, v{28+u} quad_perm:[1,0,3,2] row_mask:0xf bank_mask:0xf")
    k("""
    v_max3_f32 v36, v28, v29, v30
    v_max3_f32 v36, v36, v31, v32
    v_max3_f32 v36, v36, v33, v34
    v_max_f32 v36, v36, v35
    """)
    for u in range(8):
        k(f"v_sub_f32 v{28+u}, v{28+u}, v36")
        k(f"v_mul_f32 v{28+u}, {LOG2E}, v{28+u}")
        k(f"v_exp_f32 v{28+u}, v{28+u}")
    k("""
    v_add_f32 v36, v28, v29
    v_add_f32 v37, v30, v31
    v_add_f32 v38, v32, v33
    v_add_f32 v39, v34, v35
    v_add_f32 v36, v36, v37
    v_add_f32 v38, v38, v39
    v_add_f32 v36, v36, v38
    v_rcp_f32 v36, v36
    """)
    for u in range(8):
        k(f"v_mul_f32 v{28+u}, v{28+u}, v36")
        k(f"v_cvt_pk_bf16_f32 v{40+u}, v{28+u}, 0")
        k(f"v_lshlrev_b32 v{48+u}, 16, v{40+u}")
    for u in range(8):
        vb = (80 + 6 * u) if u < 4 else (104 + 6 * (u - 4))
        for j in range(5):
            s0 = "0" if u == 0 else f"v{60+2*j}"
            s1 = "0" if u == 0 else f"v{61+2*j}"
            k(f"v_dot2_f32_bf16 v{60+2*j}, v{vb+j}, v{40+u}, {s0}")
            k(f"v_dot2_f32_bf16 v{61+2*j}, v{vb+j}, v{48+u}, {s1}")
    k(f"""
    v_mul_u32_u24 v9, 160, v8
    v_mul_u32_u24 v10, 36, v7
    v_add_u32 v9, v9, v10
    v_lshl_add_u32 v9, v6, 4, v9
    """)
    for j in range(5):
        k(f"v_cvt_pk_bf16_f32 v{70+j}, v{60+2*j}, v{61+2*j}")
        k(f"ds_write_b32 v9, v{70+j} offset:{4*j}")
    k("s_waitcnt lgkmcnt(0)")
    stamp(k, 6)
    k("s_barrier")
    stamp_flush(k, 7, 3, "k1")
    k(f"""
    v_mul_u32_u24 v6, 160, v1
    s_lshl_b32 s31, s3, 4
    v_add_u32 v6, s31, v6
    ds_read_b128 v[16:19], v6
    ds_read_b128 v[20:23], v6 offset:128
    v_mul_u32_u24 v7, {18*1024}, v4
    v_and_b32 v8, 15, v1
    v_lshl_add_u32 v7, v8, 4, v7
    s_mul_i32 s31, s5, {4*18*1024}
    s_mul_i32 s32, s4, 9
    s_add_u32 s32, s32, s3
    s_lshl_b32 s32, s32, 8
    s_add_u32 s31, s31, s32
    s_add_u32 s31, s31, {OO}
    s_waitcnt lgkmcnt(0)
    buffer_store_dwordx4 v[16:19], v7, s[12:15], s31 offen
    s_cmp_lg_u32 s3, 0
    s_cbranch_scc1 k1_done
    buffer_store_dwordx4 v[20:23], v7, s[12:15], s31 offen offset:2048
    """)
    k.label("k1_done")
    tl_end(k, 1)
    k("s_endpgm")
    return k, 256, K1_LDS


K2_GRID = 256
K2_YL = 36864 + 2304
K2_LDS = K2_YL + 10240


def gen_k2():
    k = K("wo_kernel")
    tl_start(k)
    k(f"""
    s_cmp_ge_u32 s2, {K2_GRID}
    s_cbranch_scc1 k2_done
    s_load_dwordx2 s[4:5], s[0:1], 0
    s_load_dwordx4 s[16:19], s[0:1], 32
    s_load_dwordx2 s[6:7], s[0:1], 88
    v_and_b32 v1, 63, v0
    v_lshrrev_b32 v2, 6, v0
    v_lshlrev_b32 v3, 4, v1
    v_lshrrev_b32 v4, 4, v1
    v_readfirstlane_b32 s3, v2
    s_waitcnt lgkmcnt(0)
    """)
    srd(k, 12, 6, WS_BYTES)
    k(f"""
    s_and_b32 s20, s2, 7
    s_lshl_b32 s20, s20, 3
    s_bfe_u32 s21, s2, 0x30003
    s_add_u32 s20, s20, s21
    s_lshr_b32 s21, s2, 6
    s_lshl_b32 s24, s20, 1
    s_mul_i32 s25, s21, 9
    s_add_u32 s25, s25, s3
    s_mul_i32 s27, s24, {18*1024}
    s_add_u32 s27, s27, {OO}
    s_lshl_b32 s26, s3, 12
    s_add_u32 s27, s27, s26
    s_mul_i32 s28, s25, {18*1024}
    s_add_u32 s28, s28, {WOP}
    """)
    stamp(k, 0)
    k("s_mov_b32 m0, s26")
    for i in range(4):
        k(f"buffer_load_dwordx4 v3, s[12:15], s27 offen offset:{1024*i} lds")
    for q in range(5):
        k(f"v_add_u32 v{5+q}, {4096*q}, v3")

    def areg(kk):
        return 24 + 4 * (kk % 11)

    def load_a(kk):
        a = areg(kk)
        k(f"buffer_load_dwordx4 v[{a}:{a+3}], v{5+kk//4}, s[12:15], s28 offen offset:{(kk%4)*1024}")

    for kk in range(11):
        load_a(kk)
    k(f"""
    v_and_b32 v10, 15, v1
    s_lshl_b32 s31, s24, 4
    v_add_u32 v10, s31, v10
    v_mul_u32_u24 v11, 1152, v10
    v_lshl_add_u32 v11, v4, 3, v11
    s_lshl_b32 s31, s25, 5
    v_add_u32 v11, s31, v11
    v_add_u32 v13, {16*1152}, v11
    v_lshlrev_b32 v12, 4, v4
    s_lshl_b32 s31, s25, 6
    v_add_u32 v12, s31, v12
    s_mov_b32 s34, {MOD + 2*576*4}
    s_mov_b32 s35, {MOD + 4*576*4}
    global_load_dwordx2 v[14:15], v11, s[4:5]
    global_load_dwordx2 v[16:17], v13, s[4:5]
    buffer_load_dwordx4 v[72:75], v12, s[12:15], s34 offen
    buffer_load_dwordx4 v[76:79], v12, s[12:15], s35 offen
    s_waitcnt vmcnt(15)
    s_barrier
    """)
    stamp(k, 1)

    def breg(kk, tt):
        return 80 + 8 * (kk & 1) + 4 * tt

    def read_b(kk):
        for tt in range(2):
            b = breg(kk, tt)
            k(f"ds_read_b128 v[{b}:{b+3}], v3 offset:{(tt*18 + kk)*1024}")

    accs = [18, 68]
    read_b(0)
    for kk in range(18):
        if kk < 17:
            read_b(kk + 1)
        if kk < 11:
            n_after = (10 - kk) + 4 + min(kk, 7)
        else:
            n_after = 17 - kk
        k(f"s_waitcnt vmcnt({n_after}) lgkmcnt({2 if kk < 17 else 0})")
        a = areg(kk)
        for tt in range(2):
            c = accs[tt]
            b = breg(kk, tt)
            cs = "0" if kk == 0 else f"v[{c}:{c+3}]"
            k(f"v_mfma_f32_16x16x32_bf16 v[{c}:{c+3}], v[{a}:{a+3}], v[{b}:{b+3}], {cs}")
        if kk + 11 < 18:
            load_a(kk + 11)
    stamp(k, 2)
    k(f"""
    s_cmp_ge_u32 s3, 2
    s_cbranch_scc1 k2_nopf
    v_min_u32 v24, 71, v0
    v_cmp_le_u32 vcc, 36, v24
    v_subrev_u32 v25, 36, v24
    v_cndmask_b32 v24, v24, v25, vcc
    v_mul_u32_u24 v25, 57, v24
    v_lshrrev_b32 v25, 9, v25
    v_mul_u32_u24 v26, 9, v25
    v_sub_u32 v26, v24, v26
    v_mul_u32_u24 v25, 9216, v25
    v_lshl_add_u32 v25, v26, 7, v25
    s_lshr_b32 s31, s2, 3
    s_mul_i32 s31, s31, {4*9216}
    s_and_b32 s32, s2, 7
    s_mul_i32 s32, s32, 1152
    s_add_u32 s31, s31, s32
    v_add_u32 v25, s31, v25
    v_mov_b32 v26, s16
    v_mov_b32 v27, s17
    v_mov_b32 v28, s18
    v_mov_b32 v29, s19
    v_cndmask_b32 v26, v26, v28, vcc
    v_cndmask_b32 v27, v27, v29, vcc
    v_add_co_u32 v26, vcc, v26, v25
    v_addc_co_u32 v27, vcc, 0, v27, vcc
    global_load_dword v95, v[26:27], off
    """)
    k.label("k2_nopf")
    (lambda *a: None)(k, "k2", "ffn1_kernel", 2, 94, 3, 8)
    k(f"""
    s_lshr_b32 s33, s3, 1
    s_lshl_b32 s33, s33, 10
    s_and_b32 s32, s3, 1
    s_lshl_b32 s32, s32, 3
    s_add_u32 s33, s33, s32
    s_add_u32 s33, s33, {K2_YL}
    v_add_u32 v6, s33, v3
    s_mul_i32 s36, s24, {144*128}
    s_lshl_b32 s37, s25, 9
    s_add_u32 s36, s36, s37
    s_add_u32 s36, s36, {X1}
    s_add_u32 s37, s36, {144*128}
    v_lshlrev_b32 v7, 3, v1
    """)
    ga, g2 = 72, 76
    for tt in range(2):
        c = accs[tt]
        xr = 14 + 2 * tt
        sm, sq = 40 + 2 * tt, 41 + 2 * tt
        k(f"""
        v_cvt_pk_bf16_f32 v24, v{c}, v{c+1}
        v_cvt_pk_bf16_f32 v25, v{c+2}, v{c+3}
        v_lshlrev_b32 v26, 16, v24
        v_and_b32 v27, 0xffff0000, v24
        v_lshlrev_b32 v28, 16, v25
        v_and_b32 v29, 0xffff0000, v25
        v_pk_mul_f32 v[26:27], v[26:27], v[{ga}:{ga+1}]
        v_pk_mul_f32 v[28:29], v[28:29], v[{ga+2}:{ga+3}]
        v_cvt_pk_bf16_f32 v24, v26, v27
        v_cvt_pk_bf16_f32 v25, v28, v29
        v_lshlrev_b32 v26, 16, v24
        v_and_b32 v27, 0xffff0000, v24
        v_lshlrev_b32 v28, 16, v25
        v_and_b32 v29, 0xffff0000, v25
        v_lshlrev_b32 v30, 16, v{xr}
        v_and_b32 v31, 0xffff0000, v{xr}
        v_lshlrev_b32 v32, 16, v{xr+1}
        v_and_b32 v33, 0xffff0000, v{xr+1}
        v_pk_add_f32 v[26:27], v[26:27], v[30:31]
        v_pk_add_f32 v[28:29], v[28:29], v[32:33]
        v_cvt_pk_bf16_f32 v{34+2*tt}, v26, v27
        v_cvt_pk_bf16_f32 v{35+2*tt}, v28, v29
        v_lshlrev_b32 v26, 16, v{34+2*tt}
        v_and_b32 v27, 0xffff0000, v{34+2*tt}
        v_lshlrev_b32 v28, 16, v{35+2*tt}
        v_and_b32 v29, 0xffff0000, v{35+2*tt}
        v_add_f32 v{sm}, v26, v27
        v_mul_f32 v{sq}, v26, v26
        v_fmac_f32 v{sq}, v27, v27
        v_add_f32 v{sm}, v{sm}, v28
        v_fmac_f32 v{sq}, v28, v28
        v_add_f32 v{sm}, v{sm}, v29
        v_fmac_f32 v{sq}, v29, v29
        v_pk_mul_f32 v[26:27], v[26:27], v[{g2}:{g2+1}]
        v_pk_mul_f32 v[28:29], v[28:29], v[{g2+2}:{g2+3}]
        v_cvt_pk_bf16_f32 v{44+2*tt}, v26, v27
        v_cvt_pk_bf16_f32 v{45+2*tt}, v28, v29
        ds_write_b64 v6, v[{44+2*tt}:{45+2*tt}] offset:{5120*tt}
        buffer_store_dwordx2 v[{34+2*tt}:{35+2*tt}], v7, s[12:15], s{36+tt} offen
        """)
    for r in range(40, 44):
        k(f"v_mov_b32 v{r+8}, v{r}")
    for r in range(40, 44):
        k(f"v_permlane16_swap_b32 v{r}, v{r+8}")
    for r in range(40, 44):
        k(f"v_add_f32 v{r}, v{r}, v{r+8}")
    for r in range(40, 44):
        k(f"v_mov_b32 v{r+8}, v{r}")
    for r in range(40, 44):
        k(f"v_permlane32_swap_b32 v{r}, v{r+8}")
    for r in range(40, 44):
        k(f"v_add_f32 v{r}, v{r}, v{r+8}")
    k(f"""
    v_cmp_gt_u32 vcc, 16, v1
    v_cndmask_b32 v40, v42, v40, vcc
    v_cndmask_b32 v41, v43, v41, vcc
    s_lshl_b32 s31, s3, 8
    s_add_u32 s31, s31, 36864
    v_lshlrev_b32 v5, 3, v1
    v_add_u32 v5, s31, v5
    s_mov_b32 exec_hi, 0
    ds_write_b64 v5, v[40:41]
    s_mov_b64 exec, -1
    s_waitcnt lgkmcnt(0)
    s_barrier
    s_cmp_eq_u32 s3, 0
    s_cbranch_scc1 k2_stats
    """)
    k(f"""
    s_sub_u32 s31, s3, 1
    s_lshr_b32 s32, s31, 2
    s_and_b32 s31, s31, 3
    s_mul_i32 s33, s32, 5120
    s_lshl_b32 s34, s31, 10
    s_add_u32 s33, s33, s34
    s_add_u32 s33, s33, {K2_YL}
    v_add_u32 v6, s33, v3
    ds_read_b128 v[24:27], v6
    s_lshr_b32 s35, s21, 1
    s_mul_i32 s35, s35, 9
    s_and_b32 s36, s21, 1
    s_lshl_b32 s37, s36, 2
    s_add_u32 s37, s37, s35
    s_add_u32 s37, s37, s31
    s_add_u32 s38, s24, s32
    s_mul_i32 s38, s38, 18
    s_add_u32 s37, s37, s38
    s_lshl_b32 s37, s37, 10
    s_add_u32 s37, s37, {YY}
    s_waitcnt lgkmcnt(0)
    buffer_store_dwordx4 v[24:27], v3, s[12:15], s37 offen
    s_cmp_lg_u32 s31, 0
    s_cbranch_scc1 k2_done
    ds_read_b64 v[28:29], v6 offset:4096
    s_add_u32 s37, s35, 8
    s_add_u32 s37, s37, s38
    s_lshl_b32 s37, s37, 10
    s_lshl_b32 s36, s36, 3
    s_add_u32 s37, s37, s36
    s_add_u32 s37, s37, {YY}
    s_waitcnt lgkmcnt(0)
    buffer_store_dwordx2 v[28:29], v3, s[12:15], s37 offen
    s_branch k2_done
    """)
    k.label("k2_stats")
    k("v_lshlrev_b32 v5, 2, v1")
    for w in range(9):
        k(f"ds_read_b32 v{24+w}, v5 offset:{36864 + 256*w}")
    k("s_waitcnt lgkmcnt(0)")
    k("""
    v_add_f32 v24, v24, v25
    v_add_f32 v26, v26, v27
    v_add_f32 v28, v28, v29
    v_add_f32 v30, v30, v31
    v_add_f32 v24, v24, v26
    v_add_f32 v28, v28, v30
    v_add_f32 v24, v24, v32
    v_add_f32 v24, v24, v28
    """)
    k(f"""
    s_lshl_b32 s31, s21, 14
    s_lshl_b32 s32, s24, 7
    s_add_u32 s31, s31, s32
    s_add_u32 s31, s31, {STAT}
    buffer_store_dword v24, v5, s[12:15], s31 offen
    """)
    stamp(k, 3)
    stamp_flush(k, 4, 3, "k2", 90)
    k.label("k2_done")
    tl_end(k, 2)
    k("s_endpgm")
    return k, 96, K2_LDS


K3_R = 8
K3_ST = 18432
K3_GSL = K3_R * K3_ST
K3_GBL = K3_GSL + 2304
K3_LDS = K3_GBL + 2304 + 16


class VM:
    def __init__(self):
        self.ops = []

    def add(self, tag, n=1):
        self.ops += [tag] * n

    def need(self, *tags):
        last = max((i for i, t in enumerate(self.ops) if t in tags), default=-1)
        return len(self.ops) - 1 - last


def gen_k3():
    k = K("ffn1_kernel")
    tl_start(k)
    R, ST = K3_R, K3_ST
    LA = PRM.get("LA", 4)
    NA = 6
    S, D, DY = PRM.get("S", 3), 4, 4
    k(f"""
    s_cmp_ge_u32 s2, 256
    s_cbranch_scc1 k3_done
    s_load_dwordx4 s[16:19], s[0:1], 32
    s_load_dwordx2 s[56:57], s[0:1], 48
    s_load_dwordx2 s[6:7], s[0:1], 88
    v_and_b32 v1, 63, v0
    v_lshrrev_b32 v2, 6, v0
    v_lshlrev_b32 v3, 4, v1
    v_lshrrev_b32 v4, 4, v1
    v_readfirstlane_b32 s3, v2
    s_and_b32 s20, s2, 7
    s_lshl_b32 s20, s20, 2
    s_bfe_u32 s21, s2, 0x20003
    s_add_u32 s20, s20, s21
    s_lshr_b32 s21, s2, 5
    s_waitcnt lgkmcnt(0)
    """)
    stamp(k, 0)
    if DIAG:
        k("s_memrealtime s[90:91]")
    srd(k, 12, 6, WS_BYTES)
    k(f"""
    s_cmp_ge_u32 s3, 4
    s_cselect_b32 s8, s18, s16
    s_cselect_b32 s9, s19, s17
    s_cselect_b32 s22, 9216, 0
    s_and_b32 s9, s9, 0xffff
    s_mov_b32 s10, {576*4608*2}
    s_mov_b32 s11, 0x00020000
    s_and_b32 s23, s3, 3
    s_mul_i32 s24, s23, 2304
    s_add_u32 s22, s22, s24
    s_lshl_b32 s24, s21, 4
    s_lshl_b32 s25, s3, 1
    s_add_u32 s24, s24, s25
    s_mul_i32 s25, s24, {18*1024}
    s_add_u32 s25, s25, {YY}
    s_add_u32 s26, s25, {18*1024}
    s_mov_b32 s50, -1
    s_mov_b32 s51, 0xffff
    s_mov_b32 s52, 0x3ffff
    s_mov_b32 s53, 0
    s_and_b32 s27, s23, 1
    s_mul_i32 s27, s27, {8*9216}
    s_mul_i32 s28, s20, 288
    s_add_u32 s27, s27, s28
    s_lshr_b32 s28, s23, 1
    s_mul_i32 s54, s28, {16*9216}
    s_mul_i32 s55, s28, {144*9216}
    """)
    for i in range(3):
        k(f"""
        v_add_u32 v7, {48*i}, v1
        v_mul_u32_u24 v8, 0xe39, v7
        v_lshrrev_b32 v8, 16, v8
        v_mul_u32_u24 v9, 18, v8
        v_sub_u32 v9, v7, v9
        v_mul_u32_u24 v8, 9216, v8
        v_lshl_add_u32 v8, v9, 4, v8
        v_add_u32 v{10+i}, s27, v8
        """)

    def ybuf(st, tt):
        return 72 + 8 * (st % 5) + 4 * tt

    def dma_parts(st):
        parts = []
        for i in range(3):
            p = []
            if i == 0:
                p += [f"s_add_u32 s30, s22, {(st % R) * ST}",
                      f"s_add_u32 s29, s{54 if st % 9 < 8 else 55}, {tile_of(st, 0) * 16 * 9216}"]
            p += [f"s_add_u32 m0, s30, {768*i}", "s_mov_b64 exec, s[50:51]",
                  f"buffer_load_dwordx4 v{10+i}, s[8:11], s29 offen lds", "s_mov_b64 exec, -1"]
            parts.append((p, f"w{st}"))
        return parts

    def y_parts(st):
        parts = []
        for tt in range(2):
            p = []
            if tt == 0 and st % 4 == 0 and st > 0:
                p += ["s_add_u32 s25, s25, 4096", "s_add_u32 s26, s26, 4096"]
            y = ybuf(st, tt)
            p.append(f"buffer_load_dwordx4 v[{y}:{y+3}], v3, s[12:15], s{25+tt} offen offset:{(st * 1024) % 4096}")
            parts.append((p, f"y{st}"))
        return parts

    vm0 = VM()

    def emit(parts, vm, loop=False):
        for p, tag in parts:
            if loop and "nodma" in ABL:
                continue
            for ln in p:
                k(ln)
            vm.add(tag)

    emit(dma_parts(0) + y_parts(0), vm0)
    k(f"""
    v_bfe_u32 v7, v1, 2, 2
    v_lshl_add_u32 v7, v4, 2, v7
    v_mul_u32_u24 v7, 288, v7
    v_and_b32 v8, 3, v1
    v_lshl_add_u32 v13, v8, 3, v7
    v_add_u32 v14, {3*ST}, v13
    v_add_u32 v15, {6*ST}, v13
    v_and_b32 v7, 15, v1
    v_lshlrev_b32 v8, 5, v4
    v_lshl_add_u32 v8, v7, 4, v8
    v_add_u32 v8, {K3_GBL}, v8
    v_mov_b32 v9, {K3_GBL + 2304}
    v_cmp_gt_u32 vcc, 2, v7
    v_cndmask_b32 v16, v9, v8, vcc
    v_mov_b32 v19, 128
    v_cndmask_b32 v19, 0, v19, vcc
    v_mov_b32 v20, 0
    v_mov_b32 v21, 0
    v_mov_b32 v22, 0
    v_mov_b32 v23, 0
    ds_write_b128 v9, v[20:23]
    s_mul_i32 s27, s3, 288
    s_add_u32 s28, s27, {K3_GBL}
    s_add_u32 s27, s27, {GSB}
    s_mov_b32 m0, s28
    s_mov_b64 exec, s[52:53]
    buffer_load_dwordx4 v3, s[12:15], s27 offen lds
    s_mov_b64 exec, -1
    """)
    vm0.add("gsb")
    for st in range(1, D):
        emit(dma_parts(st) + y_parts(st), vm0)
    k(f"""
    v_and_b32 v17, 31, v1
    s_lshl_b32 s27, s24, 4
    v_add_u32 v17, s27, v17
    v_lshlrev_b32 v17, 3, v17
    v_lshrrev_b32 v18, 5, v1
    v_mul_u32_u24 v18, {2*16384}, v18
    v_add_u32 v17, v17, v18
    s_mov_b32 s27, {STAT}
    s_mov_b32 s28, {STAT + 16384}
    buffer_load_dwordx2 v[6:7], v17, s[12:15], s27 offen
    buffer_load_dwordx2 v[8:9], v17, s[12:15], s28 offen
    """)
    vm0.add("stat", 2)
    k("""
    s_and_b32 s60, s23, 1
    s_mul_i32 s60, s60, 9216
    s_lshr_b32 s61, s23, 1
    s_lshl_b32 s61, s61, 5
    s_add_u32 s60, s60, s61
    s_add_u32 s61, s60, 64
    s_add_u32 s62, s60, 128
    s_add_u32 s63, s60, 192
    s_add_u32 s64, s60, 256
    s_cmp_lt_u32 s23, 2
    s_cselect_b32 s64, s64, s63
    """)

    def acc(tt, m, ft):
        return 112 + ((tt * 2 + m) * 9 + ft) * 4

    frs = [(m, ft) for ft in range(9) for m in range(2)]
    GB = 20

    def body(grp):
        import copy
        vm = copy.deepcopy(vm0)
        nx = 5 if grp == 0 and "nogs" not in ABL else 0
        per = 18 + nx
        seq = []
        xi = 0
        for j in range(18):
            seq.append(("m", j))
            if nx and j % 4 == 1 and xi < nx:
                seq.append(("x", xi)); xi += 1
        while xi < nx:
            seq.append(("x", xi)); xi += 1
        NQ = 18 * per

        def areg(q):
            return 48 + 4 * (q % NA)

        def read_frag(q):
            st, j = divmod(q, per)
            kind, idx = seq[j]
            sl = st % R
            base = 13 + sl // 3
            a = areg(q)
            if kind == "m":
                m, ft = frs[idx]
                off = (sl % 3) * ST + m * 9216 + ft * 32
                k(f"ds_read_b64_tr_b16 v[{a}:{a+1}], v{base} offset:{off}")
                k(f"ds_read_b64_tr_b16 v[{a+2}:{a+3}], v{base} offset:{off + 4608}")
            else:
                t = 17 + (idx & 1)
                off = (sl % 3) * ST
                k(f"v_add_u32 v{t}, s{60+idx}, v{base}")
                k(f"ds_read_b64_tr_b16 v[{a}:{a+1}], v{t} offset:{off}")
                k(f"ds_read_b64_tr_b16 v[{a+2}:{a+3}], v{t} offset:{off + 4608}")

        BJ = PRM.get("BJ0", 8) if grp == 0 else PRM.get("BJ1", 2)
        VJ = PRM.get("VJ0", 12) if grp == 0 else BJ
        if PRM.get("P%d" % grp, 0):
            k(f"s_setprio {PRM['P%d' % grp]}")
        k(f"s_waitcnt vmcnt({vm.need('w0', 'y0', 'gsb')}) lgkmcnt(0)")
        k("s_barrier")
        stamp(k, 1)
        for t in range(18 + S * grp):
            st = t - S * grp
            parts = []
            if t + D < 18:
                parts += dma_parts(t + D)
            ys = st + DY
            if grp == 0:
                if ys < 18:
                    parts += y_parts(ys)
            else:
                if D <= ys < 18:
                    parts += y_parts(ys)
            if st < 0:
                k(f"s_waitcnt vmcnt({vm.need(f'w{t+1}')})")
                k("s_barrier")
                emit(parts, vm)
                continue
            if st == 0:
                if grp == 0:
                    k(f"ds_read_b128 v[{GB}:{GB+3}], v16")
                else:
                    k(f"s_waitcnt vmcnt({vm.need('y0')})")
                for q in range(LA):
                    read_frag(q)
            pi = 0
            for j in range(per):
                q = st * per + j
                if j == BJ and t <= 18:
                    need = []
                    if t + 1 < 18:
                        need.append(f"w{t+1}")
                    if st + 1 < 18:
                        need.append(f"y{st+1}")
                    if need:
                        k(f"s_waitcnt vmcnt({vm.need(*need)})")
                    if t < 17 or (grp == 1 and t == 18):
                        k("s_barrier")
                    if st in (0, 6, 12):
                        stamp(k, 2 + (0, 6, 12).index(st))
                elif j == BJ and st + 1 < 18:
                    k(f"s_waitcnt vmcnt({vm.need(f'y{st+1}')})")
                if grp == 0 and j == 2 and st < 17:
                    g_ = GB + 4 * ((st + 1) & 1)
                    k("v_add_u32 v16, v16, v19")
                    k(f"ds_read_b128 v[{g_}:{g_+3}], v16")
                if q + LA < NQ:
                    read_frag(q + LA)
                    k(f"s_waitcnt lgkmcnt({2*LA})")
                else:
                    k(f"s_waitcnt lgkmcnt({2*(NQ-1-q)})")
                kind, idx = seq[j]
                a = areg(q)
                if kind == "m":
                    m, ft = frs[idx]
                    for tt in range(2):
                        c = acc(tt, m, ft)
                        y = ybuf(st, tt)
                        cs = "0" if st == 0 else f"v[{c}:{c+3}]"
                        k(f"v_mfma_f32_16x16x32_bf16 v[{c}:{c+3}], v[{a}:{a+3}], v[{y}:{y+3}], {cs}")
                else:
                    gc = 28 + 4 * idx
                    g_ = GB + 4 * (st & 1)
                    cs = "0" if st == 0 else f"v[{gc}:{gc+3}]"
                    k(f"v_mfma_f32_16x16x32_bf16 v[{gc}:{gc+3}], v[{a}:{a+3}], v[{g_}:{g_+3}], {cs}")
                if grp == 1 and j == BJ and "spread1" not in ABL:
                    emit(parts, vm, True)
                    pi = len(parts)
                elif j >= VJ and pi < len(parts):
                    emit(parts[pi:pi + 1], vm, True)
                    pi += 1
                if t == 14 and j == per - 1:
                    k(f"""
                    v_min_u32 v5, 161, v0
                    s_mul_i32 s31, s2, {162*128}
                    v_lshl_add_u32 v5, v5, 7, s31
                    global_load_dword v0, v5, s[56:57]
                    """)
                    vm.add("pf")
            assert pi == len(parts)
        stamp(k, 5)
        if grp == 0:
            k(f"""
            v_and_b32 v5, 15, v1
            v_mul_u32_u24 v5, 576, v5
            v_lshl_add_u32 v5, v4, 4, v5
            s_and_b32 s31, s3, 1
            s_mul_i32 s31, s31, 1152
            s_lshr_b32 s32, s3, 1
            s_lshl_b32 s32, s32, 6
            s_add_u32 s31, s31, s32
            s_add_u32 s31, s31, {K3_GSL}
            v_add_u32 v5, s31, v5
            s_mov_b32 exec_lo, 0x00030003
            s_mov_b32 exec_hi, 0x00030003
            ds_write_b128 v5, v[28:31]
            ds_write_b128 v5, v[32:35] offset:128
            ds_write_b128 v5, v[36:39] offset:256
            ds_write_b128 v5, v[40:43] offset:384
            s_cmp_ge_u32 s3, 2
            s_cbranch_scc1 k3_gs_w
            ds_write_b128 v5, v[44:47] offset:512
            """)
            k.label("k3_gs_w")
            k("""
            s_mov_b64 exec, -1
            s_waitcnt lgkmcnt(0)
            s_barrier
            """)

    k("s_cmp_ge_u32 s3, 4")
    k("s_cbranch_scc1 k3_grp1")
    body(0)
    k("s_branch k3_epi")
    k.label("k3_grp1")
    body(1)
    k.label("k3_epi")
    k("s_setprio 0")
    k("""
    s_nop 7
    v_add_f32 v20, v6, v8
    v_add_f32 v21, v7, v9
    v_mov_b32 v22, v20
    v_mov_b32 v23, v21
    v_permlane32_swap_b32 v20, v22
    v_permlane32_swap_b32 v21, v23
    v_add_f32 v20, v20, v22
    v_add_f32 v21, v21, v23
    v_mul_f32 v20, 0x3ae38e39, v20
    v_mul_f32 v21, 0x3ae38e39, v21
    v_fma_f32 v21, -v20, v20, v21
    v_max_f32 v21, 0, v21
    """)
    bf16_round(k, 21, 21)
    k("v_add_f32 v21, 0x3727c5ac, v21")
    bf16_round(k, 21, 21)
    k("v_sqrt_f32 v21, v21")
    bf16_round(k, 21, 21)
    k("v_rcp_f32 v21, v21")
    bf16_round(k, 20, 20)
    k("""
    v_mul_f32 v20, v20, v21
    v_sub_f32 v20, 0, v20
    v_mov_b32 v24, v21
    v_mov_b32 v26, v21
    v_mov_b32 v28, v20
    v_mov_b32 v30, v20
    v_permlane16_swap_b32 v24, v26
    v_permlane16_swap_b32 v28, v30
    """)
    k(f"""
    v_lshlrev_b32 v5, 4, v4
    v_add_u32 v5, {K3_GSL}, v5
    s_mul_i32 s27, s24, {144*1024}
    s_add_u32 s27, s27, {HH}
    s_lshr_b32 s28, s20, 1
    s_mul_i32 s28, s28, {9*1024}
    s_add_u32 s27, s27, s28
    s_and_b32 s28, s20, 1
    s_lshl_b32 s42, s28, 3
    s_add_u32 s42, s42, s27
    s_add_u32 s42, s42, 8192
    s_add_u32 s43, s42, {144*1024}
    s_lshl_b32 s28, s28, 12
    s_add_u32 s32, s27, s28
    s_add_u32 s33, s32, {144*1024}
    s_mov_b32 s40, 0xbfb8aa3b
    s_mov_b32 s41, 0xbfb8aa3b
    """)

    def gsreg(ft):
        return 48 + 16 * (ft % 2)

    def read_gs(ft):
        g = gsreg(ft)
        for a in range(4):
            k(f"ds_read_b128 v[{g+4*a}:{g+4*a+3}], v5 offset:{a*576 + ft*64}")

    read_gs(0)
    for ft in range(9):
        g = gsreg(ft)
        if ft < 8:
            read_gs(ft + 1)
        k(f"s_waitcnt lgkmcnt({4 if ft < 8 else 0})")
        U4 = [(tt, h) for tt in range(2) for h in range(2)]
        for u, (tt, h) in enumerate(U4):
            mr = 28 + 2 * tt
            k(f"v_pk_fma_f32 v[{80+2*u}:{81+2*u}], v[{g+2*h}:{g+2*h+1}], v[{mr}:{mr+1}], v[{g+4+2*h}:{g+4+2*h+1}] op_sel_hi:[1,0,1]")
        for u, (tt, h) in enumerate(U4):
            mr = 28 + 2 * tt
            k(f"v_pk_fma_f32 v[{88+2*u}:{89+2*u}], v[{g+8+2*h}:{g+8+2*h+1}], v[{mr}:{mr+1}], v[{g+12+2*h}:{g+12+2*h+1}] op_sel_hi:[1,0,1]")
        for u, (tt, h) in enumerate(U4):
            r = 24 + 2 * tt
            ga = acc(tt, 0, ft)
            k(f"v_pk_fma_f32 v[{80+2*u}:{81+2*u}], v[{ga+2*h}:{ga+2*h+1}], v[{r}:{r+1}], v[{80+2*u}:{81+2*u}] op_sel_hi:[1,0,1]")
        for u, (tt, h) in enumerate(U4):
            k(f"v_pk_mul_f32 v[{96+2*u}:{97+2*u}], v[{80+2*u}:{81+2*u}], s[40:41]")
        for u, (tt, h) in enumerate(U4):
            r = 24 + 2 * tt
            ua = acc(tt, 1, ft)
            k(f"v_pk_fma_f32 v[{88+2*u}:{89+2*u}], v[{ua+2*h}:{ua+2*h+1}], v[{r}:{r+1}], v[{88+2*u}:{89+2*u}] op_sel_hi:[1,0,1]")
        for e in range(8):
            if "notrans" not in ABL:
                k(f"v_exp_f32 v{96+e}, v{96+e}")
        for u in range(4):
            k(f"v_pk_mul_f32 v[{80+2*u}:{81+2*u}], v[{80+2*u}:{81+2*u}], v[{88+2*u}:{89+2*u}]")
        for u in range(4):
            k(f"v_pk_add_f32 v[{96+2*u}:{97+2*u}], v[{96+2*u}:{97+2*u}], 1.0 op_sel_hi:[1,0]")
        for e in range(8):
            if "notrans" not in ABL:
                k(f"v_rcp_f32 v{96+e}, v{96+e}")
        for u in range(4):
            k(f"v_pk_mul_f32 v[{80+2*u}:{81+2*u}], v[{80+2*u}:{81+2*u}], v[{96+2*u}:{97+2*u}]")
        pb = (ft >> 1) & 1
        for u, (tt, h) in enumerate(U4):
            o = (32 if pb == 0 else 40) + 4 * tt + 2 * (ft & 1) + h
            k(f"v_cvt_pk_bf16_f32 v{o}, v{80+2*u}, v{81+2*u}")
        for tt in range(2):
            o = (32 if pb == 0 else 40) + 4 * tt
            if "nostore" in ABL:
                continue
            if ft == 8:
                k(f"buffer_store_dwordx2 v[{o}:{o+1}], v3, s[12:15], s{42+tt} offen")
            elif ft & 1:
                k(f"buffer_store_dwordx4 v[{o}:{o+3}], v3, s[12:15], s{32+tt} offen offset:{(ft>>1)*1024}")
    stamp(k, 6)
    if DIAG:
        k("s_memrealtime s[92:93]")
        k("s_waitcnt lgkmcnt(0)")
        k("s_sub_u32 s77, s92, s90")
        k("s_add_u32 s77, s77, s70")
    stamp_flush(k, 8, 3, "k3")
    k.label("k3_done")
    tl_end(k, 3)
    k("s_endpgm")
    return k, 256, K3_LDS


K4_NS = 3
K4_LDS = 140 * 1024
K4_GRID = 240


def gen_k4():
    k = K("ffn2_kernel")
    tl_start(k)
    NS = K4_NS
    k(f"""
    s_cmp_ge_u32 s2, {K4_GRID}
    s_cbranch_scc1 k4_done
    s_and_b32 s20, s2, 7
    s_mul_i32 s20, s20, 30
    s_lshr_b32 s21, s2, 3
    s_add_u32 s22, s20, s21
    s_cmp_ge_u32 s22, 234
    s_cbranch_scc1 k4_done
    s_load_dwordx2 s[16:17], s[0:1], 48
    s_load_dwordx2 s[18:19], s[0:1], 72
    s_load_dwordx2 s[6:7], s[0:1], 88
    v_and_b32 v1, 63, v0
    v_lshrrev_b32 v2, 6, v0
    v_lshlrev_b32 v3, 4, v1
    v_lshrrev_b32 v4, 4, v1
    v_readfirstlane_b32 s3, v2
    s_mul_i32 s20, s22, 0x1c72
    s_lshr_b32 s20, s20, 16
    s_mul_i32 s21, s20, 9
    s_sub_u32 s21, s22, s21
    s_waitcnt lgkmcnt(0)
    """)
    stamp(k, 0)
    srd(k, 12, 6, WS_BYTES)
    srd(k, 8, 16, 4608 * 576 * 2)
    srd(k, 44, 18, 2048 * 576 * 2)
    k(f"s_mul_i32 s22, s20, 5")
    k(f"s_mul_i32 s23, s3, {18*1024}")
    for tt in range(5):
        k(f"""
        s_add_u32 s29, s22, {tt}
        s_min_u32 s29, s29, 127
        s_mul_i32 s29, s29, {144*1024}
        s_add_u32 s29, s29, s23
        s_add_u32 s{24+tt}, s29, {HH}
        """)
    k(f"""
    s_mul_i32 s30, s3, {NS*4096}
    s_mul_i32 s31, s3, {576*1152}
    s_lshl_b32 s29, s21, 7
    s_add_u32 s31, s31, s29
    v_lshrrev_b32 v7, 3, v1
    v_and_b32 v8, 7, v1
    v_bfe_u32 v9, v7, 1, 2
    v_lshlrev_b32 v9, 1, v9
    v_xor_b32 v8, v8, v9
    v_mul_u32_u24 v7, 1152, v7
    v_lshl_add_u32 v7, v8, 4, v7
    v_add_u32 v10, s31, v7
    v_add_u32 v11, {8*1152}, v10
    """)
    k(f"""
    v_bfe_u32 v7, v1, 2, 2
    v_lshl_add_u32 v7, v4, 2, v7
    v_bfe_u32 v8, v7, 1, 2
    v_lshlrev_b32 v8, 1, v8
    v_bfe_u32 v9, v1, 1, 1
    v_lshlrev_b32 v7, 7, v7
    v_and_b32 v16, 1, v1
    v_lshl_add_u32 v7, v16, 3, v7
    v_add_u32 v7, s30, v7
    """)
    for nt in range(4):
        k(f"""
        v_or_b32 v16, {2*nt}, v9
        v_xor_b32 v16, v16, v8
        v_lshl_add_u32 v{12+nt}, v16, 4, v7
        """)

    def hbuf(it, tt):
        return 32 + 20 * (it % NS) + 4 * tt

    def issue(it):
        for i in range(4):
            half = i >> 1
            k(f"s_mov_b32 s29, {tile_of(it, half) * 16 * 1152}")
            k(f"s_add_u32 m0, s30, {(it % NS) * 4096 + 1024 * i}")
            k(f"buffer_load_dwordx4 v{10 + (i & 1)}, s[8:11], s29 offen lds")
        if it % 4 == 0 and it > 0:
            for tt in range(5):
                k(f"s_add_u32 s{24+tt}, s{24+tt}, 4096")
        for tt in range(5):
            h = hbuf(it, tt)
            k(f"buffer_load_dwordx4 v[{h}:{h+3}], v3, s[12:15], s{24+tt} offen offset:{(it % 4) * 1024}")

    def acc(tt, nt):
        return 128 + (tt * 4 + nt) * 4

    NIT = 18
    for it in range(NS - 1):
        issue(it)
    for it in range(NIT):
        if it + NS - 1 < NIT:
            issue(it + NS - 1)
        n_after = 9 * (min(it + NS - 1, NIT - 1) - it)
        k(f"s_waitcnt vmcnt({n_after})")
        if it in (0, 1, 9):
            stamp(k, 1 + (0, 1, 9).index(it))
        for nt in range(4):
            a = 96 + 4 * nt
            off = (it % NS) * 4096
            k(f"ds_read_b64_tr_b16 v[{a}:{a+1}], v{12+nt} offset:{off}")
            k(f"ds_read_b64_tr_b16 v[{a+2}:{a+3}], v{12+nt} offset:{off + 2048}")
        for nt in range(4):
            a = 96 + 4 * nt
            k(f"s_waitcnt lgkmcnt({2*(3-nt)})")
            for tt in range(5):
                c = acc(tt, nt)
                h = hbuf(it, tt)
                cs = "0" if it == 0 else f"v[{c}:{c+3}]"
                k(f"v_mfma_f32_16x16x32_bf16 v[{c}:{c+3}], v[{a}:{a+3}], v[{h}:{h+3}], {cs}")
    stamp(k, 4)
    k("s_barrier")
    stamp(k, 5)
    for u in range(20):
        owner = u % 8
        c = 128 + 4 * u
        k(f"""
        s_sub_u32 s33, s3, {owner + 1}
        s_and_b32 s33, s33, 7
        s_cmp_eq_u32 s33, 7
        s_cbranch_scc1 k4_skip_{u}
        s_lshl_b32 s33, s33, 10
        s_add_u32 s33, s33, {u * 7 * 1024}
        v_add_u32 v5, s33, v3
        ds_write_b128 v5, v[{c}:{c+3}]
        """)
        k.label(f"k4_skip_{u}")
    for w in range(8):
        k(f"s_cmp_lg_u32 s3, {w}")
        k(f"s_cbranch_scc1 k4_mv_{w}")
        for j in range(3):
            u = w + 8 * j if w + 8 * j < 20 else w + 8
            for r in range(4):
                k(f"v_mov_b32 v{16+4*j+r}, v{128+4*u+r}")
        k.label(f"k4_mv_{w}")
    k("""
    s_mov_b32 s34, s3
    s_add_u32 s35, s3, 8
    s_add_u32 s36, s3, 16
    s_cmp_lt_u32 s3, 4
    s_cselect_b32 s36, s36, s35
    v_lshlrev_b32 v9, 3, v1
    v_lshlrev_b32 v11, 4, v4
    v_and_b32 v12, 15, v1
    v_mul_u32_u24 v12, 1152, v12
    v_lshl_add_u32 v12, v4, 3, v12
    """)
    for j in range(3):
        k(f"""
        s_lshr_b32 s37, s{34+j}, 2
        s_and_b32 s38, s{34+j}, 3
        s_add_u32 s37, s37, s22
        s_min_u32 s39, s37, 127
        s_mul_i32 s40, s39, {144*128}
        s_lshl_b32 s41, s21, 11
        s_add_u32 s40, s40, s41
        s_lshl_b32 s41, s38, 9
        s_add_u32 s40, s40, s41
        s_add_u32 s40, s40, {X1}
        buffer_load_dwordx2 v[{120+2*j}:{121+2*j}], v9, s[12:15], s40 offen
        s_lshl_b32 s40, s21, 8
        s_lshl_b32 s41, s38, 6
        s_add_u32 s40, s40, s41
        s_add_u32 s40, s40, {MOD + 5*576*4}
        buffer_load_dwordx4 v[{208+4*j}:{211+4*j}], v11, s[12:15], s40 offen
        s_mul_i32 s40, s37, {16*1152}
        s_lshl_b32 s41, s21, 7
        s_add_u32 s40, s40, s41
        s_lshl_b32 s41, s38, 5
        s_add_u32 s{50+j}, s40, s41
        s_mul_i32 s40, s{34+j}, {7*1024}
        v_add_u32 v{6+j}, s40, v3
        """)
    k("s_waitcnt lgkmcnt(0)")
    k("s_barrier")
    for j in range(3):
        for sl in range(7):
            r = 32 + (j * 7 + sl) * 4
            k(f"ds_read_b128 v[{r}:{r+3}], v{6+j} offset:{sl*1024}")
    for j in range(3):
        k(f"s_waitcnt lgkmcnt({min(15, 7*(2-j))})")
        for sl in range(7):
            r = 32 + (j * 7 + sl) * 4
            k(f"v_pk_add_f32 v[{16+4*j}:{17+4*j}], v[{16+4*j}:{17+4*j}], v[{r}:{r+1}]")
            k(f"v_pk_add_f32 v[{18+4*j}:{19+4*j}], v[{18+4*j}:{19+4*j}], v[{r+2}:{r+3}]")
    k("s_waitcnt vmcnt(0)")
    for j in range(3):
        c = 16 + 4 * j
        gb = 208 + 4 * j
        xr = 120 + 2 * j
        t = 32 + 8 * j
        k(f"""
        v_cvt_pk_bf16_f32 v{t}, v{c}, v{c+1}
        v_cvt_pk_bf16_f32 v{t+1}, v{c+2}, v{c+3}
        v_lshlrev_b32 v{c}, 16, v{t}
        v_and_b32 v{c+1}, 0xffff0000, v{t}
        v_lshlrev_b32 v{c+2}, 16, v{t+1}
        v_and_b32 v{c+3}, 0xffff0000, v{t+1}
        v_pk_mul_f32 v[{c}:{c+1}], v[{c}:{c+1}], v[{gb}:{gb+1}]
        v_pk_mul_f32 v[{c+2}:{c+3}], v[{c+2}:{c+3}], v[{gb+2}:{gb+3}]
        v_cvt_pk_bf16_f32 v{t}, v{c}, v{c+1}
        v_cvt_pk_bf16_f32 v{t+1}, v{c+2}, v{c+3}
        v_lshlrev_b32 v{c}, 16, v{t}
        v_and_b32 v{c+1}, 0xffff0000, v{t}
        v_lshlrev_b32 v{c+2}, 16, v{t+1}
        v_and_b32 v{c+3}, 0xffff0000, v{t+1}
        v_lshlrev_b32 v{t+2}, 16, v{xr}
        v_and_b32 v{t+3}, 0xffff0000, v{xr}
        v_lshlrev_b32 v{t+4}, 16, v{xr+1}
        v_and_b32 v{t+5}, 0xffff0000, v{xr+1}
        v_pk_add_f32 v[{c}:{c+1}], v[{c}:{c+1}], v[{t+2}:{t+3}]
        v_pk_add_f32 v[{c+2}:{c+3}], v[{c+2}:{c+3}], v[{t+4}:{t+5}]
        v_cvt_pk_bf16_f32 v{t+6}, v{c}, v{c+1}
        v_cvt_pk_bf16_f32 v{t+7}, v{c+2}, v{c+3}
        buffer_store_dwordx2 v[{t+6}:{t+7}], v12, s[44:47], s{50+j} offen
        """)
    stamp(k, 6)
    stamp_flush(k, 7, 3, "k4")
    k.label("k4_done")
    tl_end(k, 4)
    k("s_endpgm")
    return k, 224, K4_LDS


KERNELS = []


def build(kernels, path):
    head = ["; adaLN + sliding dilated local attention + SwiGLU block, multi-kernel pipeline (generated)"]
    texts, descs = [], []
    for (gen, grid, block) in kernels:
        k, vgpr, lds = gen()
        head.append(f"; @launch kernel={k.name} grid=({grid},1,1) block=({block},1,1) lds={lds}")
        t, d = kernel_text(k, vgpr)
        texts.append(t)
        descs.append(d)
    out = "\n".join(head) + "\n.amdgcn_target \"amdgcn-amd-amdhsa--gfx950\"\n.text\n" + "\n".join(texts) + \
        "\n.section .rodata,\"a\"\n" + "".join(descs)
    open(path, "w").write(out)


if __name__ == "__main__":
    if len(sys.argv) > 2 and sys.argv[2] == "diag":
        DIAG = True
    for a_ in sys.argv[3:]:
        if "=" in a_:
            PRM[a_.split("=")[0]] = int(a_.split("=")[1])
        else:
            ABL.add(a_)
    build([(gen_k0, K0_GRID, 256), (gen_k1, 256, 512), (gen_k2, K2_GRID, 576), (gen_k3, 256, 512), (gen_k4, K4_GRID, 512)], sys.argv[1] if len(sys.argv) > 1 else "k.s")
```

```python
import sys
from asmlib import K, kernel_text

NAME = "adaLN_cond__sliding_local_dilated__glu_gated_swiglu__prompt"

MOD = 0x0000000
GSB = 0x0010000
CNT = 0x0020000
STAT = 0x0040000
XN = 0x0100000
WQ = 0x0400000
WOP = 0x0700000
OO = 0x0800000
X1 = 0x0B00000
YY = 0x0E00000
HH = 0x1100000
W2P = 0x2400000
WS_BYTES = 268435456

LOG2E = "0x3fb8aa3b"
PART = 0x2400000


def tile_of(ks, half):
    p, i = divmod(ks, 9)
    if i < 8:
        return (2 * p + (i >> 2)) * 9 + 2 * (i & 3) + half
    return (2 * p + half) * 9 + 8


def srd(k, d, lo, nbytes):
    k(f"""
    s_mov_b32 s{d}, s{lo}
    s_and_b32 s{d+1}, s{lo+1}, 0xffff
    s_mov_b32 s{d+2}, {nbytes}
    s_mov_b32 s{d+3}, 0x00020000
    """)


DIAG = False
ABL = set()
PRM = {}


def stamp(k, idx):
    if DIAG:
        k("s_memtime s[68:69]")
        k("s_waitcnt lgkmcnt(0)")
        k(f"s_mov_b32 s{70+idx}, s68")


def stamp_flush(k, n, wave_sgpr, tag, vb=200):
    if not DIAG:
        return
    k(f"""
    s_cmp_lg_u32 s2, 5
    s_cbranch_scc1 {tag}_nostamp
    s_load_dwordx2 s[66:67], s[0:1], 80
    s_lshl_b32 s68, s{wave_sgpr}, 5
    v_mov_b32 v{vb}, s68
    s_waitcnt lgkmcnt(0)
    """)
    for i in range(n):
        k(f"s_sub_u32 s69, s{70+i}, s70")
        k(f"v_mov_b32 v{vb+1}, s69")
        k(f"global_store_dword v{vb}, v{vb+1}, s[66:67] offset:{4*i}")
    k(f"{tag}_nostamp:")


TL = 0x3000000


def tl_start(k):
    if DIAG:
        k("s_memrealtime s[94:95]")
        k("s_mov_b32 s96, s2")


def tl_end(k, kid):
    if DIAG:
        k(f"""
        s_mov_b64 exec, 1
        s_waitcnt vmcnt(0) lgkmcnt(0)
        s_memrealtime s[98:99]
        s_load_dwordx2 s[66:67], s[0:1], 88
        s_lshl_b32 s97, s96, 3
        s_add_u32 s97, s97, {TL + kid*8192}
        v_mov_b32 v2, s97
        s_waitcnt lgkmcnt(0)
        v_mov_b32 v0, s94
        v_mov_b32 v1, s98
        global_atomic_umax v2, v1, s[66:67] offset:4
        global_store_dword v2, v0, s[66:67]
        """)


def bf16_round(k, dst, src, tmp=None):
    k(f"v_cvt_pk_bf16_f32 v{dst}, v{src}, v{src}")
    k(f"v_lshlrev_b32 v{dst}, 16, v{dst}")


K0_MOD, K0_XN, K0_WQ, K0_WO = 108, 64, 144, 54
K0_GRID = K0_MOD + K0_XN + K0_WQ + K0_WO


def pack_chunk(k, srd_src, rowstride, zero_hi_mask_sgpr=None):
    for r in range(8):
        k(f"s_mov_b32 s{24+r}, {r*rowstride}")
    for r in range(8):
        k(f"buffer_load_dwordx2 v[{16+2*r}:{17+2*r}], v10, s[{srd_src}:{srd_src+3}], s{24+r} offen")
    k("s_mov_b32 s32, 0x05040100")
    k("s_mov_b32 s33, 0x07060302")
    k("s_waitcnt vmcnt(0)")
    if zero_hi_mask_sgpr is not None:
        for r in range(8):
            k(f"v_cndmask_b32 v{17+2*r}, v{17+2*r}, 0, s[{zero_hi_mask_sgpr}:{zero_hi_mask_sgpr+1}]")
    for j in range(4):
        d = j >> 1
        sel = 32 + (j & 1)
        for q in range(4):
            lo = 16 + 2 * (2 * q) + d
            hi = 16 + 2 * (2 * q + 1) + d
            k(f"v_perm_b32 v{32+4*j+q}, v{hi}, v{lo}, s{sel}")
    for j in range(4):
        k(f"buffer_store_dwordx4 v[{32+4*j}:{35+4*j}], v11, s[12:15], 0 offen offset:{16*j}")


def gen_k0():
    k = K("prep_kernel")
    tl_start(k)
    k(f"""
    s_cmp_ge_u32 s2, {K0_GRID}
    s_cbranch_scc1 k0_done
    s_load_dwordx2 s[4:5], s[0:1], 0
    s_load_dwordx4 s[16:19], s[0:1], 8
    s_load_dwordx4 s[20:23], s[0:1], 56
    s_load_dwordx2 s[6:7], s[0:1], 88
    v_and_b32 v1, 63, v0
    v_lshrrev_b32 v2, 6, v0
    s_waitcnt lgkmcnt(0)
    """)
    srd(k, 12, 6, WS_BYTES)
    k(f"""
    v_readfirstlane_b32 s3, v2
    s_cmp_ge_u32 s2, {K0_MOD}
    s_cbranch_scc1 k0_not_mod
    """)
    k("""
    v_and_b32 v3, 3, v0
    v_lshrrev_b32 v4, 2, v0
    v_mul_u32_u24 v5, 6912, v4
    v_lshl_add_u32 v5, v3, 4, v5
    s_lshl_b32 s10, s2, 6
    v_add_u32 v5, s10, v5
    v_lshlrev_b32 v6, 1, v4
    """)
    for i in range(9):
        k(f"global_load_ushort v{60+i}, v6, s[20:21] offset:{128*i}")
    for i in range(9):
        k(f"global_load_dwordx4 v[{16+4*i}:{19+4*i}], v5, s[22:23]")
        if i < 8:
            k(f"v_add_u32 v5, {64*6912}, v5")
    for j in range(8):
        k(f"v_mov_b32 v{80+j}, 0")
    k("s_waitcnt vmcnt(9)")
    for i in range(9):
        c = 60 + i
        k(f"""
        v_lshlrev_b32 v{c}, 16, v{c}
        v_mul_f32 v70, 0xbfb8aa3b, v{c}
        v_exp_f32 v70, v70
        v_add_f32 v70, 1.0, v70
        v_rcp_f32 v70, v70
        v_mul_f32 v{c}, v{c}, v70
        """)
        bf16_round(k, c, c)
    for i in range(9):
        k(f"s_waitcnt vmcnt({8-i})")
        for q in range(4):
            w = 16 + 4 * i + q
            k(f"""
            v_lshlrev_b32 v71, 16, v{w}
            v_and_b32 v72, 0xffff0000, v{w}
            v_fmac_f32 v{80+2*q}, v{60+i}, v71
            v_fmac_f32 v{81+2*q}, v{60+i}, v72
            """)
    k("""
    v_lshlrev_b32 v7, 5, v0
    ds_write_b128 v7, v[80:83]
    ds_write_b128 v7, v[84:87] offset:16
    s_waitcnt lgkmcnt(0)
    s_barrier
    v_and_b32 v8, 31, v0
    v_lshrrev_b32 v9, 5, v0
    v_lshlrev_b32 v10, 10, v9
    v_lshl_add_u32 v10, v8, 2, v10
    """)
    for i in range(8):
        k(f"ds_read_b32 v{16+i}, v10 offset:{128*i}")
    k("s_waitcnt lgkmcnt(0)")
    k("""
    v_add_f32 v16, v16, v17
    v_add_f32 v18, v18, v19
    v_add_f32 v20, v20, v21
    v_add_f32 v22, v22, v23
    v_add_f32 v16, v16, v18
    v_add_f32 v20, v20, v22
    v_add_f32 v16, v16, v20
    v_lshlrev_b32 v11, 2, v0
    ds_write_b32 v11, v16 offset:8192
    s_waitcnt lgkmcnt(0)
    s_barrier
    v_cmp_gt_u32 vcc, 32, v0
    s_and_saveexec_b64 s[36:37], vcc
    s_cbranch_execz k0_done
    """)
    for i in range(8):
        k(f"ds_read_b32 v{16+i}, v11 offset:{8192+128*i}")
    k("s_waitcnt lgkmcnt(0)")
    k("""
    v_add_f32 v16, v16, v17
    v_add_f32 v18, v18, v19
    v_add_f32 v20, v20, v21
    v_add_f32 v22, v22, v23
    v_add_f32 v16, v16, v18
    v_add_f32 v20, v20, v22
    v_add_f32 v16, v16, v20
    """)
    bf16_round(k, 16, 16)
    k("""
    s_mov_b32 s11, 0
    s_cmp_ge_u32 s2, 18
    s_cselect_b32 s24, 1, 0
    s_cmp_lt_u32 s2, 36
    s_cselect_b32 s25, 1, 0
    s_and_b32 s24, s24, s25
    s_cmp_ge_u32 s2, 72
    s_cselect_b32 s25, 1, 0
    s_cmp_lt_u32 s2, 90
    s_cselect_b32 s26, 1, 0
    s_and_b32 s25, s25, s26
    s_or_b32 s24, s24, s25
    s_cmp_eq_u32 s24, 0
    s_cbranch_scc1 k0_mod_store
    v_add_f32 v16, 1.0, v16
    """)
    bf16_round(k, 16, 16)
    k.label("k0_mod_store")
    k(f"""
    s_lshl_b32 s10, s2, 8
    s_add_u32 s10, s10, {CNT}
    v_mov_b32 v17, 0
    buffer_store_dword v17, v11, s[12:15], s10 offen
    s_lshl_b32 s10, s2, 7
    v_add_u32 v11, s10, v11
    buffer_store_dword v16, v11, s[12:15], 0 offen offset:{MOD}
    s_cmp_lt_u32 s2, 54
    s_cbranch_scc1 k0_done
    s_cmp_ge_u32 s2, 90
    s_cbranch_scc1 k0_done
    """)
    k(f"""
    s_sub_u32 s24, s2, 54
    s_sub_u32 s25, s2, 72
    s_cmp_ge_u32 s2, 72
    s_cselect_b32 s24, s25, s24
    s_cselect_b32 s25, 0, 16
    s_lshl_b32 s26, s24, 1
    v_lshrrev_b32 v12, 4, v0
    v_add_u32 v12, s26, v12
    v_mul_u32_u24 v13, 57, v12
    v_lshrrev_b32 v13, 9, v13
    v_mul_u32_u24 v14, 9, v13
    v_sub_u32 v14, v12, v14
    v_lshrrev_b32 v15, 1, v13
    v_mul_u32_u24 v15, 9, v15
    v_and_b32 v17, 1, v13
    v_lshrrev_b32 v18, 1, v14
    v_lshl_add_u32 v18, v17, 2, v18
    v_and_b32 v19, 1, v14
    v_cmp_eq_u32 vcc, 8, v14
    v_cndmask_b32 v18, v18, 8, vcc
    v_cndmask_b32 v19, v19, v17, vcc
    v_add_u32 v15, v15, v18
    v_lshlrev_b32 v12, 7, v15
    v_bfe_u32 v13, v0, 2, 2
    v_lshl_add_u32 v12, v13, 5, v12
    v_lshl_add_u32 v12, v19, 3, v12
    v_and_b32 v13, 3, v0
    v_lshl_add_u32 v12, v13, 1, v12
    s_add_u32 s25, s25, {GSB}
    v_lshrrev_b32 v16, 16, v16
    buffer_store_short v16, v12, s[12:15], s25 offen
    s_branch k0_done
    """)
    k.label("k0_not_mod")
    k(f"""
    s_sub_u32 s2, s2, {K0_MOD}
    s_cmp_ge_u32 s2, {K0_XN}
    s_cbranch_scc1 k0_not_xn
    """)
    k("""
    s_lshl_b32 s10, s2, 2
    s_add_u32 s10, s10, s3
    s_lshl_b32 s10, s10, 3
    v_lshrrev_b32 v3, 3, v1
    v_add_u32 v3, s10, v3
    v_and_b32 v4, 7, v1
    v_mul_u32_u24 v5, 1152, v3
    v_lshl_add_u32 v5, v4, 4, v5
    """)
    for i in range(9):
        k(f"global_load_dwordx4 v[{16+4*i}:{19+4*i}], v5, s[4:5] offset:{128*i}")
    k(f"""
    v_lshrrev_b32 v6, 4, v3
    v_mul_u32_u24 v6, {18*1024}, v6
    v_and_b32 v7, 15, v3
    v_lshl_add_u32 v6, v7, 4, v6
    v_lshrrev_b32 v7, 2, v4
    v_lshl_add_u32 v6, v7, 10, v6
    v_and_b32 v7, 3, v4
    v_lshl_add_u32 v6, v7, 8, v6
    v_add_u32 v6, {XN}, v6
    v_mov_b32 v8, 0
    v_mov_b32 v9, 0
    """)
    for i in range(9):
        k(f"s_waitcnt vmcnt({8-i})")
        for q in range(4):
            w = 16 + 4 * i + q
            d = 64 + 8 * i + 2 * q
            k(f"v_lshlrev_b32 v{d}, 16, v{w}")
            k(f"v_and_b32 v{d+1}, 0xffff0000, v{w}")
        for q in range(4):
            d = 64 + 8 * i + 2 * q
            k(f"v_pk_add_f32 v[8:9], v[8:9], v[{d}:{d+1}]")

    def red8(r):
        k(f"v_add_f32_dpp v{r}, v{r}, v{r} quad_perm:[1,0,3,2] row_mask:0xf bank_mask:0xf")
        k(f"v_add_f32_dpp v{r}, v{r}, v{r} quad_perm:[2,3,0,1] row_mask:0xf bank_mask:0xf")
        k(f"v_add_f32_dpp v{r}, v{r}, v{r} row_half_mirror row_mask:0xf bank_mask:0xf")

    k("v_add_f32 v8, v8, v9")
    red8(8)
    k(f"v_mul_f32 v10, 0x3ae38e39, v8")
    k("v_mov_b32 v11, v10")
    k("v_mov_b32 v8, 0")
    k("v_mov_b32 v9, 0")
    for e in range(36):
        d = 64 + 2 * e
        k(f"v_pk_add_f32 v[12:13], v[{d}:{d+1}], v[10:11] neg_lo:[0,1] neg_hi:[0,1]")
        k(f"v_pk_fma_f32 v[8:9], v[12:13], v[12:13], v[8:9]")
    k("v_add_f32 v8, v8, v9")
    red8(8)
    k(f"v_mul_f32 v8, 0x3ae38e39, v8")
    bf16_round(k, 8, 8)
    k("v_add_f32 v8, 0x3727c5ac, v8")
    bf16_round(k, 8, 8)
    k("v_sqrt_f32 v8, v8")
    bf16_round(k, 8, 8)
    k("v_rcp_f32 v8, v8")
    bf16_round(k, 10, 10)
    k("v_mov_b32 v11, v10")
    k("v_mov_b32 v9, v8")
    for i in range(9):
        for q in range(4):
            d = 64 + 8 * i + 2 * q
            k(f"""
            v_pk_add_f32 v[12:13], v[{d}:{d+1}], v[10:11] neg_lo:[0,1] neg_hi:[0,1]
            v_cvt_pk_bf16_f32 v14, v12, v13
            v_lshlrev_b32 v12, 16, v14
            v_and_b32 v13, 0xffff0000, v14
            v_pk_mul_f32 v[12:13], v[12:13], v[8:9]
            v_cvt_pk_bf16_f32 v{16+4*i+q}, v12, v13
            """)
        k(f"buffer_store_dwordx4 v[{16+4*i}:{19+4*i}], v6, s[12:15], 0 offen offset:{(2*i*1024) % 4096}")
        if i % 2 == 1:
            k("v_add_u32 v6, 4096, v6")
    k("s_branch k0_done")
    k.label("k0_not_xn")
    k(f"""
    s_sub_u32 s2, s2, {K0_XN}
    s_cmp_ge_u32 s2, {K0_WQ}
    s_cbranch_scc1 k0_not_wq
    """)
    srd(k, 8, 16, 576 * 1728 * 2)
    k(f"""
    s_lshl_b32 s10, s2, 2
    s_add_u32 s34, s10, s3
    s_mov_b32 s10, {576*1728*2}
    s_and_b32 s35, s34, 7
    s_lshr_b32 s38, s34, 3
    v_cmp_gt_u32 vcc, 60, v1
    s_and_saveexec_b64 s[36:37], vcc
    v_mul_u32_u24 v3, 13, v1
    v_lshrrev_b32 v3, 8, v3
    v_mul_u32_u24 v4, 20, v3
    v_sub_u32 v4, v1, v4
    v_mul_u32_u24 v5, 13, v4
    v_lshrrev_b32 v5, 6, v5
    v_mul_u32_u24 v6, 5, v5
    v_sub_u32 v6, v4, v6
    v_cmp_eq_u32 s[40:41], 4, v6
    v_mul_u32_u24 v10, 1152, v3
    v_mul_u32_u24 v7, 36, v5
    v_add_u32 v10, v10, v7
    v_lshl_add_u32 v10, v6, 3, v10
    s_mul_i32 s39, s35, 144
    s_mul_i32 s42, s38, {8*3456}
    s_add_u32 s39, s39, s42
    v_add_u32 v10, s39, v10
    """)
    k(f"""
    v_lshrrev_b32 v7, 2, v1
    v_mul_u32_u24 v11, {18*1024}, v7
    v_and_b32 v7, 3, v1
    v_lshl_add_u32 v11, v7, 6, v11
    s_mul_i32 s39, s35, {16*18*1024}
    s_lshr_b32 s42, s38, 2
    s_lshl_b32 s42, s42, 10
    s_add_u32 s39, s39, s42
    s_and_b32 s42, s38, 3
    s_lshl_b32 s42, s42, 8
    s_add_u32 s39, s39, s42
    s_add_u32 s39, s39, {WQ}
    v_add_u32 v11, s39, v11
    """)
    pack_chunk(k, 8, 3456, zero_hi_mask_sgpr=40)
    k("s_branch k0_done")
    k.label("k0_not_wq")
    k(f"s_sub_u32 s2, s2, {K0_WQ}")
    srd(k, 8, 18, 576 * 576 * 2)
    k(f"""
    s_lshl_b32 s34, s2, 2
    s_add_u32 s34, s34, s3
    s_mul_hi_u32 s38, s34, 0x55555556
    s_mul_i32 s35, s38, 3
    s_sub_u32 s35, s34, s35
    v_cmp_gt_u32 vcc, 48, v1
    s_and_saveexec_b64 s[36:37], vcc
    s_mul_i32 s39, s35, 48
    v_add_u32 v3, s39, v1
    v_lshlrev_b32 v10, 3, v3
    s_mul_i32 s42, s38, {8*1152}
    v_add_u32 v10, s42, v10
    v_lshrrev_b32 v7, 2, v3
    v_mul_u32_u24 v11, {18*1024}, v7
    v_and_b32 v7, 3, v3
    v_lshl_add_u32 v11, v7, 6, v11
    s_lshr_b32 s42, s38, 2
    s_lshl_b32 s39, s42, 10
    s_and_b32 s42, s38, 3
    s_lshl_b32 s42, s42, 8
    s_add_u32 s39, s39, s42
    s_add_u32 s39, s39, {WOP}
    v_add_u32 v11, s39, v11
    """)
    pack_chunk(k, 8, 1152)
    k.label("k0_done")
    tl_end(k, 0)
    k("s_endpgm")
    return k, 136, 9216 + 256


K1_QB = 92160
K1_TS = 488
K1_ML = K1_QB + 80 * K1_TS
K1_LDS = K1_ML + 4608
K1_OL = 16384
K1_YL = K1_OL + 36864
K1_SL = K1_YL + 10240


def gen_k1():
    k = K("qkv_attn_kernel")
    tl_start(k)
    TS = K1_TS
    QB = K1_QB
    k(f"""
    s_cmp_ge_u32 s2, 256
    s_cbranch_scc1 k1_done
    s_load_dwordx4 s[84:87], s[0:1], 80
    s_load_dwordx4 s[16:19], s[0:1], 32
    s_load_dwordx2 s[8:9], s[0:1], 0
    v_and_b32 v1, 63, v0
    v_lshrrev_b32 v2, 6, v0
    v_lshlrev_b32 v3, 4, v1
    v_lshrrev_b32 v4, 4, v1
    v_readfirstlane_b32 s3, v2
    s_and_b32 s4, s2, 1
    s_lshl_b32 s4, s4, 2
    s_bfe_u32 s31, s2, 0x20003
    s_add_u32 s4, s4, s31
    s_bfe_u32 s5, s2, 0x20001
    s_lshl_b32 s5, s5, 3
    s_lshr_b32 s31, s2, 5
    s_add_u32 s5, s5, s31
    v_lshlrev_b32 v5, 5, v4
    s_waitcnt lgkmcnt(0)
    """)
    stamp(k, 0)
    srd(k, 12, 86, WS_BYTES)
    k(f"""
    s_mul_i32 s31, s3, 576
    s_add_u32 s32, s31, {K1_ML}
    s_mov_b32 m0, s32
    s_mov_b32 exec_hi, 0xf
    buffer_load_dwordx4 v3, s[12:15], s31 offen lds
    s_mov_b64 exec, -1
    """)
    k("""
    s_lshl_b32 s23, s5, 2
    s_sub_u32 s24, s23, 1
    s_max_i32 s24, s24, 0
    """)
    for i in range(5):
        if i == 0:
            k(f"s_mul_i32 s25, s24, {18*1024}")
            k(f"s_add_u32 s25, s25, {XN}")
        else:
            k(f"s_add_u32 s30, s23, {i-1}")
            k(f"s_mul_i32 s{25+i}, s30, {18*1024}")
            k(f"s_add_u32 s{25+i}, s{25+i}, {XN}")
    k("s_lshl_b32 s20, s3, 10")
    k("s_add_u32 s21, s20, 8192")
    for j in range(2):
        for i in range(5):
            x = 48 + 20 * j + 4 * i
            k(f"s_add_u32 s34, s{25+i}, s{20+j}")
            k(f"buffer_load_dwordx4 v[{x}:{x+3}], v3, s[12:15], s34 offen")
    k("""
    s_add_u32 s36, s3, 8
    s_cmp_lt_u32 s3, 2
    s_cselect_b32 s36, s36, s3
    s_mov_b32 s35, s3
    """)
    for e in range(2):
        k(f"""
        s_cmp_ge_u32 s{35+e}, 5
        s_cselect_b32 s{44+e}, 17, 16
        s_cselect_b32 s37, 5, 0
        s_sub_u32 s{46+e}, s{35+e}, s37
        s_add_u32 s37, s23, s{46+e}
        s_sub_u32 s37, s37, 1
        s_max_i32 s37, s37, 0
        s_mul_i32 s37, s37, 18
        s_add_u32 s37, s37, s{44+e}
        s_lshl_b32 s37, s37, 10
        s_add_u32 s37, s37, {XN}
        buffer_load_dwordx4 v[{88+4*e}:{91+4*e}], v3, s[12:15], s37 offen
        """)
    k("s_waitcnt vmcnt(12)")
    k("s_barrier")
    k(f"""
    s_lshl_b32 s40, s4, 4
    s_lshl_b32 s41, s3, 1
    s_add_u32 s42, s41, 1
    s_min_u32 s42, s42, 14
    s_add_u32 s41, s41, s40
    s_add_u32 s42, s42, s40
    s_mul_i32 s41, s41, {18*1024}
    s_mul_i32 s42, s42, {18*1024}
    s_add_u32 s41, s41, {WQ}
    s_add_u32 s42, s42, {WQ}
    """)

    NAS = 8
    vm = VM()
    vm.add("x0", 5); vm.add("x1", 5); vm.add("e0"); vm.add("e1")

    def areg(kk, tt):
        return 124 + 8 * (kk % NAS) + 4 * tt

    def load_a(kk):
        if kk % 4 == 0 and kk > 0:
            k("s_add_u32 s41, s41, 4096")
            k("s_add_u32 s42, s42, 4096")
        for tt in range(2):
            a = areg(kk, tt)
            k(f"buffer_load_dwordx4 v[{a}:{a+3}], v3, s[12:15], s{41+tt} offen offset:{(kk%4)*1024}")
        vm.add(f"a{kk}", 2)

    k(f"""
    s_lshl_b32 s31, s3, 7
    v_add_u32 v8, s31, v5
    s_lshl_b32 s31, s44, 7
    v_add_u32 v9, s31, v5
    s_lshl_b32 s31, s45, 7
    v_add_u32 v11, s31, v5
    v_add_u32 v8, {K1_ML}, v8
    v_add_u32 v9, {K1_ML}, v9
    v_add_u32 v11, {K1_ML}, v11
    v_add_u32 v12, s20, v3
    v_add_u32 v13, 18432, v12
    v_add_u32 v14, s21, v3
    v_add_u32 v15, 18432, v14
    """)
    for e in range(2):
        k(f"""
        s_mul_i32 s37, s{46+e}, 18
        s_add_u32 s37, s37, s{44+e}
        s_lshl_b32 s37, s37, 10
        v_add_u32 v{228+e}, s37, v3
        """)

    def read_mod(j):
        va, off = ((8, 0), (8, 1024), (9, 0), (11, 0))[j]
        b = 16 + 16 * (j & 1)
        return [f"ds_read_b128 v[{b}:{b+3}], v{va} offset:{off + 2304}",
                f"ds_read_b128 v[{b+4}:{b+7}], v{va} offset:{off + 2304 + 16}",
                f"ds_read_b128 v[{b+8}:{b+11}], v{va} offset:{off}",
                f"ds_read_b128 v[{b+12}:{b+15}], v{va} offset:{off + 16}"]

    def xform(f):
        if f < 10:
            j, i = divmod(f, 5)
            x = 48 + 20 * j + 4 * i
        else:
            j = 2 + (f - 10)
            x = 88 + 4 * (f - 10)
        b = 16 + 16 * (j & 1)
        T = 96
        o = []
        for q in range(4):
            o.append(f"v_lshlrev_b32 v{T+2*q}, 16, v{x+q}")
            o.append(f"v_and_b32 v{T+2*q+1}, 0xffff0000, v{x+q}")
        if "fma1" in ABL:
            for e_ in range(8):
                o.append(f"v_fma_f32 v{T+e_}, v{T+e_}, v{b+e_}, v{b+8+e_}")
        else:
            for e_ in range(8):
                o.append(f"v_mul_f32 v{T+e_}, v{T+e_}, v{b+e_}")
            for q in range(4):
                o.append(f"v_cvt_pk_bf16_f32 v{x+q}, v{T+2*q}, v{T+2*q+1}")
            for q in range(4):
                o.append(f"v_lshlrev_b32 v{T+2*q}, 16, v{x+q}")
                o.append(f"v_and_b32 v{T+2*q+1}, 0xffff0000, v{x+q}")
            for e_ in range(8):
                o.append(f"v_add_f32 v{T+e_}, v{T+e_}, v{b+8+e_}")
        for q in range(4):
            o.append(f"v_cvt_pk_bf16_f32 v{x+q}, v{T+2*q}, v{T+2*q+1}")
        if f < 10:
            base = 12 + 2 * j
            if i < 4:
                o.append(f"ds_write_b128 v{base}, v[{x}:{x+3}] offset:{i*18432}")
            else:
                o.append(f"ds_write_b128 v{base+1}, v[{x}:{x+3}] offset:{3*18432}")
        else:
            o.append(f"ds_write_b128 v{228+f-10}, v[{x}:{x+3}]")
        return o

    for ln in read_mod(0) + read_mod(1):
        k(ln)
    k("s_waitcnt lgkmcnt(4)")
    nw = 0
    for f in range(5):
        k(f"s_waitcnt vmcnt({len(vm.ops) - 1 - f})")
        for ln in xform(f):
            k(ln)
        if f >= 1:
            load_a(nw); nw += 1
    k("s_waitcnt lgkmcnt(0)")
    stamp(k, 1)
    k("s_barrier")
    stamp(k, 2)
    k("v_add_u32 v6, 55296, v3")

    def breg(kk, i):
        return (48 if (kk & 1) == 0 else 104) + 4 * i

    def read_b(kk):
        for i in range(5):
            b = breg(kk, i)
            if i < 3:
                k(f"ds_read_b128 v[{b}:{b+3}], v3 offset:{i*18432 + kk*1024}")
            else:
                k(f"ds_read_b128 v[{b}:{b+3}], v6 offset:{(i-3)*18432 + kk*1024}")

    def acc(tt, i):
        return 188 + 20 * tt + 4 * i

    sidew = {0: [5], 1: [6], 2: [7], 3: [8], 4: [9], 5: [10], 6: [11]}
    read_b(0)
    for kk in range(18):
        if kk == 7:
            k("s_waitcnt lgkmcnt(0)")
            k("s_barrier")
        if kk < 17:
            read_b(kk + 1)
        while nw < 18 and nw < kk + NAS:
            load_a(nw); nw += 1
            if kk > 0:
                break
        side = []
        if kk == 4:
            side += read_mod(2)
        if kk == 5:
            side += read_mod(3)
        fl = sidew.get(kk, [])
        tags = [f"a{kk}"] + [("x1" if f < 10 else f"e{f-10}") for f in fl]
        k(f"s_waitcnt vmcnt({vm.need(*tags)})")
        k(f"s_waitcnt lgkmcnt({5 if kk < 17 else 0})")
        for f in fl:
            side += xform(f)
        nm = 0
        for i in range(5):
            for tt in range(2):
                a = areg(kk, tt); b = breg(kk, i); c = acc(tt, i)
                cs = "0" if kk == 0 else f"v[{c}:{c+3}]"
                k(f"v_mfma_f32_16x16x32_bf16 v[{c}:{c+3}], v[{a}:{a+3}], v[{b}:{b+3}], {cs}")
                nm += 1
                take = -(-len(side) // (11 - nm)) if side else 0
                for _ in range(take):
                    k(side.pop(0))
        assert not side
    stamp(k, 3)
    k(f"""
    v_and_b32 v6, 15, v1
    v_mul_u32_u24 v6, {TS}, v6
    v_lshl_add_u32 v6, v4, 3, v6
    s_lshl_b32 s31, s3, 6
    s_add_u32 s31, s31, {QB}
    v_add_u32 v6, s31, v6
    """)
    for tt in range(2):
        if tt == 1:
            k("s_cmp_eq_u32 s3, 7")
            k("s_cbranch_scc1 k1_skip_t1")
        for i in range(5):
            c = acc(tt, i)
            k(f"v_cvt_pk_bf16_f32 v{60+2*i}, v{c}, v{c+1}")
            k(f"v_cvt_pk_bf16_f32 v{61+2*i}, v{c+2}, v{c+3}")
            k(f"ds_write_b64 v6, v[{60+2*i}:{61+2*i}] offset:{i*16*TS + tt*32}")
    k.label("k1_skip_t1")
    k("s_waitcnt lgkmcnt(0)")
    k("s_barrier")
    stamp(k, 4)

    k(f"""
    s_and_b32 s50, s4, 1
    s_lshr_b32 s51, s4, 1
    s_lshl_b32 s52, s5, 2
    s_lshl_b32 s53, s50, 1
    s_add_u32 s52, s52, s53
    s_mul_i32 s53, s51, 9
    s_add_u32 s54, s53, s3
    s_mul_i32 s55, s54, {18*1024}
    s_add_u32 s55, s55, {WOP}
    v_add_u32 v216, 4096, v3
    v_add_u32 v217, 8192, v3
    v_add_u32 v218, 12288, v3
    v_add_u32 v219, 16384, v3
    v_and_b32 v220, 15, v1
    s_lshl_b32 s31, s52, 4
    v_add_u32 v220, s31, v220
    v_mul_u32_u24 v221, 1152, v220
    v_lshl_add_u32 v221, v4, 3, v221
    s_lshl_b32 s31, s54, 5
    v_add_u32 v222, s31, v221
    v_add_u32 v223, {16*1152}, v222
    v_lshlrev_b32 v224, 4, v4
    s_lshl_b32 s31, s54, 6
    v_add_u32 v225, s31, v224
    s_mov_b32 s56, {MOD + 2*576*4}
    s_mov_b32 s57, {MOD + 4*576*4}
    """)
    side = []
    for kk in range(18):
        vo = 3 if kk < 4 else 215 + kk // 4
        side.append(f"buffer_load_dwordx4 v[{128+4*kk}:{131+4*kk}], v{vo}, s[12:15], s55 offen offset:{(kk%4)*1024}")
    side.append("global_load_dwordx2 v[200:201], v222, s[8:9]")
    side.append("global_load_dwordx2 v[202:203], v223, s[8:9]")
    side.append("buffer_load_dwordx4 v[204:207], v225, s[12:15], s56 offen")
    side.append("buffer_load_dwordx4 v[208:211], v225, s[12:15], s57 offen")
    kreal = k
    cnt = [0]

    class KS:
        def __call__(self, txt):
            for ln in txt.strip("\n").split("\n"):
                ln = ln.strip()
                if not ln:
                    continue
                kreal(ln)
                if ln.startswith("v_") and side:
                    cnt[0] += 1
                    if cnt[0] % 10 == 0:
                        kreal(side.pop(0))

        def label(self, l):
            kreal.label(l)

    k = KS()
    k(f"""
    v_and_b32 v6, 1, v1
    v_bfe_u32 v7, v1, 1, 2
    v_lshrrev_b32 v8, 3, v1
    s_lshl_b32 s31, s3, 3
    v_add_u32 v8, s31, v8
    v_mul_u32_u24 v9, {TS}, v8
    v_mul_u32_u24 v10, 40, v7
    v_add_u32 v9, v9, v10
    v_add_u32 v9, {QB + 16*TS}, v9
    v_mul_u32_u24 v10, {8*TS}, v6
    v_sub_u32 v11, v9, v10
    v_add_u32 v12, {160 - 6*TS}, v11
    v_lshl_add_u32 v13, v6, 4, v11
    v_add_u32 v13, {320 - 6*TS}, v13
    v_add_u32 v14, v9, v10
    v_lshl_add_u32 v14, v6, 4, v14
    v_add_u32 v14, {320 - 14*TS}, v14
    """)
    for j in range(5):
        k(f"ds_read_b64 v[{16+2*j}:{17+2*j}], v9 offset:{8*j}")
    for u in range(4):
        for j in range(5):
            r = 32 + 10 * u + 2 * j
            k(f"ds_read_b64 v[{r}:{r+1}], v12 offset:{(3-u)*2*TS + 8*j}")
    for u in range(4):
        for j in range(3):
            r = 80 + 6 * u + 2 * j
            k(f"ds_read_b64 v[{r}:{r+1}], v13 offset:{(3-u)*2*TS + 8*j}")
    for u in range(4):
        for j in range(3):
            r = 104 + 6 * u + 2 * j
            k(f"ds_read_b64 v[{r}:{r+1}], v14 offset:{(3-u)*2*TS + 8*j}")
    k(f"""
    s_lshl_b32 s31, s5, 6
    v_add_u32 v15, s31, v8
    v_lshlrev_b32 v26, 3, v6
    v_sub_u32 v15, v15, v26
    v_mov_b32 v27, 0xce6e6b28
    s_waitcnt lgkmcnt(15)
    """)
    k("s_waitcnt lgkmcnt(0)")
    stamp(k, 5)
    for j in range(9):
        for u in range(4):
            src = "0" if j == 0 else f"v{28+u}"
            k(f"v_dot2_f32_bf16 v{28+u}, v{16+j}, v{32+10*u+j}, {src}")
    for u in range(4):
        bf16_round(k, 28 + u, 28 + u)
        k(f"v_mul_f32 v{28+u}, 0x3e715bef, v{28+u}")
        bf16_round(k, 28 + u, 28 + u)
        k(f"v_cmp_gt_i32 vcc, {2*u}, v15")
        k(f"v_cndmask_b32 v{28+u}, v{28+u}, v27, vcc")
    for u in range(4):
        k(f"v_mov_b32_dpp v{32+u}, v{28+u} quad_perm:[1,0,3,2] row_mask:0xf bank_mask:0xf")
    k("""
    v_max3_f32 v36, v28, v29, v30
    v_max3_f32 v36, v36, v31, v32
    v_max3_f32 v36, v36, v33, v34
    v_max_f32 v36, v36, v35
    """)
    for u in range(8):
        k(f"v_sub_f32 v{28+u}, v{28+u}, v36")
        k(f"v_mul_f32 v{28+u}, {LOG2E}, v{28+u}")
        k(f"v_exp_f32 v{28+u}, v{28+u}")
    k("""
    v_add_f32 v36, v28, v29
    v_add_f32 v37, v30, v31
    v_add_f32 v38, v32, v33
    v_add_f32 v39, v34, v35
    v_add_f32 v36, v36, v37
    v_add_f32 v38, v38, v39
    v_add_f32 v36, v36, v38
    v_rcp_f32 v36, v36
    """)
    for u in range(8):
        k(f"v_mul_f32 v{28+u}, v{28+u}, v36")
        k(f"v_cvt_pk_bf16_f32 v{40+u}, v{28+u}, 0")
        k(f"v_lshlrev_b32 v{48+u}, 16, v{40+u}")
    for u in range(8):
        vb = (80 + 6 * u) if u < 4 else (104 + 6 * (u - 4))
        for j in range(5):
            s0 = "0" if u == 0 else f"v{60+2*j}"
            s1 = "0" if u == 0 else f"v{61+2*j}"
            k(f"v_dot2_f32_bf16 v{60+2*j}, v{vb+j}, v{40+u}, {s0}")
            k(f"v_dot2_f32_bf16 v{61+2*j}, v{vb+j}, v{48+u}, {s1}")
    k(f"""
    v_mul_u32_u24 v9, 160, v8
    v_mul_u32_u24 v10, 36, v7
    v_add_u32 v9, v9, v10
    v_lshl_add_u32 v9, v6, 4, v9
    """)
    for j in range(5):
        k(f"v_cvt_pk_bf16_f32 v{70+j}, v{60+2*j}, v{61+2*j}")
        k(f"ds_write_b32 v9, v{70+j} offset:{4*j}")
    k("s_waitcnt lgkmcnt(0)")
    k = kreal
    for ln in side:
        k(ln)
    stamp(k, 6)
    k("s_barrier")
    k(f"""
    v_mul_u32_u24 v6, 160, v1
    s_lshl_b32 s31, s3, 4
    v_add_u32 v6, s31, v6
    ds_read_b128 v[16:19], v6
    ds_read_b128 v[20:23], v6 offset:128
    v_mul_u32_u24 v7, {18*1024}, v4
    v_and_b32 v8, 15, v1
    v_lshl_add_u32 v7, v8, 4, v7
    s_mul_i32 s31, s5, {4*18*1024}
    s_mul_i32 s32, s4, 9
    s_add_u32 s32, s32, s3
    s_lshl_b32 s32, s32, 8
    s_add_u32 s31, s31, s32
    s_add_u32 s31, s31, {OO}
    s_waitcnt lgkmcnt(0)
    buffer_store_dwordx4 v[16:19], v7, s[12:15], s31 offen sc1
    s_cmp_lg_u32 s3, 0
    s_cbranch_scc1 k1_st1
    buffer_store_dwordx4 v[20:23], v7, s[12:15], s31 offen offset:2048 sc1
    """)
    k.label("k1_st1")
    k(f"""
    s_waitcnt vmcnt(0)
    s_barrier
    s_lshl_b32 s33, s5, 8
    s_add_u32 s33, s33, {CNT}
    v_mov_b32 v9, s33
    s_cmp_lg_u32 s3, 7
    s_cbranch_scc1 k1_nosig
    v_mov_b32 v8, 1
    s_mov_b64 exec, 1
    global_atomic_add v9, v8, s[86:87]
    s_mov_b64 exec, -1
    """)
    k.label("k1_nosig")
    k(f"""
    s_cmp_ge_u32 s3, 2
    s_cbranch_scc1 k1_noextra
    s_add_u32 s58, s53, 8
    s_mul_i32 s59, s58, {18*1024}
    s_add_u32 s59, s59, {WOP}
    """)
    for kk in range(18):
        vo = 3 if kk < 4 else 215 + kk // 4
        k(f"buffer_load_dwordx4 v[{16+4*kk}:{19+4*kk}], v{vo}, s[12:15], s59 offen offset:{(kk%4)*1024}")
    k(f"""
    s_lshl_b32 s31, s58, 5
    s_mul_i32 s32, s3, {16*1152}
    s_add_u32 s31, s31, s32
    v_add_u32 v10, s31, v221
    global_load_dwordx2 v[88:89], v10, s[8:9]
    s_lshl_b32 s31, s58, 6
    v_add_u32 v10, s31, v224
    buffer_load_dwordx4 v[92:95], v10, s[12:15], s56 offen
    buffer_load_dwordx4 v[96:99], v10, s[12:15], s57 offen
    """)
    k.label("k1_noextra")
    k("s_mov_b32 s37, 0")
    k("s_cmp_lg_u32 s3, 7")
    k("s_cbranch_scc1 k1_ready")
    k("s_mov_b64 exec, 1")
    k.label("k1_poll")
    k("""
    global_load_dword v8, v9, s[86:87] sc1
    s_waitcnt vmcnt(0)
    v_readfirstlane_b32 s38, v8
    s_add_u32 s37, s37, 1
    s_cmp_ge_u32 s38, 8
    s_cbranch_scc1 k1_ready
    s_cmp_lt_u32 s37, 0x400000
    s_cbranch_scc0 k1_ready
    s_sleep 2
    s_branch k1_poll
    """)
    k.label("k1_ready")
    k("s_mov_b64 exec, -1")
    k("s_barrier")
    stamp(k, 7)
    k(f"""
    s_mul_i32 s31, s52, {18*1024}
    s_add_u32 s31, s31, {OO}
    s_lshl_b32 s32, s3, 10
    s_add_u32 s31, s31, s32
    s_add_u32 s34, s32, 32768
    s_add_u32 s35, s32, 24576
    s_cmp_lt_u32 s3, 4
    s_cselect_b32 s34, s34, s35
    s_sub_u32 s35, s34, s32
    s_add_u32 s35, s35, s31
    v_add_u32 v10, 24576, v3
    buffer_load_dwordx4 v[100:103], v3, s[12:15], s31 offen sc1
    buffer_load_dwordx4 v[104:107], v217, s[12:15], s31 offen sc1
    buffer_load_dwordx4 v[108:111], v219, s[12:15], s31 offen sc1
    buffer_load_dwordx4 v[112:115], v10, s[12:15], s31 offen sc1
    buffer_load_dwordx4 v[116:119], v3, s[12:15], s35 offen sc1
    v_add_u32 v11, s32, v3
    v_add_u32 v11, {K1_OL}, v11
    v_add_u32 v12, s34, v3
    v_add_u32 v12, {K1_OL}, v12
    s_waitcnt vmcnt(4)
    ds_write_b128 v11, v[100:103]
    s_waitcnt vmcnt(3)
    ds_write_b128 v11, v[104:107] offset:8192
    s_waitcnt vmcnt(2)
    ds_write_b128 v11, v[108:111] offset:16384
    s_waitcnt vmcnt(1)
    ds_write_b128 v11, v[112:115] offset:24576
    s_waitcnt vmcnt(0)
    ds_write_b128 v12, v[116:119]
    v_add_u32 v13, {K1_OL}, v3
    s_mul_i32 s31, s3, {18*1024}
    v_add_u32 v14, s31, v13
    s_waitcnt lgkmcnt(0)
    s_barrier
    """)

    stamp(k, 4)
    k(f"""
    s_sub_u32 s31, s3, 2
    s_cmp_ge_u32 s31, 2
    s_cbranch_scc1 k1_nopfw
    v_subrev_u32 v24, 128, v0
    v_min_u32 v24, 71, v24
    v_cmp_le_u32 vcc, 36, v24
    v_subrev_u32 v25, 36, v24
    v_cndmask_b32 v24, v24, v25, vcc
    v_mul_u32_u24 v25, 57, v24
    v_lshrrev_b32 v25, 9, v25
    v_mul_u32_u24 v26, 9, v25
    v_sub_u32 v26, v24, v26
    v_mul_u32_u24 v25, 9216, v25
    v_lshl_add_u32 v25, v26, 7, v25
    s_lshr_b32 s31, s2, 3
    s_mul_i32 s31, s31, {4*9216}
    s_and_b32 s32, s2, 7
    s_mul_i32 s32, s32, 1152
    s_add_u32 s31, s31, s32
    v_add_u32 v25, s31, v25
    v_mov_b32 v26, s16
    v_mov_b32 v27, s17
    v_mov_b32 v28, s18
    v_mov_b32 v29, s19
    v_cndmask_b32 v26, v26, v28, vcc
    v_cndmask_b32 v27, v27, v29, vcc
    v_add_co_u32 v26, vcc, v26, v25
    v_addc_co_u32 v27, vcc, 0, v27, vcc
    global_load_dword v40, v[26:27], off
    """)
    k.label("k1_nopfw")
    BB = [100, 108, 116, 212]

    def b2(kk, tt):
        return BB[kk % 4] + 4 * tt

    def read_b2(kk):
        for tt in range(2):
            b = b2(kk, tt)
            k(f"ds_read_b128 v[{b}:{b+3}], v13 offset:{(tt*18 + kk)*1024}")

    A2 = [232, 236]

    def gemm2(extra):
        for kk in range(3):
            read_b2(kk)
        for kk in range(18):
            if kk + 3 < 18:
                read_b2(kk + 3)
            k(f"s_waitcnt lgkmcnt({2 * min(3, 17 - kk)})")
            for tt in range(2):
                c = A2[tt]; b = b2(kk, tt)
                cs = "0" if kk == 0 else f"v[{c}:{c+3}]"
                k(f"v_mfma_f32_16x16x32_bf16 v[{c}:{c+3}], v[{128+4*kk}:{131+4*kk}], v[{b}:{b+3}], {cs}")
            if extra is not None:
                b = b2(kk, extra)
                cs = "0" if kk == 0 else "v[240:243]"
                k(f"v_mfma_f32_16x16x32_bf16 v[240:243], v[{16+4*kk}:{19+4*kk}], v[{b}:{b+3}], {cs}")

    k("s_cmp_eq_u32 s3, 0")
    k("s_cbranch_scc1 k1_g2a")
    k("s_cmp_eq_u32 s3, 1")
    k("s_cbranch_scc1 k1_g2b")
    gemm2(None)
    k("s_branch k1_g2e")
    k.label("k1_g2a")
    gemm2(0)
    k("s_branch k1_g2e")
    k.label("k1_g2b")
    gemm2(1)
    k.label("k1_g2e")
    k("s_nop 7")
    stamp(k, 5)

    def unit_epi(c, xr, ga, g2, sm, x1o, yo, first):
        k(f"""
        v_cvt_pk_bf16_f32 v110, v{c}, v{c+1}
        v_cvt_pk_bf16_f32 v111, v{c+2}, v{c+3}
        v_lshlrev_b32 v112, 16, v110
        v_and_b32 v113, 0xffff0000, v110
        v_lshlrev_b32 v114, 16, v111
        v_and_b32 v115, 0xffff0000, v111
        v_pk_mul_f32 v[112:113], v[112:113], v[{ga}:{ga+1}]
        v_pk_mul_f32 v[114:115], v[114:115], v[{ga+2}:{ga+3}]
        v_cvt_pk_bf16_f32 v110, v112, v113
        v_cvt_pk_bf16_f32 v111, v114, v115
        v_lshlrev_b32 v112, 16, v110
        v_and_b32 v113, 0xffff0000, v110
        v_lshlrev_b32 v114, 16, v111
        v_and_b32 v115, 0xffff0000, v111
        v_lshlrev_b32 v116, 16, v{xr}
        v_and_b32 v117, 0xffff0000, v{xr}
        v_lshlrev_b32 v118, 16, v{xr+1}
        v_and_b32 v119, 0xffff0000, v{xr+1}
        v_pk_add_f32 v[112:113], v[112:113], v[116:117]
        v_pk_add_f32 v[114:115], v[114:115], v[118:119]
        v_cvt_pk_bf16_f32 v{x1o}, v112, v113
        v_cvt_pk_bf16_f32 v{x1o+1}, v114, v115
        v_lshlrev_b32 v112, 16, v{x1o}
        v_and_b32 v113, 0xffff0000, v{x1o}
        v_lshlrev_b32 v114, 16, v{x1o+1}
        v_and_b32 v115, 0xffff0000, v{x1o+1}
        """)
        if first:
            k(f"v_add_f32 v{sm}, v112, v113")
            k(f"v_mul_f32 v{sm+1}, v112, v112")
        else:
            k(f"v_add_f32 v{sm}, v{sm}, v112")
            k(f"v_fmac_f32 v{sm+1}, v112, v112")
            k(f"v_add_f32 v{sm}, v{sm}, v113")
        k(f"""
        v_fmac_f32 v{sm+1}, v113, v113
        v_add_f32 v{sm}, v{sm}, v114
        v_fmac_f32 v{sm+1}, v114, v114
        v_add_f32 v{sm}, v{sm}, v115
        v_fmac_f32 v{sm+1}, v115, v115
        v_pk_mul_f32 v[112:113], v[112:113], v[{g2}:{g2+1}]
        v_pk_mul_f32 v[114:115], v[114:115], v[{g2+2}:{g2+3}]
        v_cvt_pk_bf16_f32 v{yo}, v112, v113
        v_cvt_pk_bf16_f32 v{yo+1}, v114, v115
        """)

    k(f"""
    s_lshr_b32 s33, s3, 1
    s_lshl_b32 s33, s33, 10
    s_and_b32 s32, s3, 1
    s_lshl_b32 s32, s32, 3
    s_add_u32 s33, s33, s32
    s_add_u32 s33, s33, {K1_YL}
    v_add_u32 v6, s33, v3
    s_mul_i32 s36, s52, {144*128}
    s_lshl_b32 s37, s54, 9
    s_add_u32 s36, s36, s37
    s_add_u32 s36, s36, {X1}
    s_add_u32 s37, s36, {144*128}
    v_lshlrev_b32 v7, 3, v1
    """)
    for tt in range(2):
        unit_epi(A2[tt], 200 + 2 * tt, 204, 208, 120 + 2 * tt, 244 + 2 * tt, 248 + 2 * tt, True)
        k(f"ds_write_b64 v6, v[{248+2*tt}:{249+2*tt}] offset:{5120*tt}")
        k(f"buffer_store_dwordx2 v[{244+2*tt}:{245+2*tt}], v7, s[12:15], s{36+tt} offen")
    for w in range(2):
        k(f"s_cmp_lg_u32 s3, {w}")
        k(f"s_cbranch_scc1 k1_noex3_{w}")
        unit_epi(240, 88, 92, 96, 120 + 2 * w, 252, 254, False)
        k(f"""
        v_add_u32 v8, {K1_YL + 5120*w + 4096}, v3
        ds_write_b64 v8, v[254:255]
        s_add_u32 s38, s52, {w}
        s_mul_i32 s38, s38, {144*128}
        s_add_u32 s39, s53, 8
        s_lshl_b32 s39, s39, 9
        s_add_u32 s38, s38, s39
        s_add_u32 s38, s38, {X1}
        buffer_store_dwordx2 v[252:253], v7, s[12:15], s38 offen
        """)
        k.label(f"k1_noex3_{w}")
    for r in range(120, 124):
        k(f"v_mov_b32 v{r+4}, v{r}")
    for r in range(120, 124):
        k(f"v_permlane16_swap_b32 v{r}, v{r+4}")
    for r in range(120, 124):
        k(f"v_add_f32 v{r}, v{r}, v{r+4}")
    for r in range(120, 124):
        k(f"v_mov_b32 v{r+4}, v{r}")
    for r in range(120, 124):
        k(f"v_permlane32_swap_b32 v{r}, v{r+4}")
    for r in range(120, 124):
        k(f"v_add_f32 v{r}, v{r}, v{r+4}")
    k(f"""
    v_cmp_gt_u32 vcc, 16, v1
    v_cndmask_b32 v120, v122, v120, vcc
    v_cndmask_b32 v121, v123, v121, vcc
    s_lshl_b32 s31, s3, 8
    s_add_u32 s31, s31, {K1_SL}
    v_lshlrev_b32 v5, 3, v1
    v_add_u32 v5, s31, v5
    s_mov_b32 exec_hi, 0
    ds_write_b64 v5, v[120:121]
    s_mov_b64 exec, -1
    s_waitcnt lgkmcnt(0)
    s_barrier
    """)
    if DIAG:
        k("s_mov_b32 s71, s76")
        k("s_mov_b32 s72, s77")
    stamp(k, 3)
    stamp_flush(k, 7, 3, "k1", 60)
    k(f"""
    s_lshr_b32 s32, s3, 2
    s_and_b32 s31, s3, 3
    s_mul_i32 s33, s32, 5120
    s_lshl_b32 s34, s31, 10
    s_add_u32 s33, s33, s34
    s_add_u32 s33, s33, {K1_YL}
    v_add_u32 v6, s33, v3
    ds_read_b128 v[24:27], v6
    s_lshr_b32 s35, s51, 1
    s_mul_i32 s35, s35, 9
    s_and_b32 s36, s51, 1
    s_lshl_b32 s37, s36, 2
    s_add_u32 s37, s37, s35
    s_add_u32 s37, s37, s31
    s_add_u32 s38, s52, s32
    s_mul_i32 s38, s38, 18
    s_add_u32 s37, s37, s38
    s_lshl_b32 s37, s37, 10
    s_add_u32 s37, s37, {YY}
    s_waitcnt lgkmcnt(0)
    buffer_store_dwordx4 v[24:27], v3, s[12:15], s37 offen
    s_cmp_eq_u32 s3, 1
    s_cbranch_scc1 k1_stats
    s_cmp_lg_u32 s31, 0
    s_cbranch_scc1 k1_done
    ds_read_b64 v[28:29], v6 offset:4096
    s_add_u32 s37, s35, 8
    s_add_u32 s37, s37, s38
    s_lshl_b32 s37, s37, 10
    s_lshl_b32 s36, s36, 3
    s_add_u32 s37, s37, s36
    s_add_u32 s37, s37, {YY}
    s_waitcnt lgkmcnt(0)
    buffer_store_dwordx2 v[28:29], v3, s[12:15], s37 offen
    s_branch k1_done
    """)
    k.label("k1_stats")
    k("v_lshlrev_b32 v5, 2, v1")
    for w in range(8):
        k(f"ds_read_b32 v{32+w}, v5 offset:{K1_SL + 256*w}")
    k("s_waitcnt lgkmcnt(0)")
    k(f"""
    v_add_f32 v32, v32, v33
    v_add_f32 v34, v34, v35
    v_add_f32 v36, v36, v37
    v_add_f32 v38, v38, v39
    v_add_f32 v32, v32, v34
    v_add_f32 v36, v36, v38
    v_add_f32 v32, v32, v36
    s_lshl_b32 s31, s51, 14
    s_lshl_b32 s32, s52, 7
    s_add_u32 s31, s31, s32
    s_add_u32 s31, s31, {STAT}
    buffer_store_dword v32, v5, s[12:15], s31 offen
    s_branch k1_done
    """)
    k.label("k1_done")
    tl_end(k, 1)
    k("s_endpgm")
    return k, 256, K1_LDS


K2_GRID = 256
K2_YL = 36864 + 2304
K2_LDS = K2_YL + 10240


def gen_k2():
    k = K("wo_kernel")
    tl_start(k)
    k(f"""
    s_cmp_ge_u32 s2, {K2_GRID}
    s_cbranch_scc1 k2_done
    s_load_dwordx2 s[4:5], s[0:1], 0
    s_load_dwordx4 s[16:19], s[0:1], 32
    s_load_dwordx2 s[6:7], s[0:1], 88
    v_and_b32 v1, 63, v0
    v_lshrrev_b32 v2, 6, v0
    v_lshlrev_b32 v3, 4, v1
    v_lshrrev_b32 v4, 4, v1
    v_readfirstlane_b32 s3, v2
    s_waitcnt lgkmcnt(0)
    """)
    srd(k, 12, 6, WS_BYTES)
    k(f"""
    s_and_b32 s20, s2, 7
    s_lshl_b32 s20, s20, 3
    s_bfe_u32 s21, s2, 0x30003
    s_add_u32 s20, s20, s21
    s_lshr_b32 s21, s2, 6
    s_lshl_b32 s24, s20, 1
    s_mul_i32 s25, s21, 9
    s_add_u32 s25, s25, s3
    s_mul_i32 s27, s24, {18*1024}
    s_add_u32 s27, s27, {OO}
    s_lshl_b32 s26, s3, 12
    s_add_u32 s27, s27, s26
    s_mul_i32 s28, s25, {18*1024}
    s_add_u32 s28, s28, {WOP}
    """)
    stamp(k, 0)
    k("s_mov_b32 m0, s26")
    for i in range(4):
        k(f"buffer_load_dwordx4 v3, s[12:15], s27 offen offset:{1024*i} lds")
    for q in range(5):
        k(f"v_add_u32 v{5+q}, {4096*q}, v3")

    def areg(kk):
        return 24 + 4 * (kk % 11)

    def load_a(kk):
        a = areg(kk)
        k(f"buffer_load_dwordx4 v[{a}:{a+3}], v{5+kk//4}, s[12:15], s28 offen offset:{(kk%4)*1024}")

    for kk in range(11):
        load_a(kk)
    k(f"""
    v_and_b32 v10, 15, v1
    s_lshl_b32 s31, s24, 4
    v_add_u32 v10, s31, v10
    v_mul_u32_u24 v11, 1152, v10
    v_lshl_add_u32 v11, v4, 3, v11
    s_lshl_b32 s31, s25, 5
    v_add_u32 v11, s31, v11
    v_add_u32 v13, {16*1152}, v11
    v_lshlrev_b32 v12, 4, v4
    s_lshl_b32 s31, s25, 6
    v_add_u32 v12, s31, v12
    s_mov_b32 s34, {MOD + 2*576*4}
    s_mov_b32 s35, {MOD + 4*576*4}
    global_load_dwordx2 v[14:15], v11, s[4:5]
    global_load_dwordx2 v[16:17], v13, s[4:5]
    buffer_load_dwordx4 v[72:75], v12, s[12:15], s34 offen
    buffer_load_dwordx4 v[76:79], v12, s[12:15], s35 offen
    s_waitcnt vmcnt(15)
    s_barrier
    """)
    stamp(k, 1)

    def breg(kk, tt):
        return 80 + 8 * (kk & 1) + 4 * tt

    def read_b(kk):
        for tt in range(2):
            b = breg(kk, tt)
            k(f"ds_read_b128 v[{b}:{b+3}], v3 offset:{(tt*18 + kk)*1024}")

    accs = [18, 68]
    read_b(0)
    for kk in range(18):
        if kk < 17:
            read_b(kk + 1)
        if kk < 11:
            n_after = (10 - kk) + 4 + min(kk, 7)
        else:
            n_after = 17 - kk
        k(f"s_waitcnt vmcnt({n_after}) lgkmcnt({2 if kk < 17 else 0})")
        a = areg(kk)
        for tt in range(2):
            c = accs[tt]
            b = breg(kk, tt)
            cs = "0" if kk == 0 else f"v[{c}:{c+3}]"
            k(f"v_mfma_f32_16x16x32_bf16 v[{c}:{c+3}], v[{a}:{a+3}], v[{b}:{b+3}], {cs}")
        if kk + 11 < 18:
            load_a(kk + 11)
    stamp(k, 2)
    k(f"""
    s_cmp_ge_u32 s3, 2
    s_cbranch_scc1 k2_nopf
    v_min_u32 v24, 71, v0
    v_cmp_le_u32 vcc, 36, v24
    v_subrev_u32 v25, 36, v24
    v_cndmask_b32 v24, v24, v25, vcc
    v_mul_u32_u24 v25, 57, v24
    v_lshrrev_b32 v25, 9, v25
    v_mul_u32_u24 v26, 9, v25
    v_sub_u32 v26, v24, v26
    v_mul_u32_u24 v25, 9216, v25
    v_lshl_add_u32 v25, v26, 7, v25
    s_lshr_b32 s31, s2, 3
    s_mul_i32 s31, s31, {4*9216}
    s_and_b32 s32, s2, 7
    s_mul_i32 s32, s32, 1152
    s_add_u32 s31, s31, s32
    v_add_u32 v25, s31, v25
    v_mov_b32 v26, s16
    v_mov_b32 v27, s17
    v_mov_b32 v28, s18
    v_mov_b32 v29, s19
    v_cndmask_b32 v26, v26, v28, vcc
    v_cndmask_b32 v27, v27, v29, vcc
    v_add_co_u32 v26, vcc, v26, v25
    v_addc_co_u32 v27, vcc, 0, v27, vcc
    global_load_dword v95, v[26:27], off
    """)
    k.label("k2_nopf")
    k(f"""
    s_lshr_b32 s33, s3, 1
    s_lshl_b32 s33, s33, 10
    s_and_b32 s32, s3, 1
    s_lshl_b32 s32, s32, 3
    s_add_u32 s33, s33, s32
    s_add_u32 s33, s33, {K2_YL}
    v_add_u32 v6, s33, v3
    s_mul_i32 s36, s24, {144*128}
    s_lshl_b32 s37, s25, 9
    s_add_u32 s36, s36, s37
    s_add_u32 s36, s36, {X1}
    s_add_u32 s37, s36, {144*128}
    v_lshlrev_b32 v7, 3, v1
    """)
    ga, g2 = 72, 76
    for tt in range(2):
        c = accs[tt]
        xr = 14 + 2 * tt
        sm, sq = 40 + 2 * tt, 41 + 2 * tt
        k(f"""
        v_cvt_pk_bf16_f32 v24, v{c}, v{c+1}
        v_cvt_pk_bf16_f32 v25, v{c+2}, v{c+3}
        v_lshlrev_b32 v26, 16, v24
        v_and_b32 v27, 0xffff0000, v24
        v_lshlrev_b32 v28, 16, v25
        v_and_b32 v29, 0xffff0000, v25
        v_pk_mul_f32 v[26:27], v[26:27], v[{ga}:{ga+1}]
        v_pk_mul_f32 v[28:29], v[28:29], v[{ga+2}:{ga+3}]
        v_cvt_pk_bf16_f32 v24, v26, v27
        v_cvt_pk_bf16_f32 v25, v28, v29
        v_lshlrev_b32 v26, 16, v24
        v_and_b32 v27, 0xffff0000, v24
        v_lshlrev_b32 v28, 16, v25
        v_and_b32 v29, 0xffff0000, v25
        v_lshlrev_b32 v30, 16, v{xr}
        v_and_b32 v31, 0xffff0000, v{xr}
        v_lshlrev_b32 v32, 16, v{xr+1}
        v_and_b32 v33, 0xffff0000, v{xr+1}
        v_pk_add_f32 v[26:27], v[26:27], v[30:31]
        v_pk_add_f32 v[28:29], v[28:29], v[32:33]
        v_cvt_pk_bf16_f32 v{34+2*tt}, v26, v27
        v_cvt_pk_bf16_f32 v{35+2*tt}, v28, v29
        v_lshlrev_b32 v26, 16, v{34+2*tt}
        v_and_b32 v27, 0xffff0000, v{34+2*tt}
        v_lshlrev_b32 v28, 16, v{35+2*tt}
        v_and_b32 v29, 0xffff0000, v{35+2*tt}
        v_add_f32 v{sm}, v26, v27
        v_mul_f32 v{sq}, v26, v26
        v_fmac_f32 v{sq}, v27, v27
        v_add_f32 v{sm}, v{sm}, v28
        v_fmac_f32 v{sq}, v28, v28
        v_add_f32 v{sm}, v{sm}, v29
        v_fmac_f32 v{sq}, v29, v29
        v_pk_mul_f32 v[26:27], v[26:27], v[{g2}:{g2+1}]
        v_pk_mul_f32 v[28:29], v[28:29], v[{g2+2}:{g2+3}]
        v_cvt_pk_bf16_f32 v{44+2*tt}, v26, v27
        v_cvt_pk_bf16_f32 v{45+2*tt}, v28, v29
        ds_write_b64 v6, v[{44+2*tt}:{45+2*tt}] offset:{5120*tt}
        buffer_store_dwordx2 v[{34+2*tt}:{35+2*tt}], v7, s[12:15], s{36+tt} offen
        """)
    for r in range(40, 44):
        k(f"v_mov_b32 v{r+8}, v{r}")
    for r in range(40, 44):
        k(f"v_permlane16_swap_b32 v{r}, v{r+8}")
    for r in range(40, 44):
        k(f"v_add_f32 v{r}, v{r}, v{r+8}")
    for r in range(40, 44):
        k(f"v_mov_b32 v{r+8}, v{r}")
    for r in range(40, 44):
        k(f"v_permlane32_swap_b32 v{r}, v{r+8}")
    for r in range(40, 44):
        k(f"v_add_f32 v{r}, v{r}, v{r+8}")
    k(f"""
    v_cmp_gt_u32 vcc, 16, v1
    v_cndmask_b32 v40, v42, v40, vcc
    v_cndmask_b32 v41, v43, v41, vcc
    s_lshl_b32 s31, s3, 8
    s_add_u32 s31, s31, 36864
    v_lshlrev_b32 v5, 3, v1
    v_add_u32 v5, s31, v5
    s_mov_b32 exec_hi, 0
    ds_write_b64 v5, v[40:41]
    s_mov_b64 exec, -1
    s_waitcnt lgkmcnt(0)
    s_barrier
    s_cmp_eq_u32 s3, 0
    s_cbranch_scc1 k2_stats
    """)
    k(f"""
    s_sub_u32 s31, s3, 1
    s_lshr_b32 s32, s31, 2
    s_and_b32 s31, s31, 3
    s_mul_i32 s33, s32, 5120
    s_lshl_b32 s34, s31, 10
    s_add_u32 s33, s33, s34
    s_add_u32 s33, s33, {K2_YL}
    v_add_u32 v6, s33, v3
    ds_read_b128 v[24:27], v6
    s_lshr_b32 s35, s21, 1
    s_mul_i32 s35, s35, 9
    s_and_b32 s36, s21, 1
    s_lshl_b32 s37, s36, 2
    s_add_u32 s37, s37, s35
    s_add_u32 s37, s37, s31
    s_add_u32 s38, s24, s32
    s_mul_i32 s38, s38, 18
    s_add_u32 s37, s37, s38
    s_lshl_b32 s37, s37, 10
    s_add_u32 s37, s37, {YY}
    s_waitcnt lgkmcnt(0)
    buffer_store_dwordx4 v[24:27], v3, s[12:15], s37 offen
    s_cmp_lg_u32 s31, 0
    s_cbranch_scc1 k2_done
    ds_read_b64 v[28:29], v6 offset:4096
    s_add_u32 s37, s35, 8
    s_add_u32 s37, s37, s38
    s_lshl_b32 s37, s37, 10
    s_lshl_b32 s36, s36, 3
    s_add_u32 s37, s37, s36
    s_add_u32 s37, s37, {YY}
    s_waitcnt lgkmcnt(0)
    buffer_store_dwordx2 v[28:29], v3, s[12:15], s37 offen
    s_branch k2_done
    """)
    k.label("k2_stats")
    k("v_lshlrev_b32 v5, 2, v1")
    for w in range(9):
        k(f"ds_read_b32 v{24+w}, v5 offset:{36864 + 256*w}")
    k("s_waitcnt lgkmcnt(0)")
    k("""
    v_add_f32 v24, v24, v25
    v_add_f32 v26, v26, v27
    v_add_f32 v28, v28, v29
    v_add_f32 v30, v30, v31
    v_add_f32 v24, v24, v26
    v_add_f32 v28, v28, v30
    v_add_f32 v24, v24, v32
    v_add_f32 v24, v24, v28
    """)
    k(f"""
    s_lshl_b32 s31, s21, 14
    s_lshl_b32 s32, s24, 7
    s_add_u32 s31, s31, s32
    s_add_u32 s31, s31, {STAT}
    buffer_store_dword v24, v5, s[12:15], s31 offen
    """)
    stamp(k, 3)
    stamp_flush(k, 4, 3, "k2", 90)
    k.label("k2_done")
    tl_end(k, 2)
    k("s_endpgm")
    return k, 96, K2_LDS


K3_R = 8
K3_ST = 18432
K3_GSL = K3_R * K3_ST
K3_GBL = K3_GSL + 2304
K3_LDS = K3_GBL + 2304 + 16


class VM:
    def __init__(self):
        self.ops = []

    def add(self, tag, n=1):
        self.ops += [tag] * n

    def need(self, *tags):
        last = max((i for i, t in enumerate(self.ops) if t in tags), default=-1)
        return len(self.ops) - 1 - last


def gen_k3():
    k = K("ffn1_kernel")
    tl_start(k)
    R, ST = K3_R, K3_ST
    LA = PRM.get("LA", 4)
    NA = 6
    S, D, DY = PRM.get("S", 3), 4, 4
    k(f"""
    s_cmp_ge_u32 s2, 256
    s_cbranch_scc1 k3_done
    s_load_dwordx4 s[16:19], s[0:1], 32
    s_load_dwordx2 s[56:57], s[0:1], 48
    s_load_dwordx2 s[6:7], s[0:1], 88
    v_and_b32 v1, 63, v0
    v_lshrrev_b32 v2, 6, v0
    v_lshlrev_b32 v3, 4, v1
    v_lshrrev_b32 v4, 4, v1
    v_readfirstlane_b32 s3, v2
    s_and_b32 s20, s2, 7
    s_lshl_b32 s20, s20, 2
    s_bfe_u32 s21, s2, 0x20003
    s_add_u32 s20, s20, s21
    s_lshr_b32 s21, s2, 5
    s_waitcnt lgkmcnt(0)
    """)
    stamp(k, 0)
    if DIAG:
        k("s_memrealtime s[90:91]")
    srd(k, 12, 6, WS_BYTES)
    k(f"""
    s_cmp_ge_u32 s3, 4
    s_cselect_b32 s8, s18, s16
    s_cselect_b32 s9, s19, s17
    s_cselect_b32 s22, 9216, 0
    s_and_b32 s9, s9, 0xffff
    s_mov_b32 s10, {576*4608*2}
    s_mov_b32 s11, 0x00020000
    s_and_b32 s23, s3, 3
    s_mul_i32 s24, s23, 2304
    s_add_u32 s22, s22, s24
    s_lshl_b32 s24, s21, 4
    s_lshl_b32 s25, s3, 1
    s_add_u32 s24, s24, s25
    s_mul_i32 s25, s24, {18*1024}
    s_add_u32 s25, s25, {YY}
    s_add_u32 s26, s25, {18*1024}
    s_mov_b32 s50, -1
    s_mov_b32 s51, 0xffff
    s_mov_b32 s52, 0x3ffff
    s_mov_b32 s53, 0
    s_and_b32 s27, s23, 1
    s_mul_i32 s27, s27, {8*9216}
    s_mul_i32 s28, s20, 288
    s_add_u32 s27, s27, s28
    s_lshr_b32 s28, s23, 1
    s_mul_i32 s54, s28, {16*9216}
    s_mul_i32 s55, s28, {144*9216}
    """)
    for i in range(3):
        k(f"""
        v_add_u32 v7, {48*i}, v1
        v_mul_u32_u24 v8, 0xe39, v7
        v_lshrrev_b32 v8, 16, v8
        v_mul_u32_u24 v9, 18, v8
        v_sub_u32 v9, v7, v9
        v_mul_u32_u24 v8, 9216, v8
        v_lshl_add_u32 v8, v9, 4, v8
        v_add_u32 v{10+i}, s27, v8
        """)

    def ybuf(st, tt):
        return 72 + 8 * (st % 5) + 4 * tt

    def dma_parts(st):
        parts = []
        for i in range(3):
            p = []
            if i == 0:
                p += [f"s_add_u32 s30, s22, {(st % R) * ST}",
                      f"s_add_u32 s29, s{54 if st % 9 < 8 else 55}, {tile_of(st, 0) * 16 * 9216}"]
            p += [f"s_add_u32 m0, s30, {768*i}", "s_mov_b64 exec, s[50:51]",
                  f"buffer_load_dwordx4 v{10+i}, s[8:11], s29 offen lds", "s_mov_b64 exec, -1"]
            parts.append((p, f"w{st}"))
        return parts

    def y_parts(st):
        parts = []
        for tt in range(2):
            p = []
            if tt == 0 and st % 4 == 0 and st > 0:
                p += ["s_add_u32 s25, s25, 4096", "s_add_u32 s26, s26, 4096"]
            y = ybuf(st, tt)
            p.append(f"buffer_load_dwordx4 v[{y}:{y+3}], v3, s[12:15], s{25+tt} offen offset:{(st * 1024) % 4096}")
            parts.append((p, f"y{st}"))
        return parts

    vm0 = VM()

    def emit(parts, vm, loop=False):
        for p, tag in parts:
            if loop and "nodma" in ABL:
                continue
            for ln in p:
                k(ln)
            vm.add(tag)

    emit(dma_parts(0) + y_parts(0), vm0)
    k(f"""
    v_bfe_u32 v7, v1, 2, 2
    v_lshl_add_u32 v7, v4, 2, v7
    v_mul_u32_u24 v7, 288, v7
    v_and_b32 v8, 3, v1
    v_lshl_add_u32 v13, v8, 3, v7
    v_add_u32 v14, {3*ST}, v13
    v_add_u32 v15, {6*ST}, v13
    v_and_b32 v7, 15, v1
    v_lshlrev_b32 v8, 5, v4
    v_lshl_add_u32 v8, v7, 4, v8
    v_add_u32 v8, {K3_GBL}, v8
    v_mov_b32 v9, {K3_GBL + 2304}
    v_cmp_gt_u32 vcc, 2, v7
    v_cndmask_b32 v16, v9, v8, vcc
    v_mov_b32 v19, 128
    v_cndmask_b32 v19, 0, v19, vcc
    v_mov_b32 v20, 0
    v_mov_b32 v21, 0
    v_mov_b32 v22, 0
    v_mov_b32 v23, 0
    ds_write_b128 v9, v[20:23]
    s_mul_i32 s27, s3, 288
    s_add_u32 s28, s27, {K3_GBL}
    s_add_u32 s27, s27, {GSB}
    s_mov_b32 m0, s28
    s_mov_b64 exec, s[52:53]
    buffer_load_dwordx4 v3, s[12:15], s27 offen lds
    s_mov_b64 exec, -1
    """)
    vm0.add("gsb")
    emit(dma_parts(1) + y_parts(1), vm0)
    k(f"""
    v_and_b32 v17, 31, v1
    s_lshl_b32 s27, s24, 4
    v_add_u32 v17, s27, v17
    v_lshlrev_b32 v17, 3, v17
    v_lshrrev_b32 v18, 5, v1
    v_mul_u32_u24 v18, {2*16384}, v18
    v_add_u32 v17, v17, v18
    s_mov_b32 s27, {STAT}
    s_mov_b32 s28, {STAT + 16384}
    buffer_load_dwordx2 v[6:7], v17, s[12:15], s27 offen
    buffer_load_dwordx2 v[8:9], v17, s[12:15], s28 offen
    """)
    vm0.add("stat", 2)
    k("""
    s_and_b32 s60, s23, 1
    s_mul_i32 s60, s60, 9216
    s_lshr_b32 s61, s23, 1
    s_lshl_b32 s61, s61, 5
    s_add_u32 s60, s60, s61
    s_add_u32 s61, s60, 64
    s_add_u32 s62, s60, 128
    s_add_u32 s63, s60, 192
    s_add_u32 s64, s60, 256
    s_cmp_lt_u32 s23, 2
    s_cselect_b32 s64, s64, s63
    """)

    def acc(tt, m, ft):
        return 112 + ((tt * 2 + m) * 9 + ft) * 4

    frs = [(m, ft) for ft in range(9) for m in range(2)]
    GB = 20

    def body(grp):
        import copy
        vm = copy.deepcopy(vm0)
        nx = 5 if grp == 0 and "nogs" not in ABL else 0
        per = 18 + nx
        seq = []
        xi = 0
        for j in range(18):
            seq.append(("m", j))
            if nx and j % 4 == 1 and xi < nx:
                seq.append(("x", xi)); xi += 1
        while xi < nx:
            seq.append(("x", xi)); xi += 1
        NQ = 18 * per

        def areg(q):
            return 48 + 4 * (q % NA)

        def read_frag(q):
            st, j = divmod(q, per)
            kind, idx = seq[j]
            sl = st % R
            base = 13 + sl // 3
            a = areg(q)
            if "halfread" in ABL and q >= 12 and (q & 1):
                k("s_nop 0")
                k("s_nop 0")
                return
            if kind == "m":
                m, ft = frs[idx]
                off = (sl % 3) * ST + m * 9216 + ft * 32
                k(f"ds_read_b64_tr_b16 v[{a}:{a+1}], v{base} offset:{off}")
                k(f"ds_read_b64_tr_b16 v[{a+2}:{a+3}], v{base} offset:{off + 4608}")
            else:
                t = 17 + (idx & 1)
                off = (sl % 3) * ST
                k(f"v_add_u32 v{t}, s{60+idx}, v{base}")
                k(f"ds_read_b64_tr_b16 v[{a}:{a+1}], v{t} offset:{off}")
                k(f"ds_read_b64_tr_b16 v[{a+2}:{a+3}], v{t} offset:{off + 4608}")

        BJ = PRM.get("BJ0", 8) if grp == 0 else PRM.get("BJ1", 2)
        VJ = PRM.get("VJ0", 12) if grp == 0 else BJ
        if PRM.get("P%d" % grp, 0):
            k(f"s_setprio {PRM['P%d' % grp]}")
        k(f"s_waitcnt vmcnt({vm.need('w0', 'y0', 'gsb')}) lgkmcnt(0)")
        k("s_barrier")
        stamp(k, 1)
        for t in range(18 + S * grp):
            st = t - S * grp
            parts = []
            if t == 0:
                for s_ in range(2, D):
                    parts += dma_parts(s_) + y_parts(s_)
            if t + D < 18:
                parts += dma_parts(t + D)
            ys = st + DY
            if grp == 0:
                if ys < 18:
                    parts += y_parts(ys)
            else:
                if D <= ys < 18:
                    parts += y_parts(ys)
            if st < 0:
                k(f"s_waitcnt vmcnt({vm.need(f'w{t+1}')})")
                k("s_barrier")
                emit(parts, vm)
                continue
            if st == 0:
                if grp == 0:
                    k(f"ds_read_b128 v[{GB}:{GB+3}], v16")
                else:
                    k(f"s_waitcnt vmcnt({vm.need('y0')})")
                for q in range(LA):
                    read_frag(q)
            pi = 0
            for j in range(per):
                q = st * per + j
                if j == BJ and t <= 18:
                    need = []
                    if t + 1 < 18:
                        need.append(f"w{t+1}")
                    if st + 1 < 18:
                        need.append(f"y{st+1}")
                    if need:
                        k(f"s_waitcnt vmcnt({vm.need(*need)})")
                    if t < 17 or (grp == 1 and t == 18):
                        k("s_barrier")
                    if st in (0, 6, 12):
                        stamp(k, 2 + (0, 6, 12).index(st))
                elif j == BJ and st + 1 < 18:
                    k(f"s_waitcnt vmcnt({vm.need(f'y{st+1}')})")
                if grp == 0 and j == 2 and st < 17:
                    g_ = GB + 4 * ((st + 1) & 1)
                    k("v_add_u32 v16, v16, v19")
                    k(f"ds_read_b128 v[{g_}:{g_+3}], v16")
                if q + LA < NQ:
                    read_frag(q + LA)
                    k(f"s_waitcnt lgkmcnt({2*LA})")
                else:
                    k(f"s_waitcnt lgkmcnt({2*(NQ-1-q)})")
                kind, idx = seq[j]
                a = areg(q)
                if kind == "m":
                    m, ft = frs[idx]
                    for tt in range(2):
                        c = acc(tt, m, ft)
                        y = ybuf(st, tt)
                        cs = "0" if st == 0 else f"v[{c}:{c+3}]"
                        k(f"v_mfma_f32_16x16x32_bf16 v[{c}:{c+3}], v[{a}:{a+3}], v[{y}:{y+3}], {cs}")
                else:
                    gc = 28 + 4 * idx
                    g_ = GB + 4 * (st & 1)
                    cs = "0" if st == 0 else f"v[{gc}:{gc+3}]"
                    k(f"v_mfma_f32_16x16x32_bf16 v[{gc}:{gc+3}], v[{a}:{a+3}], v[{g_}:{g_+3}], {cs}")
                if grp == 1 and j == BJ and "spread1" not in ABL:
                    emit(parts, vm, True)
                    pi = len(parts)
                elif (j >= VJ or (t == 0 and grp == 0)) and pi < len(parts):
                    emit(parts[pi:pi + 1], vm, True)
                    pi += 1
                if "fake2p" in ABL and st >= 8 and kind == "m":
                    fk = (st * 18 + idx) % 9
                    ops = ["v_fma_f32 v2, v2, v4, v1", "v_fma_f32 v5, v5, v4, v1", "v_exp_f32 v2, v2", "v_mul_f32 v5, v5, v2",
                           "v_fma_f32 v2, v2, v4, v1", "v_rcp_f32 v5, v5", "v_mul_f32 v2, v5, v2", "v_add_f32 v5, 1.0, v5",
                           "v_fma_f32 v2, v2, v4, v1"]
                    k(ops[fk]); k(ops[(fk + 4) % 9])
                    if idx % 6 == 0:
                        k(ops[(fk + 7) % 9])
                    if idx == 9 and st % 2 == 0:
                        k(f"s_mul_i32 s27, s24, {144*1024}")
                        k(f"s_add_u32 s27, s27, {HH + 0}")
                        k(f"s_mul_i32 s28, s20, {4608}")
                        k(f"s_add_u32 s27, s27, s28")
                        k(f"buffer_store_dwordx4 v[112:115], v3, s[12:15], s27 offen offset:{((st-8)//2 % 4)*1024}")
                        vm.add("st")
                if t == 14 and j == per - 1:
                    k(f"""
                    v_min_u32 v5, 161, v0
                    s_mul_i32 s31, s2, {162*128}
                    v_lshl_add_u32 v5, v5, 7, s31
                    global_load_dword v0, v5, s[56:57]
                    """)
                    vm.add("pf")
            assert pi == len(parts)
        stamp(k, 5)
        if grp == 0:
            k(f"""
            v_and_b32 v5, 15, v1
            v_mul_u32_u24 v5, 576, v5
            v_lshl_add_u32 v5, v4, 4, v5
            s_and_b32 s31, s3, 1
            s_mul_i32 s31, s31, 1152
            s_lshr_b32 s32, s3, 1
            s_lshl_b32 s32, s32, 6
            s_add_u32 s31, s31, s32
            s_add_u32 s31, s31, {K3_GSL}
            v_add_u32 v5, s31, v5
            s_mov_b32 exec_lo, 0x00030003
            s_mov_b32 exec_hi, 0x00030003
            ds_write_b128 v5, v[28:31]
            ds_write_b128 v5, v[32:35] offset:128
            ds_write_b128 v5, v[36:39] offset:256
            ds_write_b128 v5, v[40:43] offset:384
            s_cmp_ge_u32 s3, 2
            s_cbranch_scc1 k3_gs_w
            ds_write_b128 v5, v[44:47] offset:512
            """)
            k.label("k3_gs_w")
            k("""
            s_mov_b64 exec, -1
            s_waitcnt lgkmcnt(0)
            s_barrier
            """)

    k("s_cmp_ge_u32 s3, 4")
    k("s_cbranch_scc1 k3_grp1")
    body(0)
    k("s_branch k3_epi")
    k.label("k3_grp1")
    body(1)
    k.label("k3_epi")
    k("s_setprio 0")
    if "noepi" in ABL:
        k("s_branch k3_done")
    k("""
    s_nop 7
    v_add_f32 v20, v6, v8
    v_add_f32 v21, v7, v9
    v_mov_b32 v22, v20
    v_mov_b32 v23, v21
    v_permlane32_swap_b32 v20, v22
    v_permlane32_swap_b32 v21, v23
    v_add_f32 v20, v20, v22
    v_add_f32 v21, v21, v23
    v_mul_f32 v20, 0x3ae38e39, v20
    v_mul_f32 v21, 0x3ae38e39, v21
    v_fma_f32 v21, -v20, v20, v21
    v_max_f32 v21, 0, v21
    """)
    bf16_round(k, 21, 21)
    k("v_add_f32 v21, 0x3727c5ac, v21")
    bf16_round(k, 21, 21)
    k("v_sqrt_f32 v21, v21")
    bf16_round(k, 21, 21)
    k("v_rcp_f32 v21, v21")
    bf16_round(k, 20, 20)
    k("""
    v_mul_f32 v20, v20, v21
    v_sub_f32 v20, 0, v20
    v_mov_b32 v24, v21
    v_mov_b32 v26, v21
    v_mov_b32 v28, v20
    v_mov_b32 v30, v20
    v_permlane16_swap_b32 v24, v26
    v_permlane16_swap_b32 v28, v30
    """)
    k(f"""
    v_lshlrev_b32 v5, 4, v4
    v_add_u32 v5, {K3_GSL}, v5
    s_mul_i32 s27, s24, {144*1024}
    s_add_u32 s27, s27, {HH}
    s_lshr_b32 s28, s20, 1
    s_mul_i32 s28, s28, {9*1024}
    s_add_u32 s27, s27, s28
    s_and_b32 s28, s20, 1
    s_lshl_b32 s42, s28, 3
    s_add_u32 s42, s42, s27
    s_add_u32 s42, s42, 8192
    s_add_u32 s43, s42, {144*1024}
    s_lshl_b32 s28, s28, 12
    s_add_u32 s32, s27, s28
    s_add_u32 s33, s32, {144*1024}
    s_mov_b32 s40, 0xbfb8aa3b
    s_mov_b32 s41, 0xbfb8aa3b
    """)

    def gsreg(ft):
        return 48 + 16 * (ft % 2)

    def read_gs(ft):
        g = gsreg(ft)
        for a in range(4):
            k(f"ds_read_b128 v[{g+4*a}:{g+4*a+3}], v5 offset:{a*576 + ft*64}")

    read_gs(0)
    for ft in range(9):
        g = gsreg(ft)
        if "fake2p" in ABL and ft < 5:
            continue
        if ft < 8:
            read_gs(ft + 1)
        k(f"s_waitcnt lgkmcnt({4 if ft < 8 else 0})")
        U4 = [(tt, h) for tt in range(2) for h in range(2)]
        for u, (tt, h) in enumerate(U4):
            mr = 28 + 2 * tt
            k(f"v_pk_fma_f32 v[{80+2*u}:{81+2*u}], v[{g+2*h}:{g+2*h+1}], v[{mr}:{mr+1}], v[{g+4+2*h}:{g+4+2*h+1}] op_sel_hi:[1,0,1]")
        for u, (tt, h) in enumerate(U4):
            mr = 28 + 2 * tt
            k(f"v_pk_fma_f32 v[{88+2*u}:{89+2*u}], v[{g+8+2*h}:{g+8+2*h+1}], v[{mr}:{mr+1}], v[{g+12+2*h}:{g+12+2*h+1}] op_sel_hi:[1,0,1]")
        for u, (tt, h) in enumerate(U4):
            r = 24 + 2 * tt
            ga = acc(tt, 0, ft)
            k(f"v_pk_fma_f32 v[{80+2*u}:{81+2*u}], v[{ga+2*h}:{ga+2*h+1}], v[{r}:{r+1}], v[{80+2*u}:{81+2*u}] op_sel_hi:[1,0,1]")
        for u, (tt, h) in enumerate(U4):
            k(f"v_pk_mul_f32 v[{96+2*u}:{97+2*u}], v[{80+2*u}:{81+2*u}], s[40:41]")
        for u, (tt, h) in enumerate(U4):
            r = 24 + 2 * tt
            ua = acc(tt, 1, ft)
            k(f"v_pk_fma_f32 v[{88+2*u}:{89+2*u}], v[{ua+2*h}:{ua+2*h+1}], v[{r}:{r+1}], v[{88+2*u}:{89+2*u}] op_sel_hi:[1,0,1]")
        for e in range(8):
            if "notrans" not in ABL:
                k(f"v_exp_f32 v{96+e}, v{96+e}")
        for u in range(4):
            k(f"v_pk_mul_f32 v[{80+2*u}:{81+2*u}], v[{80+2*u}:{81+2*u}], v[{88+2*u}:{89+2*u}]")
        for u in range(4):
            k(f"v_pk_add_f32 v[{96+2*u}:{97+2*u}], v[{96+2*u}:{97+2*u}], 1.0 op_sel_hi:[1,0]")
        for e in range(8):
            if "notrans" not in ABL:
                k(f"v_rcp_f32 v{96+e}, v{96+e}")
        for u in range(4):
            k(f"v_pk_mul_f32 v[{80+2*u}:{81+2*u}], v[{80+2*u}:{81+2*u}], v[{96+2*u}:{97+2*u}]")
        pb = (ft >> 1) & 1
        for u, (tt, h) in enumerate(U4):
            o = (32 if pb == 0 else 40) + 4 * tt + 2 * (ft & 1) + h
            k(f"v_cvt_pk_bf16_f32 v{o}, v{80+2*u}, v{81+2*u}")
        for tt in range(2):
            o = (32 if pb == 0 else 40) + 4 * tt
            if "nostore" in ABL:
                continue
            if ft == 8:
                k(f"buffer_store_dwordx2 v[{o}:{o+1}], v3, s[12:15], s{42+tt} offen")
            elif ft & 1:
                k(f"buffer_store_dwordx4 v[{o}:{o+3}], v3, s[12:15], s{32+tt} offen offset:{(ft>>1)*1024}")
    stamp(k, 6)
    if DIAG:
        k("s_memrealtime s[92:93]")
        k("s_waitcnt lgkmcnt(0)")
        k("s_sub_u32 s77, s92, s90")
        k("s_add_u32 s77, s77, s70")
    stamp_flush(k, 8, 3, "k3")
    k.label("k3_done")
    tl_end(k, 3)
    k("s_endpgm")
    return k, 256, K3_LDS


K4_LDS = 160 * 1024
K4_GRID = 240


def gen_k4():
    k = K("ffn2_kernel")
    tl_start(k)
    NS = PRM.get("NS4", 3)
    k(f"""
    s_cmp_ge_u32 s2, {K4_GRID}
    s_cbranch_scc1 k4_done
    s_and_b32 s20, s2, 7
    s_mul_i32 s20, s20, 30
    s_lshr_b32 s21, s2, 3
    s_add_u32 s22, s20, s21
    s_cmp_ge_u32 s22, 234
    s_cbranch_scc1 k4_done
    s_load_dwordx2 s[16:17], s[0:1], 48
    s_load_dwordx2 s[18:19], s[0:1], 72
    s_load_dwordx2 s[6:7], s[0:1], 88
    v_and_b32 v1, 63, v0
    v_lshrrev_b32 v2, 6, v0
    v_lshlrev_b32 v3, 4, v1
    v_lshrrev_b32 v4, 4, v1
    v_readfirstlane_b32 s3, v2
    s_mul_i32 s20, s22, 0x1c72
    s_lshr_b32 s20, s20, 16
    s_mul_i32 s21, s20, 9
    s_sub_u32 s21, s22, s21
    s_waitcnt lgkmcnt(0)
    """)
    stamp(k, 0)
    srd(k, 12, 6, WS_BYTES)
    srd(k, 8, 16, 4608 * 576 * 2)
    srd(k, 44, 18, 2048 * 576 * 2)
    k(f"s_mul_i32 s22, s20, 5")
    k(f"s_mul_i32 s23, s3, {18*1024}")
    for tt in range(5):
        k(f"""
        s_add_u32 s29, s22, {tt}
        s_min_u32 s29, s29, 127
        s_mul_i32 s29, s29, {144*1024}
        s_add_u32 s29, s29, s23
        s_add_u32 s{24+tt}, s29, {HH}
        """)
    k(f"""
    s_mul_i32 s30, s3, {NS*4096}
    s_mul_i32 s31, s3, {576*1152}
    s_lshl_b32 s29, s21, 7
    s_add_u32 s31, s31, s29
    v_lshrrev_b32 v7, 3, v1
    v_and_b32 v8, 7, v1
    v_bfe_u32 v9, v7, 1, 2
    v_lshlrev_b32 v9, 1, v9
    v_xor_b32 v8, v8, v9
    v_mul_u32_u24 v7, 1152, v7
    v_lshl_add_u32 v7, v8, 4, v7
    v_add_u32 v10, s31, v7
    v_add_u32 v11, {8*1152}, v10
    """)
    k(f"""
    v_bfe_u32 v7, v1, 2, 2
    v_lshl_add_u32 v7, v4, 2, v7
    v_bfe_u32 v8, v7, 1, 2
    v_lshlrev_b32 v8, 1, v8
    v_bfe_u32 v9, v1, 1, 1
    v_lshlrev_b32 v7, 7, v7
    v_and_b32 v16, 1, v1
    v_lshl_add_u32 v7, v16, 3, v7
    v_add_u32 v7, s30, v7
    """)
    for nt in range(4):
        k(f"""
        v_or_b32 v16, {2*nt}, v9
        v_xor_b32 v16, v16, v8
        v_lshl_add_u32 v{12+nt}, v16, 4, v7
        """)

    def hbuf(it, tt):
        return 32 + 20 * (it % NS) + 4 * tt if NS <= 4 else None

    def issue(it):
        for i in range(4):
            half = i >> 1
            k(f"s_mov_b32 s29, {tile_of(it, half) * 16 * 1152}")
            k(f"s_add_u32 m0, s30, {(it % NS) * 4096 + 1024 * i}")
            k(f"buffer_load_dwordx4 v{10 + (i & 1)}, s[8:11], s29 offen lds")
        if it % 4 == 0 and it > 0:
            for tt in range(5):
                k(f"s_add_u32 s{24+tt}, s{24+tt}, 4096")
        for tt in range(5):
            h = hbuf(it, tt)
            k(f"buffer_load_dwordx4 v[{h}:{h+3}], v3, s[12:15], s{24+tt} offen offset:{(it % 4) * 1024}")

    def acc(tt, nt):
        return 128 + (tt * 4 + nt) * 4

    NIT = 18
    for it in range(NS - 1):
        issue(it)
    for it in range(NIT):
        if it + NS - 1 < NIT:
            issue(it + NS - 1)
        n_after = 9 * (min(it + NS - 1, NIT - 1) - it)
        k(f"s_waitcnt vmcnt({n_after})")
        if it in (0, 1, 9):
            stamp(k, 1 + (0, 1, 9).index(it))
        for nt in range(4):
            a = 112 + 4 * nt
            off = (it % NS) * 4096
            k(f"ds_read_b64_tr_b16 v[{a}:{a+1}], v{12+nt} offset:{off}")
            k(f"ds_read_b64_tr_b16 v[{a+2}:{a+3}], v{12+nt} offset:{off + 2048}")
        for nt in range(4):
            a = 112 + 4 * nt
            k(f"s_waitcnt lgkmcnt({2*(3-nt)})")
            for tt in range(5):
                c = acc(tt, nt)
                h = hbuf(it, tt)
                cs = "0" if it == 0 else f"v[{c}:{c+3}]"
                k(f"v_mfma_f32_16x16x32_bf16 v[{c}:{c+3}], v[{a}:{a+3}], v[{h}:{h+3}], {cs}")
    stamp(k, 4)
    k("s_barrier")
    stamp(k, 5)
    k(f"s_mul_i32 s33, s3, 20480")
    k("v_add_u32 v5, s33, v3")
    for u in range(20):
        c = 128 + 4 * u
        k(f"ds_write_b128 v5, v[{c}:{c+3}] offset:{1024*u}")
    k("""
    s_mov_b32 s34, s3
    s_add_u32 s35, s3, 8
    s_add_u32 s36, s3, 16
    s_cmp_lt_u32 s3, 4
    s_cselect_b32 s36, s36, s35
    v_lshlrev_b32 v9, 3, v1
    v_lshlrev_b32 v11, 4, v4
    v_and_b32 v12, 15, v1
    v_mul_u32_u24 v12, 1152, v12
    v_lshl_add_u32 v12, v4, 3, v12
    """)
    for j in range(3):
        k(f"""
        s_lshr_b32 s37, s{34+j}, 2
        s_and_b32 s38, s{34+j}, 3
        s_add_u32 s37, s37, s22
        s_min_u32 s39, s37, 127
        s_mul_i32 s40, s39, {144*128}
        s_lshl_b32 s41, s21, 11
        s_add_u32 s40, s40, s41
        s_lshl_b32 s41, s38, 9
        s_add_u32 s40, s40, s41
        s_add_u32 s40, s40, {X1}
        buffer_load_dwordx2 v[{120+2*j}:{121+2*j}], v9, s[12:15], s40 offen
        s_lshl_b32 s40, s21, 8
        s_lshl_b32 s41, s38, 6
        s_add_u32 s40, s40, s41
        s_add_u32 s40, s40, {MOD + 5*576*4}
        buffer_load_dwordx4 v[{208+4*j}:{211+4*j}], v11, s[12:15], s40 offen
        s_mul_i32 s40, s37, {16*1152}
        s_lshl_b32 s41, s21, 7
        s_add_u32 s40, s40, s41
        s_lshl_b32 s41, s38, 5
        s_add_u32 s{50+j}, s40, s41
        s_lshl_b32 s40, s{34+j}, 10
        v_add_u32 v{6+j}, s40, v3
        v_add_u32 v{13+j}, {4*20480}, v{6+j}
        """)
    k("s_waitcnt lgkmcnt(0)")
    k("s_barrier")

    def rr(j, sl):
        return 16 + 4 * j if sl == 0 else 28 + (j * 7 + sl - 1) * 4

    for j in range(3):
        for sl in range(8):
            r = rr(j, sl)
            k(f"ds_read_b128 v[{r}:{r+3}], v{(6 if sl < 4 else 13)+j} offset:{(sl % 4)*20480}")
    for j in range(3):
        k(f"s_waitcnt lgkmcnt({min(15, 8*(2-j))})")
        for sl in range(1, 8):
            r = rr(j, sl)
            k(f"v_pk_add_f32 v[{16+4*j}:{17+4*j}], v[{16+4*j}:{17+4*j}], v[{r}:{r+1}]")
            k(f"v_pk_add_f32 v[{18+4*j}:{19+4*j}], v[{18+4*j}:{19+4*j}], v[{r+2}:{r+3}]")
    k("s_waitcnt vmcnt(0)")
    for j in range(3):
        c = 16 + 4 * j
        gb = 208 + 4 * j
        xr = 120 + 2 * j
        t = 32 + 8 * j
        k(f"""
        v_cvt_pk_bf16_f32 v{t}, v{c}, v{c+1}
        v_cvt_pk_bf16_f32 v{t+1}, v{c+2}, v{c+3}
        v_lshlrev_b32 v{c}, 16, v{t}
        v_and_b32 v{c+1}, 0xffff0000, v{t}
        v_lshlrev_b32 v{c+2}, 16, v{t+1}
        v_and_b32 v{c+3}, 0xffff0000, v{t+1}
        v_pk_mul_f32 v[{c}:{c+1}], v[{c}:{c+1}], v[{gb}:{gb+1}]
        v_pk_mul_f32 v[{c+2}:{c+3}], v[{c+2}:{c+3}], v[{gb+2}:{gb+3}]
        v_cvt_pk_bf16_f32 v{t}, v{c}, v{c+1}
        v_cvt_pk_bf16_f32 v{t+1}, v{c+2}, v{c+3}
        v_lshlrev_b32 v{c}, 16, v{t}
        v_and_b32 v{c+1}, 0xffff0000, v{t}
        v_lshlrev_b32 v{c+2}, 16, v{t+1}
        v_and_b32 v{c+3}, 0xffff0000, v{t+1}
        v_lshlrev_b32 v{t+2}, 16, v{xr}
        v_and_b32 v{t+3}, 0xffff0000, v{xr}
        v_lshlrev_b32 v{t+4}, 16, v{xr+1}
        v_and_b32 v{t+5}, 0xffff0000, v{xr+1}
        v_pk_add_f32 v[{c}:{c+1}], v[{c}:{c+1}], v[{t+2}:{t+3}]
        v_pk_add_f32 v[{c+2}:{c+3}], v[{c+2}:{c+3}], v[{t+4}:{t+5}]
        v_cvt_pk_bf16_f32 v{t+6}, v{c}, v{c+1}
        v_cvt_pk_bf16_f32 v{t+7}, v{c+2}, v{c+3}
        buffer_store_dwordx2 v[{t+6}:{t+7}], v12, s[44:47], s{50+j} offen
        """)
    stamp(k, 6)
    stamp_flush(k, 7, 3, "k4")
    k.label("k4_done")
    tl_end(k, 4)
    k("s_endpgm")
    return k, 224, K4_LDS


KERNELS = []


def build(kernels, path):
    head = ["; adaLN + sliding dilated local attention + SwiGLU block, multi-kernel pipeline (generated)"]
    texts, descs = [], []
    for (gen, grid, block) in kernels:
        k, vgpr, lds = gen()
        head.append(f"; @launch kernel={k.name} grid=({grid},1,1) block=({block},1,1) lds={lds}")
        t, d = kernel_text(k, vgpr)
        texts.append(t)
        descs.append(d)
    out = "\n".join(head) + "\n.amdgcn_target \"amdgcn-amd-amdhsa--gfx950\"\n.text\n" + "\n".join(texts) + \
        "\n.section .rodata,\"a\"\n" + "".join(descs)
    open(path, "w").write(out)


if __name__ == "__main__":
    if len(sys.argv) > 2 and sys.argv[2] == "diag":
        DIAG = True
    for a_ in sys.argv[3:]:
        if "=" in a_:
            PRM[a_.split("=")[0]] = int(a_.split("=")[1])
        else:
            ABL.add(a_)
    build([(gen_k0, K0_GRID, 256), (gen_k1, 256, 512), (gen_k3, 256, 512), (gen_k4, K4_GRID, 512)], sys.argv[1] if len(sys.argv) > 1 else "k.s")
```

```python
import gen
from asmlib import K

def gen_nop():
    k = K("nop_kernel")
    k("s_endpgm")
    return k, 8, 0

full = [(gen.gen_k0, gen.K0_GRID, 256), (gen.gen_k1, 256, 512), (gen.gen_k3, 256, 512), (gen.gen_k4, gen.K4_GRID, 512)]
def build(order, path):
    texts = {}
    gen.build(full + [(gen_nop, 256, 64)], path)
    s = open(path).read().split("\n")
    launches = [l for l in s if l.startswith("; @launch")]
    rest = [l for l in s if not l.startswith("; @launch")]
    sel = [launches[4 if o == 'n' else o] for o in order]
    open(path, "w").write("\n".join([rest[0]] + sel + rest[1:]))
D = "cdna_kernels/"
build([0, 1, 2, 3, 0, 1, 2, 3], D + "c_all2.s")
build([0, 1, 0, 1, 2, 3], D + "c_k01x2.s")
build([0, 1, 2, 3, 3], D + "c_k4x2.s")
build([0, 1, 2, 3, 0, 1, 2, 3, 0, 1, 2, 3], D + "c_all3.s")
```

```python
import sys
from asmlib import K, kernel_text

NAME = "adaLN_cond__sliding_local_dilated__glu_gated_swiglu__prompt"

MOD = 0x0000000
GSB = 0x0010000
CNT = 0x0020000
STAT = 0x0040000
XN = 0x0100000
WQ = 0x0400000
WOP = 0x0700000
OO = 0x0800000
X1 = 0x0B00000
YY = 0x0E00000
HH = 0x1100000
W2P = 0x2400000
WS_BYTES = 268435456

LOG2E = "0x3fb8aa3b"
PART = 0x2400000


def tile_of(ks, half):
    p, i = divmod(ks, 9)
    if i < 8:
        return (2 * p + (i >> 2)) * 9 + 2 * (i & 3) + half
    return (2 * p + half) * 9 + 8


def srd(k, d, lo, nbytes):
    k(f"""
    s_mov_b32 s{d}, s{lo}
    s_and_b32 s{d+1}, s{lo+1}, 0xffff
    s_mov_b32 s{d+2}, {nbytes}
    s_mov_b32 s{d+3}, 0x00020000
    """)


DIAG = False
ABL = set()
PRM = {}


def stamp(k, idx):
    if DIAG:
        k("s_memtime s[68:69]")
        k("s_waitcnt lgkmcnt(0)")
        k(f"s_mov_b32 s{70+idx}, s68")


def stamp_flush(k, n, wave_sgpr, tag, vb=200):
    if not DIAG:
        return
    k(f"""
    s_cmp_lg_u32 s2, 5
    s_cbranch_scc1 {tag}_nostamp
    s_load_dwordx2 s[66:67], s[0:1], 80
    s_lshl_b32 s68, s{wave_sgpr}, 5
    v_mov_b32 v{vb}, s68
    s_waitcnt lgkmcnt(0)
    """)
    for i in range(n):
        k(f"s_sub_u32 s69, s{70+i}, s70")
        k(f"v_mov_b32 v{vb+1}, s69")
        k(f"global_store_dword v{vb}, v{vb+1}, s[66:67] offset:{4*i}")
    k(f"{tag}_nostamp:")


TL = 0x3000000


def tl_start(k):
    if DIAG:
        k("s_memrealtime s[94:95]")
        k("s_mov_b32 s96, s2")


def tl_end(k, kid):
    if DIAG:
        k(f"""
        s_mov_b64 exec, 1
        s_waitcnt vmcnt(0) lgkmcnt(0)
        s_memrealtime s[98:99]
        s_load_dwordx2 s[66:67], s[0:1], 88
        s_lshl_b32 s97, s96, 3
        s_add_u32 s97, s97, {TL + kid*8192}
        v_mov_b32 v2, s97
        s_waitcnt lgkmcnt(0)
        v_mov_b32 v0, s94
        v_mov_b32 v1, s98
        global_atomic_umax v2, v1, s[66:67] offset:4
        global_store_dword v2, v0, s[66:67]
        """)


def bf16_round(k, dst, src, tmp=None):
    k(f"v_cvt_pk_bf16_f32 v{dst}, v{src}, v{src}")
    k(f"v_lshlrev_b32 v{dst}, 16, v{dst}")


K0_MOD, K0_XN, K0_WQ, K0_WO = 108, 64, 144, 54
K0_GRID = K0_MOD + K0_XN + K0_WQ + K0_WO


def pack_chunk(k, srd_src, rowstride, zero_hi_mask_sgpr=None):
    for r in range(8):
        k(f"s_mov_b32 s{24+r}, {r*rowstride}")
    for r in range(8):
        k(f"buffer_load_dwordx2 v[{16+2*r}:{17+2*r}], v10, s[{srd_src}:{srd_src+3}], s{24+r} offen")
    k("s_mov_b32 s32, 0x05040100")
    k("s_mov_b32 s33, 0x07060302")
    k("s_waitcnt vmcnt(0)")
    if zero_hi_mask_sgpr is not None:
        for r in range(8):
            k(f"v_cndmask_b32 v{17+2*r}, v{17+2*r}, 0, s[{zero_hi_mask_sgpr}:{zero_hi_mask_sgpr+1}]")
    for j in range(4):
        d = j >> 1
        sel = 32 + (j & 1)
        for q in range(4):
            lo = 16 + 2 * (2 * q) + d
            hi = 16 + 2 * (2 * q + 1) + d
            k(f"v_perm_b32 v{32+4*j+q}, v{hi}, v{lo}, s{sel}")
    for j in range(4):
        k(f"buffer_store_dwordx4 v[{32+4*j}:{35+4*j}], v11, s[12:15], 0 offen offset:{16*j}")


def gen_k0():
    k = K("prep_kernel")
    tl_start(k)
    k(f"""
    s_cmp_ge_u32 s2, {K0_GRID}
    s_cbranch_scc1 k0_done
    s_load_dwordx2 s[4:5], s[0:1], 0
    s_load_dwordx4 s[16:19], s[0:1], 8
    s_load_dwordx4 s[20:23], s[0:1], 56
    s_load_dwordx2 s[6:7], s[0:1], 88
    v_and_b32 v1, 63, v0
    v_lshrrev_b32 v2, 6, v0
    s_waitcnt lgkmcnt(0)
    """)
    srd(k, 12, 6, WS_BYTES)
    k(f"""
    v_readfirstlane_b32 s3, v2
    s_cmp_ge_u32 s2, {K0_MOD}
    s_cbranch_scc1 k0_not_mod
    """)
    k("""
    v_and_b32 v3, 3, v0
    v_lshrrev_b32 v4, 2, v0
    v_mul_u32_u24 v5, 6912, v4
    v_lshl_add_u32 v5, v3, 4, v5
    s_lshl_b32 s10, s2, 6
    v_add_u32 v5, s10, v5
    v_lshlrev_b32 v6, 1, v4
    """)
    for i in range(9):
        k(f"global_load_ushort v{60+i}, v6, s[20:21] offset:{128*i}")
    for i in range(9):
        k(f"global_load_dwordx4 v[{16+4*i}:{19+4*i}], v5, s[22:23]")
        if i < 8:
            k(f"v_add_u32 v5, {64*6912}, v5")
    for j in range(8):
        k(f"v_mov_b32 v{80+j}, 0")
    k("s_waitcnt vmcnt(9)")
    for i in range(9):
        c = 60 + i
        k(f"""
        v_lshlrev_b32 v{c}, 16, v{c}
        v_mul_f32 v70, 0xbfb8aa3b, v{c}
        v_exp_f32 v70, v70
        v_add_f32 v70, 1.0, v70
        v_rcp_f32 v70, v70
        v_mul_f32 v{c}, v{c}, v70
        """)
        bf16_round(k, c, c)
    for i in range(9):
        k(f"s_waitcnt vmcnt({8-i})")
        for q in range(4):
            w = 16 + 4 * i + q
            k(f"""
            v_lshlrev_b32 v71, 16, v{w}
            v_and_b32 v72, 0xffff0000, v{w}
            v_fmac_f32 v{80+2*q}, v{60+i}, v71
            v_fmac_f32 v{81+2*q}, v{60+i}, v72
            """)
    k("""
    v_lshlrev_b32 v7, 5, v0
    ds_write_b128 v7, v[80:83]
    ds_write_b128 v7, v[84:87] offset:16
    s_waitcnt lgkmcnt(0)
    s_barrier
    v_and_b32 v8, 31, v0
    v_lshrrev_b32 v9, 5, v0
    v_lshlrev_b32 v10, 10, v9
    v_lshl_add_u32 v10, v8, 2, v10
    """)
    for i in range(8):
        k(f"ds_read_b32 v{16+i}, v10 offset:{128*i}")
    k("s_waitcnt lgkmcnt(0)")
    k("""
    v_add_f32 v16, v16, v17
    v_add_f32 v18, v18, v19
    v_add_f32 v20, v20, v21
    v_add_f32 v22, v22, v23
    v_add_f32 v16, v16, v18
    v_add_f32 v20, v20, v22
    v_add_f32 v16, v16, v20
    v_lshlrev_b32 v11, 2, v0
    ds_write_b32 v11, v16 offset:8192
    s_waitcnt lgkmcnt(0)
    s_barrier
    v_cmp_gt_u32 vcc, 32, v0
    s_and_saveexec_b64 s[36:37], vcc
    s_cbranch_execz k0_done
    """)
    for i in range(8):
        k(f"ds_read_b32 v{16+i}, v11 offset:{8192+128*i}")
    k("s_waitcnt lgkmcnt(0)")
    k("""
    v_add_f32 v16, v16, v17
    v_add_f32 v18, v18, v19
    v_add_f32 v20, v20, v21
    v_add_f32 v22, v22, v23
    v_add_f32 v16, v16, v18
    v_add_f32 v20, v20, v22
    v_add_f32 v16, v16, v20
    """)
    bf16_round(k, 16, 16)
    k("""
    s_mov_b32 s11, 0
    s_cmp_ge_u32 s2, 18
    s_cselect_b32 s24, 1, 0
    s_cmp_lt_u32 s2, 36
    s_cselect_b32 s25, 1, 0
    s_and_b32 s24, s24, s25
    s_cmp_ge_u32 s2, 72
    s_cselect_b32 s25, 1, 0
    s_cmp_lt_u32 s2, 90
    s_cselect_b32 s26, 1, 0
    s_and_b32 s25, s25, s26
    s_or_b32 s24, s24, s25
    s_cmp_eq_u32 s24, 0
    s_cbranch_scc1 k0_mod_store
    v_add_f32 v16, 1.0, v16
    """)
    bf16_round(k, 16, 16)
    k.label("k0_mod_store")
    k(f"""
    s_lshl_b32 s10, s2, 8
    s_add_u32 s10, s10, {CNT}
    v_mov_b32 v17, 0
    buffer_store_dword v17, v11, s[12:15], s10 offen
    s_lshl_b32 s10, s2, 7
    v_add_u32 v11, s10, v11
    buffer_store_dword v16, v11, s[12:15], 0 offen offset:{MOD}
    s_cmp_lt_u32 s2, 54
    s_cbranch_scc1 k0_done
    s_cmp_ge_u32 s2, 90
    s_cbranch_scc1 k0_done
    """)
    k(f"""
    s_sub_u32 s24, s2, 54
    s_sub_u32 s25, s2, 72
    s_cmp_ge_u32 s2, 72
    s_cselect_b32 s24, s25, s24
    s_cselect_b32 s25, 0, 16
    s_lshl_b32 s26, s24, 1
    v_lshrrev_b32 v12, 4, v0
    v_add_u32 v12, s26, v12
    v_mul_u32_u24 v13, 57, v12
    v_lshrrev_b32 v13, 9, v13
    v_mul_u32_u24 v14, 9, v13
    v_sub_u32 v14, v12, v14
    v_lshrrev_b32 v15, 1, v13
    v_mul_u32_u24 v15, 9, v15
    v_and_b32 v17, 1, v13
    v_lshrrev_b32 v18, 1, v14
    v_lshl_add_u32 v18, v17, 2, v18
    v_and_b32 v19, 1, v14
    v_cmp_eq_u32 vcc, 8, v14
    v_cndmask_b32 v18, v18, 8, vcc
    v_cndmask_b32 v19, v19, v17, vcc
    v_add_u32 v15, v15, v18
    v_lshlrev_b32 v12, 7, v15
    v_bfe_u32 v13, v0, 2, 2
    v_lshl_add_u32 v12, v13, 5, v12
    v_lshl_add_u32 v12, v19, 3, v12
    v_and_b32 v13, 3, v0
    v_lshl_add_u32 v12, v13, 1, v12
    s_add_u32 s25, s25, {GSB}
    v_lshrrev_b32 v16, 16, v16
    buffer_store_short v16, v12, s[12:15], s25 offen
    s_branch k0_done
    """)
    k.label("k0_not_mod")
    k(f"""
    s_sub_u32 s2, s2, {K0_MOD}
    s_cmp_ge_u32 s2, {K0_XN}
    s_cbranch_scc1 k0_not_xn
    """)
    k("""
    s_lshl_b32 s10, s2, 2
    s_add_u32 s10, s10, s3
    s_lshl_b32 s10, s10, 3
    v_lshrrev_b32 v3, 3, v1
    v_add_u32 v3, s10, v3
    v_and_b32 v4, 7, v1
    v_mul_u32_u24 v5, 1152, v3
    v_lshl_add_u32 v5, v4, 4, v5
    """)
    for i in range(9):
        k(f"global_load_dwordx4 v[{16+4*i}:{19+4*i}], v5, s[4:5] offset:{128*i}")
    k(f"""
    v_lshrrev_b32 v6, 4, v3
    v_mul_u32_u24 v6, {18*1024}, v6
    v_and_b32 v7, 15, v3
    v_lshl_add_u32 v6, v7, 4, v6
    v_lshrrev_b32 v7, 2, v4
    v_lshl_add_u32 v6, v7, 10, v6
    v_and_b32 v7, 3, v4
    v_lshl_add_u32 v6, v7, 8, v6
    v_add_u32 v6, {XN}, v6
    v_mov_b32 v8, 0
    v_mov_b32 v9, 0
    """)
    for i in range(9):
        k(f"s_waitcnt vmcnt({8-i})")
        for q in range(4):
            w = 16 + 4 * i + q
            d = 64 + 8 * i + 2 * q
            k(f"v_lshlrev_b32 v{d}, 16, v{w}")
            k(f"v_and_b32 v{d+1}, 0xffff0000, v{w}")
        for q in range(4):
            d = 64 + 8 * i + 2 * q
            k(f"v_pk_add_f32 v[8:9], v[8:9], v[{d}:{d+1}]")

    def red8(r):
        k(f"v_add_f32_dpp v{r}, v{r}, v{r} quad_perm:[1,0,3,2] row_mask:0xf bank_mask:0xf")
        k(f"v_add_f32_dpp v{r}, v{r}, v{r} quad_perm:[2,3,0,1] row_mask:0xf bank_mask:0xf")
        k(f"v_add_f32_dpp v{r}, v{r}, v{r} row_half_mirror row_mask:0xf bank_mask:0xf")

    k("v_add_f32 v8, v8, v9")
    red8(8)
    k(f"v_mul_f32 v10, 0x3ae38e39, v8")
    k("v_mov_b32 v11, v10")
    k("v_mov_b32 v8, 0")
    k("v_mov_b32 v9, 0")
    for e in range(36):
        d = 64 + 2 * e
        k(f"v_pk_add_f32 v[12:13], v[{d}:{d+1}], v[10:11] neg_lo:[0,1] neg_hi:[0,1]")
        k(f"v_pk_fma_f32 v[8:9], v[12:13], v[12:13], v[8:9]")
    k("v_add_f32 v8, v8, v9")
    red8(8)
    k(f"v_mul_f32 v8, 0x3ae38e39, v8")
    bf16_round(k, 8, 8)
    k("v_add_f32 v8, 0x3727c5ac, v8")
    bf16_round(k, 8, 8)
    k("v_sqrt_f32 v8, v8")
    bf16_round(k, 8, 8)
    k("v_rcp_f32 v8, v8")
    bf16_round(k, 10, 10)
    k("v_mov_b32 v11, v10")
    k("v_mov_b32 v9, v8")
    for i in range(9):
        for q in range(4):
            d = 64 + 8 * i + 2 * q
            k(f"""
            v_pk_add_f32 v[12:13], v[{d}:{d+1}], v[10:11] neg_lo:[0,1] neg_hi:[0,1]
            v_cvt_pk_bf16_f32 v14, v12, v13
            v_lshlrev_b32 v12, 16, v14
            v_and_b32 v13, 0xffff0000, v14
            v_pk_mul_f32 v[12:13], v[12:13], v[8:9]
            v_cvt_pk_bf16_f32 v{16+4*i+q}, v12, v13
            """)
        k(f"buffer_store_dwordx4 v[{16+4*i}:{19+4*i}], v6, s[12:15], 0 offen offset:{(2*i*1024) % 4096}")
        if i % 2 == 1:
            k("v_add_u32 v6, 4096, v6")
    k("s_branch k0_done")
    k.label("k0_not_xn")
    k(f"""
    s_sub_u32 s2, s2, {K0_XN}
    s_cmp_ge_u32 s2, {K0_WQ}
    s_cbranch_scc1 k0_not_wq
    """)
    srd(k, 8, 16, 576 * 1728 * 2)
    k(f"""
    s_lshl_b32 s10, s2, 2
    s_add_u32 s34, s10, s3
    s_mov_b32 s10, {576*1728*2}
    s_and_b32 s35, s34, 7
    s_lshr_b32 s38, s34, 3
    v_cmp_gt_u32 vcc, 60, v1
    s_and_saveexec_b64 s[36:37], vcc
    v_mul_u32_u24 v3, 13, v1
    v_lshrrev_b32 v3, 8, v3
    v_mul_u32_u24 v4, 20, v3
    v_sub_u32 v4, v1, v4
    v_mul_u32_u24 v5, 13, v4
    v_lshrrev_b32 v5, 6, v5
    v_mul_u32_u24 v6, 5, v5
    v_sub_u32 v6, v4, v6
    v_cmp_eq_u32 s[40:41], 4, v6
    v_mul_u32_u24 v10, 1152, v3
    v_mul_u32_u24 v7, 36, v5
    v_add_u32 v10, v10, v7
    v_lshl_add_u32 v10, v6, 3, v10
    s_mul_i32 s39, s35, 144
    s_mul_i32 s42, s38, {8*3456}
    s_add_u32 s39, s39, s42
    v_add_u32 v10, s39, v10
    """)
    k(f"""
    v_lshrrev_b32 v7, 2, v1
    v_mul_u32_u24 v11, {18*1024}, v7
    v_and_b32 v7, 3, v1
    v_lshl_add_u32 v11, v7, 6, v11
    s_mul_i32 s39, s35, {16*18*1024}
    s_lshr_b32 s42, s38, 2
    s_lshl_b32 s42, s42, 10
    s_add_u32 s39, s39, s42
    s_and_b32 s42, s38, 3
    s_lshl_b32 s42, s42, 8
    s_add_u32 s39, s39, s42
    s_add_u32 s39, s39, {WQ}
    v_add_u32 v11, s39, v11
    """)
    pack_chunk(k, 8, 3456, zero_hi_mask_sgpr=40)
    k("s_branch k0_done")
    k.label("k0_not_wq")
    k(f"s_sub_u32 s2, s2, {K0_WQ}")
    srd(k, 8, 18, 576 * 576 * 2)
    k(f"""
    s_lshl_b32 s34, s2, 2
    s_add_u32 s34, s34, s3
    s_mul_hi_u32 s38, s34, 0x55555556
    s_mul_i32 s35, s38, 3
    s_sub_u32 s35, s34, s35
    v_cmp_gt_u32 vcc, 48, v1
    s_and_saveexec_b64 s[36:37], vcc
    s_mul_i32 s39, s35, 48
    v_add_u32 v3, s39, v1
    v_lshlrev_b32 v10, 3, v3
    s_mul_i32 s42, s38, {8*1152}
    v_add_u32 v10, s42, v10
    v_lshrrev_b32 v7, 2, v3
    v_mul_u32_u24 v11, {18*1024}, v7
    v_and_b32 v7, 3, v3
    v_lshl_add_u32 v11, v7, 6, v11
    s_lshr_b32 s42, s38, 2
    s_lshl_b32 s39, s42, 10
    s_and_b32 s42, s38, 3
    s_lshl_b32 s42, s42, 8
    s_add_u32 s39, s39, s42
    s_add_u32 s39, s39, {WOP}
    v_add_u32 v11, s39, v11
    """)
    pack_chunk(k, 8, 1152)
    k.label("k0_done")
    tl_end(k, 0)
    k("s_endpgm")
    return k, 136, 9216 + 256


K1_QB = 92160
K1_TS = 488
K1_ML = K1_QB + 80 * K1_TS
K1_LDS = K1_ML + 4608
K1_OL = 16384
K1_YL = K1_OL + 36864
K1_SL = K1_YL + 10240


def gen_k1():
    k = K("qkv_attn_kernel")
    tl_start(k)
    TS = K1_TS
    QB = K1_QB
    k(f"""
    s_cmp_ge_u32 s2, 256
    s_cbranch_scc1 k3_done
    s_load_dwordx4 s[84:87], s[0:1], 80
    s_load_dwordx4 s[16:19], s[0:1], 32
    s_load_dwordx2 s[8:9], s[0:1], 0
    v_and_b32 v1, 63, v0
    v_lshrrev_b32 v2, 6, v0
    v_lshlrev_b32 v3, 4, v1
    v_lshrrev_b32 v4, 4, v1
    v_readfirstlane_b32 s3, v2
    s_and_b32 s4, s2, 1
    s_lshl_b32 s4, s4, 2
    s_bfe_u32 s31, s2, 0x20003
    s_add_u32 s4, s4, s31
    s_bfe_u32 s5, s2, 0x20001
    s_lshl_b32 s5, s5, 3
    s_lshr_b32 s31, s2, 5
    s_add_u32 s5, s5, s31
    v_lshlrev_b32 v5, 5, v4
    s_waitcnt lgkmcnt(0)
    """)
    stamp(k, 0)
    srd(k, 12, 86, WS_BYTES)
    k(f"""
    s_mul_i32 s31, s3, 576
    s_add_u32 s32, s31, {K1_ML}
    s_mov_b32 m0, s32
    s_mov_b32 exec_hi, 0xf
    buffer_load_dwordx4 v3, s[12:15], s31 offen lds
    s_mov_b64 exec, -1
    """)
    k("""
    s_lshl_b32 s23, s5, 2
    s_sub_u32 s24, s23, 1
    s_max_i32 s24, s24, 0
    """)
    for i in range(5):
        if i == 0:
            k(f"s_mul_i32 s25, s24, {18*1024}")
            k(f"s_add_u32 s25, s25, {XN}")
        else:
            k(f"s_add_u32 s30, s23, {i-1}")
            k(f"s_mul_i32 s{25+i}, s30, {18*1024}")
            k(f"s_add_u32 s{25+i}, s{25+i}, {XN}")
    k("s_lshl_b32 s20, s3, 10")
    k("s_add_u32 s21, s20, 8192")
    for j in range(2):
        for i in range(5):
            x = 48 + 20 * j + 4 * i
            k(f"s_add_u32 s34, s{25+i}, s{20+j}")
            k(f"buffer_load_dwordx4 v[{x}:{x+3}], v3, s[12:15], s34 offen")
    k("""
    s_add_u32 s36, s3, 8
    s_cmp_lt_u32 s3, 2
    s_cselect_b32 s36, s36, s3
    s_mov_b32 s35, s3
    """)
    for e in range(2):
        k(f"""
        s_cmp_ge_u32 s{35+e}, 5
        s_cselect_b32 s{44+e}, 17, 16
        s_cselect_b32 s37, 5, 0
        s_sub_u32 s{46+e}, s{35+e}, s37
        s_add_u32 s37, s23, s{46+e}
        s_sub_u32 s37, s37, 1
        s_max_i32 s37, s37, 0
        s_mul_i32 s37, s37, 18
        s_add_u32 s37, s37, s{44+e}
        s_lshl_b32 s37, s37, 10
        s_add_u32 s37, s37, {XN}
        buffer_load_dwordx4 v[{88+4*e}:{91+4*e}], v3, s[12:15], s37 offen
        """)
    k("s_waitcnt vmcnt(12)")
    k("s_barrier")
    k(f"""
    s_lshl_b32 s40, s4, 4
    s_lshl_b32 s41, s3, 1
    s_add_u32 s42, s41, 1
    s_min_u32 s42, s42, 14
    s_add_u32 s41, s41, s40
    s_add_u32 s42, s42, s40
    s_mul_i32 s41, s41, {18*1024}
    s_mul_i32 s42, s42, {18*1024}
    s_add_u32 s41, s41, {WQ}
    s_add_u32 s42, s42, {WQ}
    """)

    NAS = 8
    vm = VM()
    vm.add("x0", 5); vm.add("x1", 5); vm.add("e0"); vm.add("e1")

    def areg(kk, tt):
        return 124 + 8 * (kk % NAS) + 4 * tt

    def load_a(kk):
        if kk % 4 == 0 and kk > 0:
            k("s_add_u32 s41, s41, 4096")
            k("s_add_u32 s42, s42, 4096")
        for tt in range(2):
            a = areg(kk, tt)
            k(f"buffer_load_dwordx4 v[{a}:{a+3}], v3, s[12:15], s{41+tt} offen offset:{(kk%4)*1024}")
        vm.add(f"a{kk}", 2)

    k(f"""
    s_lshl_b32 s31, s3, 7
    v_add_u32 v8, s31, v5
    s_lshl_b32 s31, s44, 7
    v_add_u32 v9, s31, v5
    s_lshl_b32 s31, s45, 7
    v_add_u32 v11, s31, v5
    v_add_u32 v8, {K1_ML}, v8
    v_add_u32 v9, {K1_ML}, v9
    v_add_u32 v11, {K1_ML}, v11
    v_add_u32 v12, s20, v3
    v_add_u32 v13, 18432, v12
    v_add_u32 v14, s21, v3
    v_add_u32 v15, 18432, v14
    """)
    for e in range(2):
        k(f"""
        s_mul_i32 s37, s{46+e}, 18
        s_add_u32 s37, s37, s{44+e}
        s_lshl_b32 s37, s37, 10
        v_add_u32 v{228+e}, s37, v3
        """)

    def read_mod(j):
        va, off = ((8, 0), (8, 1024), (9, 0), (11, 0))[j]
        b = 16 + 16 * (j & 1)
        return [f"ds_read_b128 v[{b}:{b+3}], v{va} offset:{off + 2304}",
                f"ds_read_b128 v[{b+4}:{b+7}], v{va} offset:{off + 2304 + 16}",
                f"ds_read_b128 v[{b+8}:{b+11}], v{va} offset:{off}",
                f"ds_read_b128 v[{b+12}:{b+15}], v{va} offset:{off + 16}"]

    def xform(f):
        if f < 10:
            j, i = divmod(f, 5)
            x = 48 + 20 * j + 4 * i
        else:
            j = 2 + (f - 10)
            x = 88 + 4 * (f - 10)
        b = 16 + 16 * (j & 1)
        T = 96
        o = []
        for q in range(4):
            o.append(f"v_lshlrev_b32 v{T+2*q}, 16, v{x+q}")
            o.append(f"v_and_b32 v{T+2*q+1}, 0xffff0000, v{x+q}")
        if "fma1" in ABL:
            for e_ in range(8):
                o.append(f"v_fma_f32 v{T+e_}, v{T+e_}, v{b+e_}, v{b+8+e_}")
        else:
            for e_ in range(8):
                o.append(f"v_mul_f32 v{T+e_}, v{T+e_}, v{b+e_}")
            for q in range(4):
                o.append(f"v_cvt_pk_bf16_f32 v{x+q}, v{T+2*q}, v{T+2*q+1}")
            for q in range(4):
                o.append(f"v_lshlrev_b32 v{T+2*q}, 16, v{x+q}")
                o.append(f"v_and_b32 v{T+2*q+1}, 0xffff0000, v{x+q}")
            for e_ in range(8):
                o.append(f"v_add_f32 v{T+e_}, v{T+e_}, v{b+8+e_}")
        for q in range(4):
            o.append(f"v_cvt_pk_bf16_f32 v{x+q}, v{T+2*q}, v{T+2*q+1}")
        if f < 10:
            base = 12 + 2 * j
            if i < 4:
                o.append(f"ds_write_b128 v{base}, v[{x}:{x+3}] offset:{i*18432}")
            else:
                o.append(f"ds_write_b128 v{base+1}, v[{x}:{x+3}] offset:{3*18432}")
        else:
            o.append(f"ds_write_b128 v{228+f-10}, v[{x}:{x+3}]")
        return o

    for ln in read_mod(0) + read_mod(1):
        k(ln)
    k("s_waitcnt lgkmcnt(4)")
    nw = 0
    for f in range(5):
        k(f"s_waitcnt vmcnt({len(vm.ops) - 1 - f})")
        for ln in xform(f):
            k(ln)
        if f >= 1:
            load_a(nw); nw += 1
    k("s_waitcnt lgkmcnt(0)")
    stamp(k, 1)
    k("s_barrier")
    stamp(k, 2)
    k("v_add_u32 v6, 55296, v3")

    def breg(kk, i):
        return (48 if (kk & 1) == 0 else 104) + 4 * i

    def read_b(kk):
        for i in range(5):
            b = breg(kk, i)
            if i < 3:
                k(f"ds_read_b128 v[{b}:{b+3}], v3 offset:{i*18432 + kk*1024}")
            else:
                k(f"ds_read_b128 v[{b}:{b+3}], v6 offset:{(i-3)*18432 + kk*1024}")

    def acc(tt, i):
        return 188 + 20 * tt + 4 * i

    sidew = {0: [5], 1: [6], 2: [7], 3: [8], 4: [9], 5: [10], 6: [11]}
    read_b(0)
    for kk in range(18):
        if kk == 7:
            k("s_waitcnt lgkmcnt(0)")
            k("s_barrier")
        if kk < 17:
            read_b(kk + 1)
        while nw < 18 and nw < kk + NAS:
            load_a(nw); nw += 1
            if kk > 0:
                break
        side = []
        if kk == 4:
            side += read_mod(2)
        if kk == 5:
            side += read_mod(3)
        fl = sidew.get(kk, [])
        tags = [f"a{kk}"] + [("x1" if f < 10 else f"e{f-10}") for f in fl]
        k(f"s_waitcnt vmcnt({vm.need(*tags)})")
        k(f"s_waitcnt lgkmcnt({5 if kk < 17 else 0})")
        for f in fl:
            side += xform(f)
        nm = 0
        for i in range(5):
            for tt in range(2):
                a = areg(kk, tt); b = breg(kk, i); c = acc(tt, i)
                cs = "0" if kk == 0 else f"v[{c}:{c+3}]"
                k(f"v_mfma_f32_16x16x32_bf16 v[{c}:{c+3}], v[{a}:{a+3}], v[{b}:{b+3}], {cs}")
                nm += 1
                take = -(-len(side) // (11 - nm)) if side else 0
                for _ in range(take):
                    k(side.pop(0))
        assert not side
    stamp(k, 3)
    k(f"""
    v_and_b32 v6, 15, v1
    v_mul_u32_u24 v6, {TS}, v6
    v_lshl_add_u32 v6, v4, 3, v6
    s_lshl_b32 s31, s3, 6
    s_add_u32 s31, s31, {QB}
    v_add_u32 v6, s31, v6
    """)
    for tt in range(2):
        if tt == 1:
            k("s_cmp_eq_u32 s3, 7")
            k("s_cbranch_scc1 k1_skip_t1")
        for i in range(5):
            c = acc(tt, i)
            k(f"v_cvt_pk_bf16_f32 v{60+2*i}, v{c}, v{c+1}")
            k(f"v_cvt_pk_bf16_f32 v{61+2*i}, v{c+2}, v{c+3}")
            k(f"ds_write_b64 v6, v[{60+2*i}:{61+2*i}] offset:{i*16*TS + tt*32}")
    k.label("k1_skip_t1")
    k("s_waitcnt lgkmcnt(0)")
    k("s_barrier")
    stamp(k, 4)

    k(f"""
    s_and_b32 s50, s4, 1
    s_lshr_b32 s51, s4, 1
    s_lshl_b32 s52, s5, 2
    s_lshl_b32 s53, s50, 1
    s_add_u32 s52, s52, s53
    s_mul_i32 s53, s51, 9
    s_add_u32 s54, s53, s3
    s_mul_i32 s55, s54, {18*1024}
    s_add_u32 s55, s55, {WOP}
    v_add_u32 v216, 4096, v3
    v_add_u32 v217, 8192, v3
    v_add_u32 v218, 12288, v3
    v_add_u32 v219, 16384, v3
    v_and_b32 v220, 15, v1
    s_lshl_b32 s31, s52, 4
    v_add_u32 v220, s31, v220
    v_mul_u32_u24 v221, 1152, v220
    v_lshl_add_u32 v221, v4, 3, v221
    s_lshl_b32 s31, s54, 5
    v_add_u32 v222, s31, v221
    v_add_u32 v223, {16*1152}, v222
    v_lshlrev_b32 v224, 4, v4
    s_lshl_b32 s31, s54, 6
    v_add_u32 v225, s31, v224
    s_mov_b32 s56, {MOD + 2*576*4}
    s_mov_b32 s57, {MOD + 4*576*4}
    """)
    side = []
    for kk in range(18):
        vo = 3 if kk < 4 else 215 + kk // 4
        side.append(f"buffer_load_dwordx4 v[{128+4*kk}:{131+4*kk}], v{vo}, s[12:15], s55 offen offset:{(kk%4)*1024}")
    side.append("global_load_dwordx2 v[200:201], v222, s[8:9]")
    side.append("global_load_dwordx2 v[202:203], v223, s[8:9]")
    side.append("buffer_load_dwordx4 v[204:207], v225, s[12:15], s56 offen")
    side.append("buffer_load_dwordx4 v[208:211], v225, s[12:15], s57 offen")
    kreal = k
    cnt = [0]

    class KS:
        def __call__(self, txt):
            for ln in txt.strip("\n").split("\n"):
                ln = ln.strip()
                if not ln:
                    continue
                kreal(ln)
                if ln.startswith("v_") and side:
                    cnt[0] += 1
                    if cnt[0] % 10 == 0:
                        kreal(side.pop(0))

        def label(self, l):
            kreal.label(l)

    k = KS()
    k(f"""
    v_and_b32 v6, 1, v1
    v_bfe_u32 v7, v1, 1, 2
    v_lshrrev_b32 v8, 3, v1
    s_lshl_b32 s31, s3, 3
    v_add_u32 v8, s31, v8
    v_mul_u32_u24 v9, {TS}, v8
    v_mul_u32_u24 v10, 40, v7
    v_add_u32 v9, v9, v10
    v_add_u32 v9, {QB + 16*TS}, v9
    v_mul_u32_u24 v10, {8*TS}, v6
    v_sub_u32 v11, v9, v10
    v_add_u32 v12, {160 - 6*TS}, v11
    v_lshl_add_u32 v13, v6, 4, v11
    v_add_u32 v13, {320 - 6*TS}, v13
    v_add_u32 v14, v9, v10
    v_lshl_add_u32 v14, v6, 4, v14
    v_add_u32 v14, {320 - 14*TS}, v14
    """)
    for j in range(5):
        k(f"ds_read_b64 v[{16+2*j}:{17+2*j}], v9 offset:{8*j}")
    for u in range(4):
        for j in range(5):
            r = 32 + 10 * u + 2 * j
            k(f"ds_read_b64 v[{r}:{r+1}], v12 offset:{(3-u)*2*TS + 8*j}")
    for u in range(4):
        for j in range(3):
            r = 80 + 6 * u + 2 * j
            k(f"ds_read_b64 v[{r}:{r+1}], v13 offset:{(3-u)*2*TS + 8*j}")
    for u in range(4):
        for j in range(3):
            r = 104 + 6 * u + 2 * j
            k(f"ds_read_b64 v[{r}:{r+1}], v14 offset:{(3-u)*2*TS + 8*j}")
    k(f"""
    s_lshl_b32 s31, s5, 6
    v_add_u32 v15, s31, v8
    v_lshlrev_b32 v26, 3, v6
    v_sub_u32 v15, v15, v26
    v_mov_b32 v27, 0xce6e6b28
    s_waitcnt lgkmcnt(15)
    """)
    k("s_waitcnt lgkmcnt(0)")
    stamp(k, 5)
    for j in range(9):
        for u in range(4):
            src = "0" if j == 0 else f"v{28+u}"
            k(f"v_dot2_f32_bf16 v{28+u}, v{16+j}, v{32+10*u+j}, {src}")
    for u in range(4):
        bf16_round(k, 28 + u, 28 + u)
        k(f"v_mul_f32 v{28+u}, 0x3e715bef, v{28+u}")
        bf16_round(k, 28 + u, 28 + u)
        k(f"v_cmp_gt_i32 vcc, {2*u}, v15")
        k(f"v_cndmask_b32 v{28+u}, v{28+u}, v27, vcc")
    for u in range(4):
        k(f"v_mov_b32_dpp v{32+u}, v{28+u} quad_perm:[1,0,3,2] row_mask:0xf bank_mask:0xf")
    k("""
    v_max3_f32 v36, v28, v29, v30
    v_max3_f32 v36, v36, v31, v32
    v_max3_f32 v36, v36, v33, v34
    v_max_f32 v36, v36, v35
    """)
    for u in range(8):
        k(f"v_sub_f32 v{28+u}, v{28+u}, v36")
        k(f"v_mul_f32 v{28+u}, {LOG2E}, v{28+u}")
        k(f"v_exp_f32 v{28+u}, v{28+u}")
    k("""
    v_add_f32 v36, v28, v29
    v_add_f32 v37, v30, v31
    v_add_f32 v38, v32, v33
    v_add_f32 v39, v34, v35
    v_add_f32 v36, v36, v37
    v_add_f32 v38, v38, v39
    v_add_f32 v36, v36, v38
    v_rcp_f32 v36, v36
    """)
    for u in range(8):
        k(f"v_mul_f32 v{28+u}, v{28+u}, v36")
        k(f"v_cvt_pk_bf16_f32 v{40+u}, v{28+u}, 0")
        k(f"v_lshlrev_b32 v{48+u}, 16, v{40+u}")
    for u in range(8):
        vb = (80 + 6 * u) if u < 4 else (104 + 6 * (u - 4))
        for j in range(5):
            s0 = "0" if u == 0 else f"v{60+2*j}"
            s1 = "0" if u == 0 else f"v{61+2*j}"
            k(f"v_dot2_f32_bf16 v{60+2*j}, v{vb+j}, v{40+u}, {s0}")
            k(f"v_dot2_f32_bf16 v{61+2*j}, v{vb+j}, v{48+u}, {s1}")
    k(f"""
    v_mul_u32_u24 v9, 160, v8
    v_mul_u32_u24 v10, 36, v7
    v_add_u32 v9, v9, v10
    v_lshl_add_u32 v9, v6, 4, v9
    """)
    for j in range(5):
        k(f"v_cvt_pk_bf16_f32 v{70+j}, v{60+2*j}, v{61+2*j}")
        k(f"ds_write_b32 v9, v{70+j} offset:{4*j}")
    k("s_waitcnt lgkmcnt(0)")
    k = kreal
    for ln in side:
        k(ln)
    stamp(k, 6)
    k("s_barrier")
    k(f"""
    v_mul_u32_u24 v6, 160, v1
    s_lshl_b32 s31, s3, 4
    v_add_u32 v6, s31, v6
    ds_read_b128 v[16:19], v6
    ds_read_b128 v[20:23], v6 offset:128
    v_mul_u32_u24 v7, {18*1024}, v4
    v_and_b32 v8, 15, v1
    v_lshl_add_u32 v7, v8, 4, v7
    s_mul_i32 s31, s5, {4*18*1024}
    s_mul_i32 s32, s4, 9
    s_add_u32 s32, s32, s3
    s_lshl_b32 s32, s32, 8
    s_add_u32 s31, s31, s32
    s_add_u32 s31, s31, {OO}
    s_waitcnt lgkmcnt(0)
    buffer_store_dwordx4 v[16:19], v7, s[12:15], s31 offen sc1
    s_cmp_lg_u32 s3, 0
    s_cbranch_scc1 k1_st1
    buffer_store_dwordx4 v[20:23], v7, s[12:15], s31 offen offset:2048 sc1
    """)
    k.label("k1_st1")
    k(f"""
    s_waitcnt vmcnt(0)
    s_barrier
    s_lshl_b32 s33, s5, 8
    s_add_u32 s33, s33, {CNT}
    v_mov_b32 v9, s33
    s_cmp_lg_u32 s3, 7
    s_cbranch_scc1 k1_nosig
    v_mov_b32 v8, 1
    s_mov_b64 exec, 1
    global_atomic_add v9, v8, s[86:87]
    s_mov_b64 exec, -1
    """)
    k.label("k1_nosig")
    k(f"""
    s_cmp_ge_u32 s3, 2
    s_cbranch_scc1 k1_noextra
    s_add_u32 s58, s53, 8
    s_mul_i32 s59, s58, {18*1024}
    s_add_u32 s59, s59, {WOP}
    """)
    for kk in range(18):
        vo = 3 if kk < 4 else 215 + kk // 4
        k(f"buffer_load_dwordx4 v[{16+4*kk}:{19+4*kk}], v{vo}, s[12:15], s59 offen offset:{(kk%4)*1024}")
    k(f"""
    s_lshl_b32 s31, s58, 5
    s_mul_i32 s32, s3, {16*1152}
    s_add_u32 s31, s31, s32
    v_add_u32 v10, s31, v221
    global_load_dwordx2 v[88:89], v10, s[8:9]
    s_lshl_b32 s31, s58, 6
    v_add_u32 v10, s31, v224
    buffer_load_dwordx4 v[92:95], v10, s[12:15], s56 offen
    buffer_load_dwordx4 v[96:99], v10, s[12:15], s57 offen
    """)
    k.label("k1_noextra")
    k("s_mov_b32 s37, 0")
    k("s_cmp_lg_u32 s3, 7")
    k("s_cbranch_scc1 k1_ready")
    k("s_mov_b64 exec, 1")
    k.label("k1_poll")
    k("""
    global_load_dword v8, v9, s[86:87] sc1
    s_waitcnt vmcnt(0)
    v_readfirstlane_b32 s38, v8
    s_add_u32 s37, s37, 1
    s_cmp_ge_u32 s38, 8
    s_cbranch_scc1 k1_ready
    s_cmp_lt_u32 s37, 0x400000
    s_cbranch_scc0 k1_ready
    s_sleep 2
    s_branch k1_poll
    """)
    k.label("k1_ready")
    k("s_mov_b64 exec, -1")
    k("s_barrier")
    stamp(k, 7)
    k(f"""
    s_mul_i32 s31, s52, {18*1024}
    s_add_u32 s31, s31, {OO}
    s_lshl_b32 s32, s3, 10
    s_add_u32 s31, s31, s32
    s_add_u32 s34, s32, 32768
    s_add_u32 s35, s32, 24576
    s_cmp_lt_u32 s3, 4
    s_cselect_b32 s34, s34, s35
    s_sub_u32 s35, s34, s32
    s_add_u32 s35, s35, s31
    v_add_u32 v10, 24576, v3
    buffer_load_dwordx4 v[100:103], v3, s[12:15], s31 offen sc1
    buffer_load_dwordx4 v[104:107], v217, s[12:15], s31 offen sc1
    buffer_load_dwordx4 v[108:111], v219, s[12:15], s31 offen sc1
    buffer_load_dwordx4 v[112:115], v10, s[12:15], s31 offen sc1
    buffer_load_dwordx4 v[116:119], v3, s[12:15], s35 offen sc1
    v_add_u32 v11, s32, v3
    v_add_u32 v11, {K1_OL}, v11
    v_add_u32 v12, s34, v3
    v_add_u32 v12, {K1_OL}, v12
    s_waitcnt vmcnt(4)
    ds_write_b128 v11, v[100:103]
    s_waitcnt vmcnt(3)
    ds_write_b128 v11, v[104:107] offset:8192
    s_waitcnt vmcnt(2)
    ds_write_b128 v11, v[108:111] offset:16384
    s_waitcnt vmcnt(1)
    ds_write_b128 v11, v[112:115] offset:24576
    s_waitcnt vmcnt(0)
    ds_write_b128 v12, v[116:119]
    v_add_u32 v13, {K1_OL}, v3
    s_mul_i32 s31, s3, {18*1024}
    v_add_u32 v14, s31, v13
    s_waitcnt lgkmcnt(0)
    s_barrier
    """)

    stamp(k, 4)
    k(f"""
    s_sub_u32 s31, s3, 2
    s_cmp_ge_u32 s31, 2
    s_cbranch_scc1 k1_nopfw
    v_subrev_u32 v24, 128, v0
    v_min_u32 v24, 71, v24
    v_cmp_le_u32 vcc, 36, v24
    v_subrev_u32 v25, 36, v24
    v_cndmask_b32 v24, v24, v25, vcc
    v_mul_u32_u24 v25, 57, v24
    v_lshrrev_b32 v25, 9, v25
    v_mul_u32_u24 v26, 9, v25
    v_sub_u32 v26, v24, v26
    v_mul_u32_u24 v25, 9216, v25
    v_lshl_add_u32 v25, v26, 7, v25
    s_lshr_b32 s31, s2, 3
    s_mul_i32 s31, s31, {4*9216}
    s_and_b32 s32, s2, 7
    s_mul_i32 s32, s32, 1152
    s_add_u32 s31, s31, s32
    v_add_u32 v25, s31, v25
    v_mov_b32 v26, s16
    v_mov_b32 v27, s17
    v_mov_b32 v28, s18
    v_mov_b32 v29, s19
    v_cndmask_b32 v26, v26, v28, vcc
    v_cndmask_b32 v27, v27, v29, vcc
    v_add_co_u32 v26, vcc, v26, v25
    v_addc_co_u32 v27, vcc, 0, v27, vcc
    global_load_dword v40, v[26:27], off
    """)
    k.label("k1_nopfw")
    BB = [100, 108, 116, 212]

    def b2(kk, tt):
        return BB[kk % 4] + 4 * tt

    def read_b2(kk):
        for tt in range(2):
            b = b2(kk, tt)
            k(f"ds_read_b128 v[{b}:{b+3}], v13 offset:{(tt*18 + kk)*1024}")

    A2 = [232, 236]

    def gemm2(extra):
        for kk in range(3):
            read_b2(kk)
        for kk in range(18):
            if kk + 3 < 18:
                read_b2(kk + 3)
            k(f"s_waitcnt lgkmcnt({2 * min(3, 17 - kk)})")
            for tt in range(2):
                c = A2[tt]; b = b2(kk, tt)
                cs = "0" if kk == 0 else f"v[{c}:{c+3}]"
                k(f"v_mfma_f32_16x16x32_bf16 v[{c}:{c+3}], v[{128+4*kk}:{131+4*kk}], v[{b}:{b+3}], {cs}")
            if extra is not None:
                b = b2(kk, extra)
                cs = "0" if kk == 0 else "v[240:243]"
                k(f"v_mfma_f32_16x16x32_bf16 v[240:243], v[{16+4*kk}:{19+4*kk}], v[{b}:{b+3}], {cs}")

    k("s_cmp_eq_u32 s3, 0")
    k("s_cbranch_scc1 k1_g2a")
    k("s_cmp_eq_u32 s3, 1")
    k("s_cbranch_scc1 k1_g2b")
    gemm2(None)
    k("s_branch k1_g2e")
    k.label("k1_g2a")
    gemm2(0)
    k("s_branch k1_g2e")
    k.label("k1_g2b")
    gemm2(1)
    k.label("k1_g2e")
    k("s_nop 7")
    stamp(k, 5)

    def unit_epi(c, xr, ga, g2, sm, x1o, yo, first):
        k(f"""
        v_cvt_pk_bf16_f32 v110, v{c}, v{c+1}
        v_cvt_pk_bf16_f32 v111, v{c+2}, v{c+3}
        v_lshlrev_b32 v112, 16, v110
        v_and_b32 v113, 0xffff0000, v110
        v_lshlrev_b32 v114, 16, v111
        v_and_b32 v115, 0xffff0000, v111
        v_pk_mul_f32 v[112:113], v[112:113], v[{ga}:{ga+1}]
        v_pk_mul_f32 v[114:115], v[114:115], v[{ga+2}:{ga+3}]
        v_cvt_pk_bf16_f32 v110, v112, v113
        v_cvt_pk_bf16_f32 v111, v114, v115
        v_lshlrev_b32 v112, 16, v110
        v_and_b32 v113, 0xffff0000, v110
        v_lshlrev_b32 v114, 16, v111
        v_and_b32 v115, 0xffff0000, v111
        v_lshlrev_b32 v116, 16, v{xr}
        v_and_b32 v117, 0xffff0000, v{xr}
        v_lshlrev_b32 v118, 16, v{xr+1}
        v_and_b32 v119, 0xffff0000, v{xr+1}
        v_pk_add_f32 v[112:113], v[112:113], v[116:117]
        v_pk_add_f32 v[114:115], v[114:115], v[118:119]
        v_cvt_pk_bf16_f32 v{x1o}, v112, v113
        v_cvt_pk_bf16_f32 v{x1o+1}, v114, v115
        v_lshlrev_b32 v112, 16, v{x1o}
        v_and_b32 v113, 0xffff0000, v{x1o}
        v_lshlrev_b32 v114, 16, v{x1o+1}
        v_and_b32 v115, 0xffff0000, v{x1o+1}
        """)
        if first:
            k(f"v_add_f32 v{sm}, v112, v113")
            k(f"v_mul_f32 v{sm+1}, v112, v112")
        else:
            k(f"v_add_f32 v{sm}, v{sm}, v112")
            k(f"v_fmac_f32 v{sm+1}, v112, v112")
            k(f"v_add_f32 v{sm}, v{sm}, v113")
        k(f"""
        v_fmac_f32 v{sm+1}, v113, v113
        v_add_f32 v{sm}, v{sm}, v114
        v_fmac_f32 v{sm+1}, v114, v114
        v_add_f32 v{sm}, v{sm}, v115
        v_fmac_f32 v{sm+1}, v115, v115
        v_pk_mul_f32 v[112:113], v[112:113], v[{g2}:{g2+1}]
        v_pk_mul_f32 v[114:115], v[114:115], v[{g2+2}:{g2+3}]
        v_cvt_pk_bf16_f32 v{yo}, v112, v113
        v_cvt_pk_bf16_f32 v{yo+1}, v114, v115
        """)

    k(f"""
    s_lshr_b32 s33, s3, 1
    s_lshl_b32 s33, s33, 10
    s_and_b32 s32, s3, 1
    s_lshl_b32 s32, s32, 3
    s_add_u32 s33, s33, s32
    s_add_u32 s33, s33, {K1_YL}
    v_add_u32 v6, s33, v3
    s_mul_i32 s36, s52, {144*128}
    s_lshl_b32 s37, s54, 9
    s_add_u32 s36, s36, s37
    s_add_u32 s36, s36, {X1}
    s_add_u32 s37, s36, {144*128}
    v_lshlrev_b32 v7, 3, v1
    """)
    for tt in range(2):
        unit_epi(A2[tt], 200 + 2 * tt, 204, 208, 120 + 2 * tt, 244 + 2 * tt, 248 + 2 * tt, True)
        k(f"ds_write_b64 v6, v[{248+2*tt}:{249+2*tt}] offset:{5120*tt}")
        k(f"buffer_store_dwordx2 v[{244+2*tt}:{245+2*tt}], v7, s[12:15], s{36+tt} offen")
    for w in range(2):
        k(f"s_cmp_lg_u32 s3, {w}")
        k(f"s_cbranch_scc1 k1_noex3_{w}")
        unit_epi(240, 88, 92, 96, 120 + 2 * w, 252, 254, False)
        k(f"""
        v_add_u32 v8, {K1_YL + 5120*w + 4096}, v3
        ds_write_b64 v8, v[254:255]
        s_add_u32 s38, s52, {w}
        s_mul_i32 s38, s38, {144*128}
        s_add_u32 s39, s53, 8
        s_lshl_b32 s39, s39, 9
        s_add_u32 s38, s38, s39
        s_add_u32 s38, s38, {X1}
        buffer_store_dwordx2 v[252:253], v7, s[12:15], s38 offen
        """)
        k.label(f"k1_noex3_{w}")
    for r in range(120, 124):
        k(f"v_mov_b32 v{r+4}, v{r}")
    for r in range(120, 124):
        k(f"v_permlane16_swap_b32 v{r}, v{r+4}")
    for r in range(120, 124):
        k(f"v_add_f32 v{r}, v{r}, v{r+4}")
    for r in range(120, 124):
        k(f"v_mov_b32 v{r+4}, v{r}")
    for r in range(120, 124):
        k(f"v_permlane32_swap_b32 v{r}, v{r+4}")
    for r in range(120, 124):
        k(f"v_add_f32 v{r}, v{r}, v{r+4}")
    k(f"""
    v_cmp_gt_u32 vcc, 16, v1
    v_cndmask_b32 v120, v122, v120, vcc
    v_cndmask_b32 v121, v123, v121, vcc
    s_lshl_b32 s31, s3, 8
    s_add_u32 s31, s31, {K1_SL}
    v_lshlrev_b32 v5, 3, v1
    v_add_u32 v5, s31, v5
    s_mov_b32 exec_hi, 0
    ds_write_b64 v5, v[120:121]
    s_mov_b64 exec, -1
    s_waitcnt lgkmcnt(0)
    s_barrier
    """)
    if DIAG:
        k("s_mov_b32 s71, s76")
        k("s_mov_b32 s72, s77")
    stamp(k, 3)
    stamp_flush(k, 7, 3, "k1", 60)
    k(f"""
    s_lshr_b32 s32, s3, 2
    s_and_b32 s31, s3, 3
    s_mul_i32 s33, s32, 5120
    s_lshl_b32 s34, s31, 10
    s_add_u32 s33, s33, s34
    s_add_u32 s33, s33, {K1_YL}
    v_add_u32 v6, s33, v3
    ds_read_b128 v[24:27], v6
    s_lshr_b32 s35, s51, 1
    s_mul_i32 s35, s35, 9
    s_and_b32 s36, s51, 1
    s_lshl_b32 s37, s36, 2
    s_add_u32 s37, s37, s35
    s_add_u32 s37, s37, s31
    s_add_u32 s38, s52, s32
    s_mul_i32 s38, s38, 18
    s_add_u32 s37, s37, s38
    s_lshl_b32 s37, s37, 10
    s_add_u32 s37, s37, {YY}
    s_waitcnt lgkmcnt(0)
    buffer_store_dwordx4 v[24:27], v3, s[12:15], s37 offen sc1
    s_cmp_eq_u32 s3, 1
    s_cbranch_scc1 k1_stats
    s_cmp_lg_u32 s31, 0
    s_cbranch_scc1 k1_done
    ds_read_b64 v[28:29], v6 offset:4096
    s_add_u32 s37, s35, 8
    s_add_u32 s37, s37, s38
    s_lshl_b32 s37, s37, 10
    s_lshl_b32 s36, s36, 3
    s_add_u32 s37, s37, s36
    s_add_u32 s37, s37, {YY}
    s_waitcnt lgkmcnt(0)
    buffer_store_dwordx2 v[28:29], v3, s[12:15], s37 offen sc1
    s_branch k1_done
    """)
    k.label("k1_stats")
    k("v_lshlrev_b32 v5, 2, v1")
    for w in range(8):
        k(f"ds_read_b32 v{32+w}, v5 offset:{K1_SL + 256*w}")
    k("s_waitcnt lgkmcnt(0)")
    k(f"""
    v_add_f32 v32, v32, v33
    v_add_f32 v34, v34, v35
    v_add_f32 v36, v36, v37
    v_add_f32 v38, v38, v39
    v_add_f32 v32, v32, v34
    v_add_f32 v36, v36, v38
    v_add_f32 v32, v32, v36
    s_lshl_b32 s31, s51, 14
    s_lshl_b32 s32, s52, 7
    s_add_u32 s31, s31, s32
    s_add_u32 s31, s31, {STAT}
    buffer_store_dword v32, v5, s[12:15], s31 offen sc1
    """)
    k.label("k1_done")
    k(f"""
    s_waitcnt vmcnt(0) lgkmcnt(0)
    s_barrier
    s_lshr_b32 s33, s5, 2
    s_lshl_b32 s33, s33, 8
    s_add_u32 s33, s33, {CNT + 32*256}
    v_mov_b32 v9, s33
    s_cmp_lg_u32 s3, 7
    s_cbranch_scc1 k1_nosig2
    v_mov_b32 v8, 1
    s_mov_b64 exec, 1
    global_atomic_add v9, v8, s[86:87]
    s_mov_b64 exec, -1
    """)
    k.label("k1_nosig2")
    return gen_k3(k)


K2_GRID = 256
K2_YL = 36864 + 2304
K2_LDS = K2_YL + 10240


def gen_k2():
    k = K("wo_kernel")
    tl_start(k)
    k(f"""
    s_cmp_ge_u32 s2, {K2_GRID}
    s_cbranch_scc1 k2_done
    s_load_dwordx2 s[4:5], s[0:1], 0
    s_load_dwordx4 s[16:19], s[0:1], 32
    s_load_dwordx2 s[6:7], s[0:1], 88
    v_and_b32 v1, 63, v0
    v_lshrrev_b32 v2, 6, v0
    v_lshlrev_b32 v3, 4, v1
    v_lshrrev_b32 v4, 4, v1
    v_readfirstlane_b32 s3, v2
    s_waitcnt lgkmcnt(0)
    """)
    srd(k, 12, 6, WS_BYTES)
    k(f"""
    s_and_b32 s20, s2, 7
    s_lshl_b32 s20, s20, 3
    s_bfe_u32 s21, s2, 0x30003
    s_add_u32 s20, s20, s21
    s_lshr_b32 s21, s2, 6
    s_lshl_b32 s24, s20, 1
    s_mul_i32 s25, s21, 9
    s_add_u32 s25, s25, s3
    s_mul_i32 s27, s24, {18*1024}
    s_add_u32 s27, s27, {OO}
    s_lshl_b32 s26, s3, 12
    s_add_u32 s27, s27, s26
    s_mul_i32 s28, s25, {18*1024}
    s_add_u32 s28, s28, {WOP}
    """)
    stamp(k, 0)
    k("s_mov_b32 m0, s26")
    for i in range(4):
        k(f"buffer_load_dwordx4 v3, s[12:15], s27 offen offset:{1024*i} lds")
    for q in range(5):
        k(f"v_add_u32 v{5+q}, {4096*q}, v3")

    def areg(kk):
        return 24 + 4 * (kk % 11)

    def load_a(kk):
        a = areg(kk)
        k(f"buffer_load_dwordx4 v[{a}:{a+3}], v{5+kk//4}, s[12:15], s28 offen offset:{(kk%4)*1024}")

    for kk in range(11):
        load_a(kk)
    k(f"""
    v_and_b32 v10, 15, v1
    s_lshl_b32 s31, s24, 4
    v_add_u32 v10, s31, v10
    v_mul_u32_u24 v11, 1152, v10
    v_lshl_add_u32 v11, v4, 3, v11
    s_lshl_b32 s31, s25, 5
    v_add_u32 v11, s31, v11
    v_add_u32 v13, {16*1152}, v11
    v_lshlrev_b32 v12, 4, v4
    s_lshl_b32 s31, s25, 6
    v_add_u32 v12, s31, v12
    s_mov_b32 s34, {MOD + 2*576*4}
    s_mov_b32 s35, {MOD + 4*576*4}
    global_load_dwordx2 v[14:15], v11, s[4:5]
    global_load_dwordx2 v[16:17], v13, s[4:5]
    buffer_load_dwordx4 v[72:75], v12, s[12:15], s34 offen
    buffer_load_dwordx4 v[76:79], v12, s[12:15], s35 offen
    s_waitcnt vmcnt(15)
    s_barrier
    """)
    stamp(k, 1)

    def breg(kk, tt):
        return 80 + 8 * (kk & 1) + 4 * tt

    def read_b(kk):
        for tt in range(2):
            b = breg(kk, tt)
            k(f"ds_read_b128 v[{b}:{b+3}], v3 offset:{(tt*18 + kk)*1024}")

    accs = [18, 68]
    read_b(0)
    for kk in range(18):
        if kk < 17:
            read_b(kk + 1)
        if kk < 11:
            n_after = (10 - kk) + 4 + min(kk, 7)
        else:
            n_after = 17 - kk
        k(f"s_waitcnt vmcnt({n_after}) lgkmcnt({2 if kk < 17 else 0})")
        a = areg(kk)
        for tt in range(2):
            c = accs[tt]
            b = breg(kk, tt)
            cs = "0" if kk == 0 else f"v[{c}:{c+3}]"
            k(f"v_mfma_f32_16x16x32_bf16 v[{c}:{c+3}], v[{a}:{a+3}], v[{b}:{b+3}], {cs}")
        if kk + 11 < 18:
            load_a(kk + 11)
    stamp(k, 2)
    k(f"""
    s_cmp_ge_u32 s3, 2
    s_cbranch_scc1 k2_nopf
    v_min_u32 v24, 71, v0
    v_cmp_le_u32 vcc, 36, v24
    v_subrev_u32 v25, 36, v24
    v_cndmask_b32 v24, v24, v25, vcc
    v_mul_u32_u24 v25, 57, v24
    v_lshrrev_b32 v25, 9, v25
    v_mul_u32_u24 v26, 9, v25
    v_sub_u32 v26, v24, v26
    v_mul_u32_u24 v25, 9216, v25
    v_lshl_add_u32 v25, v26, 7, v25
    s_lshr_b32 s31, s2, 3
    s_mul_i32 s31, s31, {4*9216}
    s_and_b32 s32, s2, 7
    s_mul_i32 s32, s32, 1152
    s_add_u32 s31, s31, s32
    v_add_u32 v25, s31, v25
    v_mov_b32 v26, s16
    v_mov_b32 v27, s17
    v_mov_b32 v28, s18
    v_mov_b32 v29, s19
    v_cndmask_b32 v26, v26, v28, vcc
    v_cndmask_b32 v27, v27, v29, vcc
    v_add_co_u32 v26, vcc, v26, v25
    v_addc_co_u32 v27, vcc, 0, v27, vcc
    global_load_dword v95, v[26:27], off
    """)
    k.label("k2_nopf")
    k(f"""
    s_lshr_b32 s33, s3, 1
    s_lshl_b32 s33, s33, 10
    s_and_b32 s32, s3, 1
    s_lshl_b32 s32, s32, 3
    s_add_u32 s33, s33, s32
    s_add_u32 s33, s33, {K2_YL}
    v_add_u32 v6, s33, v3
    s_mul_i32 s36, s24, {144*128}
    s_lshl_b32 s37, s25, 9
    s_add_u32 s36, s36, s37
    s_add_u32 s36, s36, {X1}
    s_add_u32 s37, s36, {144*128}
    v_lshlrev_b32 v7, 3, v1
    """)
    ga, g2 = 72, 76
    for tt in range(2):
        c = accs[tt]
        xr = 14 + 2 * tt
        sm, sq = 40 + 2 * tt, 41 + 2 * tt
        k(f"""
        v_cvt_pk_bf16_f32 v24, v{c}, v{c+1}
        v_cvt_pk_bf16_f32 v25, v{c+2}, v{c+3}
        v_lshlrev_b32 v26, 16, v24
        v_and_b32 v27, 0xffff0000, v24
        v_lshlrev_b32 v28, 16, v25
        v_and_b32 v29, 0xffff0000, v25
        v_pk_mul_f32 v[26:27], v[26:27], v[{ga}:{ga+1}]
        v_pk_mul_f32 v[28:29], v[28:29], v[{ga+2}:{ga+3}]
        v_cvt_pk_bf16_f32 v24, v26, v27
        v_cvt_pk_bf16_f32 v25, v28, v29
        v_lshlrev_b32 v26, 16, v24
        v_and_b32 v27, 0xffff0000, v24
        v_lshlrev_b32 v28, 16, v25
        v_and_b32 v29, 0xffff0000, v25
        v_lshlrev_b32 v30, 16, v{xr}
        v_and_b32 v31, 0xffff0000, v{xr}
        v_lshlrev_b32 v32, 16, v{xr+1}
        v_and_b32 v33, 0xffff0000, v{xr+1}
        v_pk_add_f32 v[26:27], v[26:27], v[30:31]
        v_pk_add_f32 v[28:29], v[28:29], v[32:33]
        v_cvt_pk_bf16_f32 v{34+2*tt}, v26, v27
        v_cvt_pk_bf16_f32 v{35+2*tt}, v28, v29
        v_lshlrev_b32 v26, 16, v{34+2*tt}
        v_and_b32 v27, 0xffff0000, v{34+2*tt}
        v_lshlrev_b32 v28, 16, v{35+2*tt}
        v_and_b32 v29, 0xffff0000, v{35+2*tt}
        v_add_f32 v{sm}, v26, v27
        v_mul_f32 v{sq}, v26, v26
        v_fmac_f32 v{sq}, v27, v27
        v_add_f32 v{sm}, v{sm}, v28
        v_fmac_f32 v{sq}, v28, v28
        v_add_f32 v{sm}, v{sm}, v29
        v_fmac_f32 v{sq}, v29, v29
        v_pk_mul_f32 v[26:27], v[26:27], v[{g2}:{g2+1}]
        v_pk_mul_f32 v[28:29], v[28:29], v[{g2+2}:{g2+3}]
        v_cvt_pk_bf16_f32 v{44+2*tt}, v26, v27
        v_cvt_pk_bf16_f32 v{45+2*tt}, v28, v29
        ds_write_b64 v6, v[{44+2*tt}:{45+2*tt}] offset:{5120*tt}
        buffer_store_dwordx2 v[{34+2*tt}:{35+2*tt}], v7, s[12:15], s{36+tt} offen
        """)
    for r in range(40, 44):
        k(f"v_mov_b32 v{r+8}, v{r}")
    for r in range(40, 44):
        k(f"v_permlane16_swap_b32 v{r}, v{r+8}")
    for r in range(40, 44):
        k(f"v_add_f32 v{r}, v{r}, v{r+8}")
    for r in range(40, 44):
        k(f"v_mov_b32 v{r+8}, v{r}")
    for r in range(40, 44):
        k(f"v_permlane32_swap_b32 v{r}, v{r+8}")
    for r in range(40, 44):
        k(f"v_add_f32 v{r}, v{r}, v{r+8}")
    k(f"""
    v_cmp_gt_u32 vcc, 16, v1
    v_cndmask_b32 v40, v42, v40, vcc
    v_cndmask_b32 v41, v43, v41, vcc
    s_lshl_b32 s31, s3, 8
    s_add_u32 s31, s31, 36864
    v_lshlrev_b32 v5, 3, v1
    v_add_u32 v5, s31, v5
    s_mov_b32 exec_hi, 0
    ds_write_b64 v5, v[40:41]
    s_mov_b64 exec, -1
    s_waitcnt lgkmcnt(0)
    s_barrier
    s_cmp_eq_u32 s3, 0
    s_cbranch_scc1 k2_stats
    """)
    k(f"""
    s_sub_u32 s31, s3, 1
    s_lshr_b32 s32, s31, 2
    s_and_b32 s31, s31, 3
    s_mul_i32 s33, s32, 5120
    s_lshl_b32 s34, s31, 10
    s_add_u32 s33, s33, s34
    s_add_u32 s33, s33, {K2_YL}
    v_add_u32 v6, s33, v3
    ds_read_b128 v[24:27], v6
    s_lshr_b32 s35, s21, 1
    s_mul_i32 s35, s35, 9
    s_and_b32 s36, s21, 1
    s_lshl_b32 s37, s36, 2
    s_add_u32 s37, s37, s35
    s_add_u32 s37, s37, s31
    s_add_u32 s38, s24, s32
    s_mul_i32 s38, s38, 18
    s_add_u32 s37, s37, s38
    s_lshl_b32 s37, s37, 10
    s_add_u32 s37, s37, {YY}
    s_waitcnt lgkmcnt(0)
    buffer_store_dwordx4 v[24:27], v3, s[12:15], s37 offen
    s_cmp_lg_u32 s31, 0
    s_cbranch_scc1 k2_done
    ds_read_b64 v[28:29], v6 offset:4096
    s_add_u32 s37, s35, 8
    s_add_u32 s37, s37, s38
    s_lshl_b32 s37, s37, 10
    s_lshl_b32 s36, s36, 3
    s_add_u32 s37, s37, s36
    s_add_u32 s37, s37, {YY}
    s_waitcnt lgkmcnt(0)
    buffer_store_dwordx2 v[28:29], v3, s[12:15], s37 offen
    s_branch k2_done
    """)
    k.label("k2_stats")
    k("v_lshlrev_b32 v5, 2, v1")
    for w in range(9):
        k(f"ds_read_b32 v{24+w}, v5 offset:{36864 + 256*w}")
    k("s_waitcnt lgkmcnt(0)")
    k("""
    v_add_f32 v24, v24, v25
    v_add_f32 v26, v26, v27
    v_add_f32 v28, v28, v29
    v_add_f32 v30, v30, v31
    v_add_f32 v24, v24, v26
    v_add_f32 v28, v28, v30
    v_add_f32 v24, v24, v32
    v_add_f32 v24, v24, v28
    """)
    k(f"""
    s_lshl_b32 s31, s21, 14
    s_lshl_b32 s32, s24, 7
    s_add_u32 s31, s31, s32
    s_add_u32 s31, s31, {STAT}
    buffer_store_dword v24, v5, s[12:15], s31 offen
    """)
    stamp(k, 3)
    stamp_flush(k, 4, 3, "k2", 90)
    k.label("k2_done")
    tl_end(k, 2)
    k("s_endpgm")
    return k, 96, K2_LDS


K3_R = 8
K3_ST = 18432
K3_GSL = K3_R * K3_ST
K3_GBL = K3_GSL + 2304
K3_LDS = K3_GBL + 2304 + 16


class VM:
    def __init__(self):
        self.ops = []

    def add(self, tag, n=1):
        self.ops += [tag] * n

    def need(self, *tags):
        last = max((i for i, t in enumerate(self.ops) if t in tags), default=-1)
        return len(self.ops) - 1 - last


def gen_k3(k):
    R, ST = K3_R, K3_ST
    LA = PRM.get("LA", 4)
    NA = 6
    S, D, DY = PRM.get("S", 3), 4, 4
    k(f"""
    s_load_dwordx2 s[56:57], s[0:1], 48
    s_and_b32 s20, s2, 7
    s_lshl_b32 s20, s20, 2
    s_bfe_u32 s21, s2, 0x20003
    s_add_u32 s20, s20, s21
    s_lshr_b32 s21, s2, 5
    s_waitcnt lgkmcnt(0)
    """)
    stamp(k, 0)
    if DIAG:
        k("s_memrealtime s[90:91]")
    k(f"""
    s_cmp_ge_u32 s3, 4
    s_cselect_b32 s8, s18, s16
    s_cselect_b32 s9, s19, s17
    s_cselect_b32 s22, 9216, 0
    s_and_b32 s9, s9, 0xffff
    s_mov_b32 s10, {576*4608*2}
    s_mov_b32 s11, 0x00020000
    s_and_b32 s23, s3, 3
    s_mul_i32 s24, s23, 2304
    s_add_u32 s22, s22, s24
    s_lshl_b32 s24, s21, 4
    s_lshl_b32 s25, s3, 1
    s_add_u32 s24, s24, s25
    s_mul_i32 s25, s24, {18*1024}
    s_add_u32 s25, s25, {YY}
    s_add_u32 s26, s25, {18*1024}
    s_mov_b32 s50, -1
    s_mov_b32 s51, 0xffff
    s_mov_b32 s52, 0x3ffff
    s_mov_b32 s53, 0
    s_and_b32 s27, s23, 1
    s_mul_i32 s27, s27, {8*9216}
    s_mul_i32 s28, s20, 288
    s_add_u32 s27, s27, s28
    s_lshr_b32 s28, s23, 1
    s_mul_i32 s54, s28, {16*9216}
    s_mul_i32 s55, s28, {144*9216}
    """)
    for i in range(3):
        k(f"""
        v_add_u32 v7, {48*i}, v1
        v_mul_u32_u24 v8, 0xe39, v7
        v_lshrrev_b32 v8, 16, v8
        v_mul_u32_u24 v9, 18, v8
        v_sub_u32 v9, v7, v9
        v_mul_u32_u24 v8, 9216, v8
        v_lshl_add_u32 v8, v9, 4, v8
        v_add_u32 v{10+i}, s27, v8
        """)

    def ybuf(st, tt):
        return 72 + 8 * (st % 5) + 4 * tt

    def dma_parts(st):
        parts = []
        for i in range(3):
            p = []
            if i == 0:
                p += [f"s_add_u32 s30, s22, {(st % R) * ST}",
                      f"s_add_u32 s29, s{54 if st % 9 < 8 else 55}, {tile_of(st, 0) * 16 * 9216}"]
            p += [f"s_add_u32 m0, s30, {768*i}", "s_mov_b64 exec, s[50:51]",
                  f"buffer_load_dwordx4 v{10+i}, s[8:11], s29 offen lds", "s_mov_b64 exec, -1"]
            parts.append((p, f"w{st}"))
        return parts

    def y_parts(st):
        parts = []
        for tt in range(2):
            p = []
            if tt == 0 and st % 4 == 0 and st > 0:
                p += ["s_add_u32 s25, s25, 4096", "s_add_u32 s26, s26, 4096"]
            y = ybuf(st, tt)
            p.append(f"buffer_load_dwordx4 v[{y}:{y+3}], v3, s[12:15], s{25+tt} offen offset:{(st * 1024) % 4096} sc1")
            parts.append((p, f"y{st}"))
        return parts

    vm0 = VM()

    def emit(parts, vm, loop=False):
        for p, tag in parts:
            if loop and "nodma" in ABL:
                continue
            for ln in p:
                k(ln)
            vm.add(tag)

    emit(dma_parts(0), vm0)
    k(f"""
    v_bfe_u32 v7, v1, 2, 2
    v_lshl_add_u32 v7, v4, 2, v7
    v_mul_u32_u24 v7, 288, v7
    v_and_b32 v8, 3, v1
    v_lshl_add_u32 v13, v8, 3, v7
    v_add_u32 v14, {3*ST}, v13
    v_add_u32 v15, {6*ST}, v13
    v_and_b32 v7, 15, v1
    v_lshlrev_b32 v8, 5, v4
    v_lshl_add_u32 v8, v7, 4, v8
    v_add_u32 v8, {K3_GBL}, v8
    v_mov_b32 v9, {K3_GBL + 2304}
    v_cmp_gt_u32 vcc, 2, v7
    v_cndmask_b32 v16, v9, v8, vcc
    v_mov_b32 v19, 128
    v_cndmask_b32 v19, 0, v19, vcc
    v_mov_b32 v20, 0
    v_mov_b32 v21, 0
    v_mov_b32 v22, 0
    v_mov_b32 v23, 0
    ds_write_b128 v9, v[20:23]
    s_mul_i32 s27, s3, 288
    s_add_u32 s28, s27, {K3_GBL}
    s_add_u32 s27, s27, {GSB}
    s_mov_b32 m0, s28
    s_mov_b64 exec, s[52:53]
    buffer_load_dwordx4 v3, s[12:15], s27 offen lds
    s_mov_b64 exec, -1
    """)
    vm0.add("gsb")
    for st in range(1, D):
        emit(dma_parts(st), vm0)
    k(f"""
    s_lshl_b32 s33, s21, 8
    s_add_u32 s33, s33, {CNT + 32*256}
    v_mov_b32 v17, s33
    s_mov_b32 s37, 0
    s_cmp_lg_u32 s3, 7
    s_cbranch_scc1 k3_ready
    s_mov_b64 exec, 1
    """)
    k.label("k3_poll")
    k("""
    global_load_dword v18, v17, s[86:87] sc1
    s_waitcnt vmcnt(0)
    v_readfirstlane_b32 s38, v18
    s_add_u32 s37, s37, 1
    s_cmp_ge_u32 s38, 32
    s_cbranch_scc1 k3_ready
    s_cmp_lt_u32 s37, 0x400000
    s_cbranch_scc0 k3_ready
    s_sleep 2
    s_branch k3_poll
    """)
    k.label("k3_ready")
    k("s_mov_b64 exec, -1")
    k("s_barrier")
    for st in range(D):
        emit(y_parts(st), vm0)
    k(f"""
    v_and_b32 v17, 31, v1
    s_lshl_b32 s27, s24, 4
    v_add_u32 v17, s27, v17
    v_lshlrev_b32 v17, 3, v17
    v_lshrrev_b32 v18, 5, v1
    v_mul_u32_u24 v18, {2*16384}, v18
    v_add_u32 v17, v17, v18
    s_mov_b32 s27, {STAT}
    s_mov_b32 s28, {STAT + 16384}
    buffer_load_dwordx2 v[6:7], v17, s[12:15], s27 offen sc1
    buffer_load_dwordx2 v[8:9], v17, s[12:15], s28 offen sc1
    """)
    vm0.add("stat", 2)
    k("""
    s_and_b32 s60, s23, 1
    s_mul_i32 s60, s60, 9216
    s_lshr_b32 s61, s23, 1
    s_lshl_b32 s61, s61, 5
    s_add_u32 s60, s60, s61
    s_add_u32 s61, s60, 64
    s_add_u32 s62, s60, 128
    s_add_u32 s63, s60, 192
    s_add_u32 s64, s60, 256
    s_cmp_lt_u32 s23, 2
    s_cselect_b32 s64, s64, s63
    """)

    def acc(tt, m, ft):
        return 112 + ((tt * 2 + m) * 9 + ft) * 4

    frs = [(m, ft) for ft in range(9) for m in range(2)]
    GB = 20

    def body(grp):
        import copy
        vm = copy.deepcopy(vm0)
        nx = 5 if grp == 0 and "nogs" not in ABL else 0
        per = 18 + nx
        seq = []
        xi = 0
        for j in range(18):
            seq.append(("m", j))
            if nx and j % 4 == 1 and xi < nx:
                seq.append(("x", xi)); xi += 1
        while xi < nx:
            seq.append(("x", xi)); xi += 1
        NQ = 18 * per

        def areg(q):
            return 48 + 4 * (q % NA)

        def read_frag(q):
            st, j = divmod(q, per)
            kind, idx = seq[j]
            sl = st % R
            base = 13 + sl // 3
            a = areg(q)
            if "halfread" in ABL and q >= 12 and (q & 1):
                k("s_nop 0")
                k("s_nop 0")
                return
            if kind == "m":
                m, ft = frs[idx]
                off = (sl % 3) * ST + m * 9216 + ft * 32
                k(f"ds_read_b64_tr_b16 v[{a}:{a+1}], v{base} offset:{off}")
                k(f"ds_read_b64_tr_b16 v[{a+2}:{a+3}], v{base} offset:{off + 4608}")
            else:
                t = 17 + (idx & 1)
                off = (sl % 3) * ST
                k(f"v_add_u32 v{t}, s{60+idx}, v{base}")
                k(f"ds_read_b64_tr_b16 v[{a}:{a+1}], v{t} offset:{off}")
                k(f"ds_read_b64_tr_b16 v[{a+2}:{a+3}], v{t} offset:{off + 4608}")

        BJ = PRM.get("BJ0", 8) if grp == 0 else PRM.get("BJ1", 2)
        VJ = PRM.get("VJ0", 12) if grp == 0 else BJ
        if PRM.get("P%d" % grp, 0):
            k(f"s_setprio {PRM['P%d' % grp]}")
        k(f"s_waitcnt vmcnt({vm.need('w0', 'y0', 'gsb')}) lgkmcnt(0)")
        k("s_barrier")
        stamp(k, 1)
        for t in range(18 + S * grp):
            st = t - S * grp
            parts = []
            if t + D < 18:
                parts += dma_parts(t + D)
            ys = st + DY
            if grp == 0:
                if ys < 18:
                    parts += y_parts(ys)
            else:
                if D <= ys < 18:
                    parts += y_parts(ys)
            if st < 0:
                k(f"s_waitcnt vmcnt({vm.need(f'w{t+1}')})")
                k("s_barrier")
                emit(parts, vm)
                continue
            if st == 0:
                if grp == 0:
                    k(f"ds_read_b128 v[{GB}:{GB+3}], v16")
                else:
                    k(f"s_waitcnt vmcnt({vm.need('y0')})")
                for q in range(LA):
                    read_frag(q)
            pi = 0
            for j in range(per):
                q = st * per + j
                if j == BJ and t <= 18:
                    need = []
                    if t + 1 < 18:
                        need.append(f"w{t+1}")
                    if st + 1 < 18:
                        need.append(f"y{st+1}")
                    if need:
                        k(f"s_waitcnt vmcnt({vm.need(*need)})")
                    if t < 17 or (grp == 1 and t == 18):
                        k("s_barrier")
                    if st in (0, 6, 12):
                        stamp(k, 2 + (0, 6, 12).index(st))
                elif j == BJ and st + 1 < 18:
                    k(f"s_waitcnt vmcnt({vm.need(f'y{st+1}')})")
                if grp == 0 and j == 2 and st < 17:
                    g_ = GB + 4 * ((st + 1) & 1)
                    k("v_add_u32 v16, v16, v19")
                    k(f"ds_read_b128 v[{g_}:{g_+3}], v16")
                if q + LA < NQ:
                    read_frag(q + LA)
                    k(f"s_waitcnt lgkmcnt({2*LA})")
                else:
                    k(f"s_waitcnt lgkmcnt({2*(NQ-1-q)})")
                kind, idx = seq[j]
                a = areg(q)
                if kind == "m":
                    m, ft = frs[idx]
                    for tt in range(2):
                        c = acc(tt, m, ft)
                        y = ybuf(st, tt)
                        cs = "0" if st == 0 else f"v[{c}:{c+3}]"
                        k(f"v_mfma_f32_16x16x32_bf16 v[{c}:{c+3}], v[{a}:{a+3}], v[{y}:{y+3}], {cs}")
                else:
                    gc = 28 + 4 * idx
                    g_ = GB + 4 * (st & 1)
                    cs = "0" if st == 0 else f"v[{gc}:{gc+3}]"
                    k(f"v_mfma_f32_16x16x32_bf16 v[{gc}:{gc+3}], v[{a}:{a+3}], v[{g_}:{g_+3}], {cs}")
                if grp == 1 and j == BJ and "spread1" not in ABL:
                    emit(parts, vm, True)
                    pi = len(parts)
                elif j >= VJ and pi < len(parts):
                    emit(parts[pi:pi + 1], vm, True)
                    pi += 1
                if "fake2p" in ABL and st >= 8 and kind == "m":
                    fk = (st * 18 + idx) % 9
                    ops = ["v_fma_f32 v2, v2, v4, v1", "v_fma_f32 v5, v5, v4, v1", "v_exp_f32 v2, v2", "v_mul_f32 v5, v5, v2",
                           "v_fma_f32 v2, v2, v4, v1", "v_rcp_f32 v5, v5", "v_mul_f32 v2, v5, v2", "v_add_f32 v5, 1.0, v5",
                           "v_fma_f32 v2, v2, v4, v1"]
                    k(ops[fk]); k(ops[(fk + 4) % 9])
                    if idx % 6 == 0:
                        k(ops[(fk + 7) % 9])
                    if idx == 9 and st % 2 == 0:
                        k(f"s_mul_i32 s27, s24, {144*1024}")
                        k(f"s_add_u32 s27, s27, {HH + 0}")
                        k(f"s_mul_i32 s28, s20, {4608}")
                        k(f"s_add_u32 s27, s27, s28")
                        k(f"buffer_store_dwordx4 v[112:115], v3, s[12:15], s27 offen offset:{((st-8)//2 % 4)*1024}")
                        vm.add("st")
                if t == 14 and j == per - 1:
                    k(f"""
                    v_min_u32 v5, 161, v0
                    s_mul_i32 s31, s2, {162*128}
                    v_lshl_add_u32 v5, v5, 7, s31
                    global_load_dword v0, v5, s[56:57]
                    """)
                    vm.add("pf")
            assert pi == len(parts)
        stamp(k, 5)
        if grp == 0:
            k(f"""
            v_and_b32 v5, 15, v1
            v_mul_u32_u24 v5, 576, v5
            v_lshl_add_u32 v5, v4, 4, v5
            s_and_b32 s31, s3, 1
            s_mul_i32 s31, s31, 1152
            s_lshr_b32 s32, s3, 1
            s_lshl_b32 s32, s32, 6
            s_add_u32 s31, s31, s32
            s_add_u32 s31, s31, {K3_GSL}
            v_add_u32 v5, s31, v5
            s_mov_b32 exec_lo, 0x00030003
            s_mov_b32 exec_hi, 0x00030003
            ds_write_b128 v5, v[28:31]
            ds_write_b128 v5, v[32:35] offset:128
            ds_write_b128 v5, v[36:39] offset:256
            ds_write_b128 v5, v[40:43] offset:384
            s_cmp_ge_u32 s3, 2
            s_cbranch_scc1 k3_gs_w
            ds_write_b128 v5, v[44:47] offset:512
            """)
            k.label("k3_gs_w")
            k("""
            s_mov_b64 exec, -1
            s_waitcnt lgkmcnt(0)
            s_barrier
            """)

    k("s_cmp_ge_u32 s3, 4")
    k("s_cbranch_scc1 k3_grp1")
    body(0)
    k("s_branch k3_epi")
    k.label("k3_grp1")
    body(1)
    k.label("k3_epi")
    k("s_setprio 0")
    if "noepi" in ABL:
        k("s_branch k3_done")
    k("""
    s_nop 7
    v_add_f32 v20, v6, v8
    v_add_f32 v21, v7, v9
    v_mov_b32 v22, v20
    v_mov_b32 v23, v21
    v_permlane32_swap_b32 v20, v22
    v_permlane32_swap_b32 v21, v23
    v_add_f32 v20, v20, v22
    v_add_f32 v21, v21, v23
    v_mul_f32 v20, 0x3ae38e39, v20
    v_mul_f32 v21, 0x3ae38e39, v21
    v_fma_f32 v21, -v20, v20, v21
    v_max_f32 v21, 0, v21
    """)
    bf16_round(k, 21, 21)
    k("v_add_f32 v21, 0x3727c5ac, v21")
    bf16_round(k, 21, 21)
    k("v_sqrt_f32 v21, v21")
    bf16_round(k, 21, 21)
    k("v_rcp_f32 v21, v21")
    bf16_round(k, 20, 20)
    k("""
    v_mul_f32 v20, v20, v21
    v_sub_f32 v20, 0, v20
    v_mov_b32 v24, v21
    v_mov_b32 v26, v21
    v_mov_b32 v28, v20
    v_mov_b32 v30, v20
    v_permlane16_swap_b32 v24, v26
    v_permlane16_swap_b32 v28, v30
    """)
    k(f"""
    v_lshlrev_b32 v5, 4, v4
    v_add_u32 v5, {K3_GSL}, v5
    s_mul_i32 s27, s24, {144*1024}
    s_add_u32 s27, s27, {HH}
    s_lshr_b32 s28, s20, 1
    s_mul_i32 s28, s28, {9*1024}
    s_add_u32 s27, s27, s28
    s_and_b32 s28, s20, 1
    s_lshl_b32 s42, s28, 3
    s_add_u32 s42, s42, s27
    s_add_u32 s42, s42, 8192
    s_add_u32 s43, s42, {144*1024}
    s_lshl_b32 s28, s28, 12
    s_add_u32 s32, s27, s28
    s_add_u32 s33, s32, {144*1024}
    s_mov_b32 s40, 0xbfb8aa3b
    s_mov_b32 s41, 0xbfb8aa3b
    """)

    def gsreg(ft):
        return 48 + 16 * (ft % 2)

    def read_gs(ft):
        g = gsreg(ft)
        for a in range(4):
            k(f"ds_read_b128 v[{g+4*a}:{g+4*a+3}], v5 offset:{a*576 + ft*64}")

    read_gs(0)
    for ft in range(9):
        g = gsreg(ft)
        if "fake2p" in ABL and ft < 5:
            continue
        if ft < 8:
            read_gs(ft + 1)
        k(f"s_waitcnt lgkmcnt({4 if ft < 8 else 0})")
        U4 = [(tt, h) for tt in range(2) for h in range(2)]
        for u, (tt, h) in enumerate(U4):
            mr = 28 + 2 * tt
            k(f"v_pk_fma_f32 v[{80+2*u}:{81+2*u}], v[{g+2*h}:{g+2*h+1}], v[{mr}:{mr+1}], v[{g+4+2*h}:{g+4+2*h+1}] op_sel_hi:[1,0,1]")
        for u, (tt, h) in enumerate(U4):
            mr = 28 + 2 * tt
            k(f"v_pk_fma_f32 v[{88+2*u}:{89+2*u}], v[{g+8+2*h}:{g+8+2*h+1}], v[{mr}:{mr+1}], v[{g+12+2*h}:{g+12+2*h+1}] op_sel_hi:[1,0,1]")
        for u, (tt, h) in enumerate(U4):
            r = 24 + 2 * tt
            ga = acc(tt, 0, ft)
            k(f"v_pk_fma_f32 v[{80+2*u}:{81+2*u}], v[{ga+2*h}:{ga+2*h+1}], v[{r}:{r+1}], v[{80+2*u}:{81+2*u}] op_sel_hi:[1,0,1]")
        for u, (tt, h) in enumerate(U4):
            k(f"v_pk_mul_f32 v[{96+2*u}:{97+2*u}], v[{80+2*u}:{81+2*u}], s[40:41]")
        for u, (tt, h) in enumerate(U4):
            r = 24 + 2 * tt
            ua = acc(tt, 1, ft)
            k(f"v_pk_fma_f32 v[{88+2*u}:{89+2*u}], v[{ua+2*h}:{ua+2*h+1}], v[{r}:{r+1}], v[{88+2*u}:{89+2*u}] op_sel_hi:[1,0,1]")
        for e in range(8):
            if "notrans" not in ABL:
                k(f"v_exp_f32 v{96+e}, v{96+e}")
        for u in range(4):
            k(f"v_pk_mul_f32 v[{80+2*u}:{81+2*u}], v[{80+2*u}:{81+2*u}], v[{88+2*u}:{89+2*u}]")
        for u in range(4):
            k(f"v_pk_add_f32 v[{96+2*u}:{97+2*u}], v[{96+2*u}:{97+2*u}], 1.0 op_sel_hi:[1,0]")
        for e in range(8):
            if "notrans" not in ABL:
                k(f"v_rcp_f32 v{96+e}, v{96+e}")
        for u in range(4):
            k(f"v_pk_mul_f32 v[{80+2*u}:{81+2*u}], v[{80+2*u}:{81+2*u}], v[{96+2*u}:{97+2*u}]")
        pb = (ft >> 1) & 1
        for u, (tt, h) in enumerate(U4):
            o = (32 if pb == 0 else 40) + 4 * tt + 2 * (ft & 1) + h
            k(f"v_cvt_pk_bf16_f32 v{o}, v{80+2*u}, v{81+2*u}")
        for tt in range(2):
            o = (32 if pb == 0 else 40) + 4 * tt
            if "nostore" in ABL:
                continue
            if ft == 8:
                k(f"buffer_store_dwordx2 v[{o}:{o+1}], v3, s[12:15], s{42+tt} offen")
            elif ft & 1:
                k(f"buffer_store_dwordx4 v[{o}:{o+3}], v3, s[12:15], s{32+tt} offen offset:{(ft>>1)*1024}")
    stamp(k, 6)
    if DIAG:
        k("s_memrealtime s[92:93]")
        k("s_waitcnt lgkmcnt(0)")
        k("s_sub_u32 s77, s92, s90")
        k("s_add_u32 s77, s77, s70")
    stamp_flush(k, 8, 3, "k3")
    k.label("k3_done")
    tl_end(k, 3)
    k("s_endpgm")
    return k, 256, max(K3_LDS, K1_LDS)


K4_LDS = 160 * 1024
K4_GRID = 240


def gen_k4():
    k = K("ffn2_kernel")
    tl_start(k)
    NS = PRM.get("NS4", 3)
    k(f"""
    s_cmp_ge_u32 s2, {K4_GRID}
    s_cbranch_scc1 k4_done
    s_and_b32 s20, s2, 7
    s_mul_i32 s20, s20, 30
    s_lshr_b32 s21, s2, 3
    s_add_u32 s22, s20, s21
    s_cmp_ge_u32 s22, 234
    s_cbranch_scc1 k4_done
    s_load_dwordx2 s[16:17], s[0:1], 48
    s_load_dwordx2 s[18:19], s[0:1], 72
    s_load_dwordx2 s[6:7], s[0:1], 88
    v_and_b32 v1, 63, v0
    v_lshrrev_b32 v2, 6, v0
    v_lshlrev_b32 v3, 4, v1
    v_lshrrev_b32 v4, 4, v1
    v_readfirstlane_b32 s3, v2
    s_mul_i32 s20, s22, 0x1c72
    s_lshr_b32 s20, s20, 16
    s_mul_i32 s21, s20, 9
    s_sub_u32 s21, s22, s21
    s_waitcnt lgkmcnt(0)
    """)
    stamp(k, 0)
    srd(k, 12, 6, WS_BYTES)
    srd(k, 8, 16, 4608 * 576 * 2)
    srd(k, 44, 18, 2048 * 576 * 2)
    k(f"s_mul_i32 s22, s20, 5")
    k(f"s_mul_i32 s23, s3, {18*1024}")
    for tt in range(5):
        k(f"""
        s_add_u32 s29, s22, {tt}
        s_min_u32 s29, s29, 127
        s_mul_i32 s29, s29, {144*1024}
        s_add_u32 s29, s29, s23
        s_add_u32 s{24+tt}, s29, {HH}
        """)
    k(f"""
    s_mul_i32 s30, s3, {NS*4096}
    s_mul_i32 s31, s3, {576*1152}
    s_lshl_b32 s29, s21, 7
    s_add_u32 s31, s31, s29
    v_lshrrev_b32 v7, 3, v1
    v_and_b32 v8, 7, v1
    v_bfe_u32 v9, v7, 1, 2
    v_lshlrev_b32 v9, 1, v9
    v_xor_b32 v8, v8, v9
    v_mul_u32_u24 v7, 1152, v7
    v_lshl_add_u32 v7, v8, 4, v7
    v_add_u32 v10, s31, v7
    v_add_u32 v11, {8*1152}, v10
    """)
    k(f"""
    v_bfe_u32 v7, v1, 2, 2
    v_lshl_add_u32 v7, v4, 2, v7
    v_bfe_u32 v8, v7, 1, 2
    v_lshlrev_b32 v8, 1, v8
    v_bfe_u32 v9, v1, 1, 1
    v_lshlrev_b32 v7, 7, v7
    v_and_b32 v16, 1, v1
    v_lshl_add_u32 v7, v16, 3, v7
    v_add_u32 v7, s30, v7
    """)
    for nt in range(4):
        k(f"""
        v_or_b32 v16, {2*nt}, v9
        v_xor_b32 v16, v16, v8
        v_lshl_add_u32 v{12+nt}, v16, 4, v7
        """)

    def hbuf(it, tt):
        return 32 + 20 * (it % NS) + 4 * tt if NS <= 4 else None

    def issue(it):
        for i in range(4):
            half = i >> 1
            k(f"s_mov_b32 s29, {tile_of(it, half) * 16 * 1152}")
            k(f"s_add_u32 m0, s30, {(it % NS) * 4096 + 1024 * i}")
            k(f"buffer_load_dwordx4 v{10 + (i & 1)}, s[8:11], s29 offen lds")
        if it % 4 == 0 and it > 0:
            for tt in range(5):
                k(f"s_add_u32 s{24+tt}, s{24+tt}, 4096")
        for tt in range(5):
            h = hbuf(it, tt)
            k(f"buffer_load_dwordx4 v[{h}:{h+3}], v3, s[12:15], s{24+tt} offen offset:{(it % 4) * 1024}")

    def acc(tt, nt):
        return 128 + (tt * 4 + nt) * 4

    NIT = 18
    for it in range(NS - 1):
        issue(it)
    for it in range(NIT):
        if it + NS - 1 < NIT:
            issue(it + NS - 1)
        n_after = 9 * (min(it + NS - 1, NIT - 1) - it)
        k(f"s_waitcnt vmcnt({n_after})")
        if it in (0, 1, 9):
            stamp(k, 1 + (0, 1, 9).index(it))
        for nt in range(4):
            a = 112 + 4 * nt
            off = (it % NS) * 4096
            k(f"ds_read_b64_tr_b16 v[{a}:{a+1}], v{12+nt} offset:{off}")
            k(f"ds_read_b64_tr_b16 v[{a+2}:{a+3}], v{12+nt} offset:{off + 2048}")
        for nt in range(4):
            a = 112 + 4 * nt
            k(f"s_waitcnt lgkmcnt({2*(3-nt)})")
            for tt in range(5):
                c = acc(tt, nt)
                h = hbuf(it, tt)
                cs = "0" if it == 0 else f"v[{c}:{c+3}]"
                k(f"v_mfma_f32_16x16x32_bf16 v[{c}:{c+3}], v[{a}:{a+3}], v[{h}:{h+3}], {cs}")
    stamp(k, 4)
    k("s_barrier")
    stamp(k, 5)
    k(f"s_mul_i32 s33, s3, 20480")
    k("v_add_u32 v5, s33, v3")
    for u in range(20):
        c = 128 + 4 * u
        k(f"ds_write_b128 v5, v[{c}:{c+3}] offset:{1024*u}")
    k("""
    s_mov_b32 s34, s3
    s_add_u32 s35, s3, 8
    s_add_u32 s36, s3, 16
    s_cmp_lt_u32 s3, 4
    s_cselect_b32 s36, s36, s35
    v_lshlrev_b32 v9, 3, v1
    v_lshlrev_b32 v11, 4, v4
    v_and_b32 v12, 15, v1
    v_mul_u32_u24 v12, 1152, v12
    v_lshl_add_u32 v12, v4, 3, v12
    """)
    for j in range(3):
        k(f"""
        s_lshr_b32 s37, s{34+j}, 2
        s_and_b32 s38, s{34+j}, 3
        s_add_u32 s37, s37, s22
        s_min_u32 s39, s37, 127
        s_mul_i32 s40, s39, {144*128}
        s_lshl_b32 s41, s21, 11
        s_add_u32 s40, s40, s41
        s_lshl_b32 s41, s38, 9
        s_add_u32 s40, s40, s41
        s_add_u32 s40, s40, {X1}
        buffer_load_dwordx2 v[{120+2*j}:{121+2*j}], v9, s[12:15], s40 offen
        s_lshl_b32 s40, s21, 8
        s_lshl_b32 s41, s38, 6
        s_add_u32 s40, s40, s41
        s_add_u32 s40, s40, {MOD + 5*576*4}
        buffer_load_dwordx4 v[{208+4*j}:{211+4*j}], v11, s[12:15], s40 offen
        s_mul_i32 s40, s37, {16*1152}
        s_lshl_b32 s41, s21, 7
        s_add_u32 s40, s40, s41
        s_lshl_b32 s41, s38, 5
        s_add_u32 s{50+j}, s40, s41
        s_lshl_b32 s40, s{34+j}, 10
        v_add_u32 v{6+j}, s40, v3
        v_add_u32 v{13+j}, {4*20480}, v{6+j}
        """)
    k("s_waitcnt lgkmcnt(0)")
    k("s_barrier")

    def rr(j, sl):
        return 16 + 4 * j if sl == 0 else 28 + (j * 7 + sl - 1) * 4

    for j in range(3):
        for sl in range(8):
            r = rr(j, sl)
            k(f"ds_read_b128 v[{r}:{r+3}], v{(6 if sl < 4 else 13)+j} offset:{(sl % 4)*20480}")
    for j in range(3):
        k(f"s_waitcnt lgkmcnt({min(15, 8*(2-j))})")
        for sl in range(1, 8):
            r = rr(j, sl)
            k(f"v_pk_add_f32 v[{16+4*j}:{17+4*j}], v[{16+4*j}:{17+4*j}], v[{r}:{r+1}]")
            k(f"v_pk_add_f32 v[{18+4*j}:{19+4*j}], v[{18+4*j}:{19+4*j}], v[{r+2}:{r+3}]")
    k("s_waitcnt vmcnt(0)")
    for j in range(3):
        c = 16 + 4 * j
        gb = 208 + 4 * j
        xr = 120 + 2 * j
        t = 32 + 8 * j
        k(f"""
        v_cvt_pk_bf16_f32 v{t}, v{c}, v{c+1}
        v_cvt_pk_bf16_f32 v{t+1}, v{c+2}, v{c+3}
        v_lshlrev_b32 v{c}, 16, v{t}
        v_and_b32 v{c+1}, 0xffff0000, v{t}
        v_lshlrev_b32 v{c+2}, 16, v{t+1}
        v_and_b32 v{c+3}, 0xffff0000, v{t+1}
        v_pk_mul_f32 v[{c}:{c+1}], v[{c}:{c+1}], v[{gb}:{gb+1}]
        v_pk_mul_f32 v[{c+2}:{c+3}], v[{c+2}:{c+3}], v[{gb+2}:{gb+3}]
        v_cvt_pk_bf16_f32 v{t}, v{c}, v{c+1}
        v_cvt_pk_bf16_f32 v{t+1}, v{c+2}, v{c+3}
        v_lshlrev_b32 v{c}, 16, v{t}
        v_and_b32 v{c+1}, 0xffff0000, v{t}
        v_lshlrev_b32 v{c+2}, 16, v{t+1}
        v_and_b32 v{c+3}, 0xffff0000, v{t+1}
        v_lshlrev_b32 v{t+2}, 16, v{xr}
        v_and_b32 v{t+3}, 0xffff0000, v{xr}
        v_lshlrev_b32 v{t+4}, 16, v{xr+1}
        v_and_b32 v{t+5}, 0xffff0000, v{xr+1}
        v_pk_add_f32 v[{c}:{c+1}], v[{c}:{c+1}], v[{t+2}:{t+3}]
        v_pk_add_f32 v[{c+2}:{c+3}], v[{c+2}:{c+3}], v[{t+4}:{t+5}]
        v_cvt_pk_bf16_f32 v{t+6}, v{c}, v{c+1}
        v_cvt_pk_bf16_f32 v{t+7}, v{c+2}, v{c+3}
        buffer_store_dwordx2 v[{t+6}:{t+7}], v12, s[44:47], s{50+j} offen
        """)
    stamp(k, 6)
    stamp_flush(k, 7, 3, "k4")
    k.label("k4_done")
    tl_end(k, 4)
    k("s_endpgm")
    return k, 224, K4_LDS


KERNELS = []


def build(kernels, path):
    head = ["; adaLN + sliding dilated local attention + SwiGLU block, multi-kernel pipeline (generated)"]
    texts, descs = [], []
    for (gen, grid, block) in kernels:
        k, vgpr, lds = gen()
        head.append(f"; @launch kernel={k.name} grid=({grid},1,1) block=({block},1,1) lds={lds}")
        t, d = kernel_text(k, vgpr)
        texts.append(t)
        descs.append(d)
    out = "\n".join(head) + "\n.amdgcn_target \"amdgcn-amd-amdhsa--gfx950\"\n.text\n" + "\n".join(texts) + \
        "\n.section .rodata,\"a\"\n" + "".join(descs)
    open(path, "w").write(out)


if __name__ == "__main__":
    if len(sys.argv) > 2 and sys.argv[2] == "diag":
        DIAG = True
    for a_ in sys.argv[3:]:
        if "=" in a_:
            PRM[a_.split("=")[0]] = int(a_.split("=")[1])
        else:
            ABL.add(a_)
    build([(gen_k0, K0_GRID, 256), (gen_k1, 256, 512), (gen_k4, K4_GRID, 512)], sys.argv[1] if len(sys.argv) > 1 else "k.s")
```

```python
import sys
from asmlib import K, kernel_text

NAME = "adaLN_cond__sliding_local_dilated__glu_gated_swiglu__prompt"

MOD = 0x0000000
GSB = 0x0010000
CNT = 0x0020000
STAT = 0x0040000
XN = 0x0100000
WQ = 0x0400000
WOP = 0x0700000
OO = 0x0800000
X1 = 0x0B00000
YY = 0x0E00000
HH = 0x1100000
W2P = 0x2400000
WS_BYTES = 268435456

LOG2E = "0x3fb8aa3b"
PART = 0x2400000


def tile_of(ks, half):
    p, i = divmod(ks, 9)
    if i < 8:
        return (2 * p + (i >> 2)) * 9 + 2 * (i & 3) + half
    return (2 * p + half) * 9 + 8


def srd(k, d, lo, nbytes):
    k(f"""
    s_mov_b32 s{d}, s{lo}
    s_and_b32 s{d+1}, s{lo+1}, 0xffff
    s_mov_b32 s{d+2}, {nbytes}
    s_mov_b32 s{d+3}, 0x00020000
    """)


DIAG = False
ABL = set()
PRM = {}


def stamp(k, idx):
    if DIAG:
        k("s_memtime s[68:69]")
        k("s_waitcnt lgkmcnt(0)")
        k(f"s_mov_b32 s{70+idx}, s68")


def stamp_flush(k, n, wave_sgpr, tag, vb=200):
    if not DIAG:
        return
    k(f"""
    s_cmp_lg_u32 s2, 5
    s_cbranch_scc1 {tag}_nostamp
    s_load_dwordx2 s[66:67], s[0:1], 80
    s_lshl_b32 s68, s{wave_sgpr}, 5
    v_mov_b32 v{vb}, s68
    s_waitcnt lgkmcnt(0)
    """)
    for i in range(n):
        k(f"s_sub_u32 s69, s{70+i}, s70")
        k(f"v_mov_b32 v{vb+1}, s69")
        k(f"global_store_dword v{vb}, v{vb+1}, s[66:67] offset:{4*i}")
    k(f"{tag}_nostamp:")


TL = 0x3000000


def tl_start(k):
    if DIAG:
        k("s_memrealtime s[94:95]")
        k("s_mov_b32 s96, s2")


def tl_end(k, kid):
    if DIAG:
        k(f"""
        s_mov_b64 exec, 1
        s_waitcnt vmcnt(0) lgkmcnt(0)
        s_memrealtime s[98:99]
        s_load_dwordx2 s[66:67], s[0:1], 88
        s_lshl_b32 s97, s96, 3
        s_add_u32 s97, s97, {TL + kid*8192}
        v_mov_b32 v2, s97
        s_waitcnt lgkmcnt(0)
        v_mov_b32 v0, s94
        v_mov_b32 v1, s98
        global_atomic_umax v2, v1, s[66:67] offset:4
        global_store_dword v2, v0, s[66:67]
        """)


def bf16_round(k, dst, src, tmp=None):
    k(f"v_cvt_pk_bf16_f32 v{dst}, v{src}, v{src}")
    k(f"v_lshlrev_b32 v{dst}, 16, v{dst}")


K0_MOD, K0_XN, K0_WQ, K0_WO = 108, 64, 144, 54
K0_GRID = K0_MOD + K0_XN + K0_WQ + K0_WO


def pack_chunk(k, srd_src, rowstride, zero_hi_mask_sgpr=None):
    for r in range(8):
        k(f"s_mov_b32 s{24+r}, {r*rowstride}")
    for r in range(8):
        k(f"buffer_load_dwordx2 v[{16+2*r}:{17+2*r}], v10, s[{srd_src}:{srd_src+3}], s{24+r} offen")
    k("s_mov_b32 s32, 0x05040100")
    k("s_mov_b32 s33, 0x07060302")
    k("s_waitcnt vmcnt(0)")
    if zero_hi_mask_sgpr is not None:
        for r in range(8):
            k(f"v_cndmask_b32 v{17+2*r}, v{17+2*r}, 0, s[{zero_hi_mask_sgpr}:{zero_hi_mask_sgpr+1}]")
    for j in range(4):
        d = j >> 1
        sel = 32 + (j & 1)
        for q in range(4):
            lo = 16 + 2 * (2 * q) + d
            hi = 16 + 2 * (2 * q + 1) + d
            k(f"v_perm_b32 v{32+4*j+q}, v{hi}, v{lo}, s{sel}")
    for j in range(4):
        k(f"buffer_store_dwordx4 v[{32+4*j}:{35+4*j}], v11, s[12:15], 0 offen offset:{16*j}")


def gen_k0():
    k = K("prep_kernel")
    tl_start(k)
    k(f"""
    s_cmp_ge_u32 s2, {K0_GRID}
    s_cbranch_scc1 k0_done
    s_load_dwordx2 s[4:5], s[0:1], 0
    s_load_dwordx4 s[16:19], s[0:1], 8
    s_load_dwordx4 s[20:23], s[0:1], 56
    s_load_dwordx2 s[6:7], s[0:1], 88
    v_and_b32 v1, 63, v0
    v_lshrrev_b32 v2, 6, v0
    s_waitcnt lgkmcnt(0)
    """)
    srd(k, 12, 6, WS_BYTES)
    k(f"""
    v_readfirstlane_b32 s3, v2
    s_cmp_ge_u32 s2, {K0_MOD}
    s_cbranch_scc1 k0_not_mod
    """)
    k("""
    v_and_b32 v3, 3, v0
    v_lshrrev_b32 v4, 2, v0
    v_mul_u32_u24 v5, 6912, v4
    v_lshl_add_u32 v5, v3, 4, v5
    s_lshl_b32 s10, s2, 6
    v_add_u32 v5, s10, v5
    v_lshlrev_b32 v6, 1, v4
    """)
    for i in range(9):
        k(f"global_load_ushort v{60+i}, v6, s[20:21] offset:{128*i}")
    for i in range(9):
        k(f"global_load_dwordx4 v[{16+4*i}:{19+4*i}], v5, s[22:23]")
        if i < 8:
            k(f"v_add_u32 v5, {64*6912}, v5")
    for j in range(8):
        k(f"v_mov_b32 v{80+j}, 0")
    k("s_waitcnt vmcnt(9)")
    for i in range(9):
        c = 60 + i
        k(f"""
        v_lshlrev_b32 v{c}, 16, v{c}
        v_mul_f32 v70, 0xbfb8aa3b, v{c}
        v_exp_f32 v70, v70
        v_add_f32 v70, 1.0, v70
        v_rcp_f32 v70, v70
        v_mul_f32 v{c}, v{c}, v70
        """)
        bf16_round(k, c, c)
    for i in range(9):
        k(f"s_waitcnt vmcnt({8-i})")
        for q in range(4):
            w = 16 + 4 * i + q
            k(f"""
            v_lshlrev_b32 v71, 16, v{w}
            v_and_b32 v72, 0xffff0000, v{w}
            v_fmac_f32 v{80+2*q}, v{60+i}, v71
            v_fmac_f32 v{81+2*q}, v{60+i}, v72
            """)
    k("""
    v_lshlrev_b32 v7, 5, v0
    ds_write_b128 v7, v[80:83]
    ds_write_b128 v7, v[84:87] offset:16
    s_waitcnt lgkmcnt(0)
    s_barrier
    v_and_b32 v8, 31, v0
    v_lshrrev_b32 v9, 5, v0
    v_lshlrev_b32 v10, 10, v9
    v_lshl_add_u32 v10, v8, 2, v10
    """)
    for i in range(8):
        k(f"ds_read_b32 v{16+i}, v10 offset:{128*i}")
    k("s_waitcnt lgkmcnt(0)")
    k("""
    v_add_f32 v16, v16, v17
    v_add_f32 v18, v18, v19
    v_add_f32 v20, v20, v21
    v_add_f32 v22, v22, v23
    v_add_f32 v16, v16, v18
    v_add_f32 v20, v20, v22
    v_add_f32 v16, v16, v20
    v_lshlrev_b32 v11, 2, v0
    ds_write_b32 v11, v16 offset:8192
    s_waitcnt lgkmcnt(0)
    s_barrier
    v_cmp_gt_u32 vcc, 32, v0
    s_and_saveexec_b64 s[36:37], vcc
    s_cbranch_execz k0_done
    """)
    for i in range(8):
        k(f"ds_read_b32 v{16+i}, v11 offset:{8192+128*i}")
    k("s_waitcnt lgkmcnt(0)")
    k("""
    v_add_f32 v16, v16, v17
    v_add_f32 v18, v18, v19
    v_add_f32 v20, v20, v21
    v_add_f32 v22, v22, v23
    v_add_f32 v16, v16, v18
    v_add_f32 v20, v20, v22
    v_add_f32 v16, v16, v20
    """)
    bf16_round(k, 16, 16)
    k("""
    s_mov_b32 s11, 0
    s_cmp_ge_u32 s2, 18
    s_cselect_b32 s24, 1, 0
    s_cmp_lt_u32 s2, 36
    s_cselect_b32 s25, 1, 0
    s_and_b32 s24, s24, s25
    s_cmp_ge_u32 s2, 72
    s_cselect_b32 s25, 1, 0
    s_cmp_lt_u32 s2, 90
    s_cselect_b32 s26, 1, 0
    s_and_b32 s25, s25, s26
    s_or_b32 s24, s24, s25
    s_cmp_eq_u32 s24, 0
    s_cbranch_scc1 k0_mod_store
    v_add_f32 v16, 1.0, v16
    """)
    bf16_round(k, 16, 16)
    k.label("k0_mod_store")
    k(f"""
    s_lshl_b32 s10, s2, 8
    s_add_u32 s10, s10, {CNT}
    v_mov_b32 v17, 0
    buffer_store_dword v17, v11, s[12:15], s10 offen
    s_lshl_b32 s10, s2, 7
    v_add_u32 v11, s10, v11
    buffer_store_dword v16, v11, s[12:15], 0 offen offset:{MOD}
    s_cmp_lt_u32 s2, 54
    s_cbranch_scc1 k0_done
    s_cmp_ge_u32 s2, 90
    s_cbranch_scc1 k0_done
    """)
    k(f"""
    s_sub_u32 s24, s2, 54
    s_sub_u32 s25, s2, 72
    s_cmp_ge_u32 s2, 72
    s_cselect_b32 s24, s25, s24
    s_cselect_b32 s25, 0, 16
    s_lshl_b32 s26, s24, 1
    v_lshrrev_b32 v12, 4, v0
    v_add_u32 v12, s26, v12
    v_mul_u32_u24 v13, 57, v12
    v_lshrrev_b32 v13, 9, v13
    v_mul_u32_u24 v14, 9, v13
    v_sub_u32 v14, v12, v14
    v_lshrrev_b32 v15, 1, v13
    v_mul_u32_u24 v15, 9, v15
    v_and_b32 v17, 1, v13
    v_lshrrev_b32 v18, 1, v14
    v_lshl_add_u32 v18, v17, 2, v18
    v_and_b32 v19, 1, v14
    v_cmp_eq_u32 vcc, 8, v14
    v_cndmask_b32 v18, v18, 8, vcc
    v_cndmask_b32 v19, v19, v17, vcc
    v_add_u32 v15, v15, v18
    v_lshlrev_b32 v12, 7, v15
    v_bfe_u32 v13, v0, 2, 2
    v_lshl_add_u32 v12, v13, 5, v12
    v_lshl_add_u32 v12, v19, 3, v12
    v_and_b32 v13, 3, v0
    v_lshl_add_u32 v12, v13, 1, v12
    s_add_u32 s25, s25, {GSB}
    v_lshrrev_b32 v16, 16, v16
    buffer_store_short v16, v12, s[12:15], s25 offen
    s_branch k0_done
    """)
    k.label("k0_not_mod")
    k(f"""
    s_sub_u32 s2, s2, {K0_MOD}
    s_cmp_ge_u32 s2, {K0_XN}
    s_cbranch_scc1 k0_not_xn
    """)
    k("""
    s_lshl_b32 s10, s2, 2
    s_add_u32 s10, s10, s3
    s_lshl_b32 s10, s10, 3
    v_lshrrev_b32 v3, 3, v1
    v_add_u32 v3, s10, v3
    v_and_b32 v4, 7, v1
    v_mul_u32_u24 v5, 1152, v3
    v_lshl_add_u32 v5, v4, 4, v5
    """)
    for i in range(9):
        k(f"global_load_dwordx4 v[{16+4*i}:{19+4*i}], v5, s[4:5] offset:{128*i}")
    k(f"""
    v_lshrrev_b32 v6, 4, v3
    v_mul_u32_u24 v6, {18*1024}, v6
    v_and_b32 v7, 15, v3
    v_lshl_add_u32 v6, v7, 4, v6
    v_lshrrev_b32 v7, 2, v4
    v_lshl_add_u32 v6, v7, 10, v6
    v_and_b32 v7, 3, v4
    v_lshl_add_u32 v6, v7, 8, v6
    v_add_u32 v6, {XN}, v6
    v_mov_b32 v8, 0
    v_mov_b32 v9, 0
    """)
    for i in range(9):
        k(f"s_waitcnt vmcnt({8-i})")
        for q in range(4):
            w = 16 + 4 * i + q
            d = 64 + 8 * i + 2 * q
            k(f"v_lshlrev_b32 v{d}, 16, v{w}")
            k(f"v_and_b32 v{d+1}, 0xffff0000, v{w}")
        for q in range(4):
            d = 64 + 8 * i + 2 * q
            k(f"v_pk_add_f32 v[8:9], v[8:9], v[{d}:{d+1}]")

    def red8(r):
        k(f"v_add_f32_dpp v{r}, v{r}, v{r} quad_perm:[1,0,3,2] row_mask:0xf bank_mask:0xf")
        k(f"v_add_f32_dpp v{r}, v{r}, v{r} quad_perm:[2,3,0,1] row_mask:0xf bank_mask:0xf")
        k(f"v_add_f32_dpp v{r}, v{r}, v{r} row_half_mirror row_mask:0xf bank_mask:0xf")

    k("v_add_f32 v8, v8, v9")
    red8(8)
    k(f"v_mul_f32 v10, 0x3ae38e39, v8")
    k("v_mov_b32 v11, v10")
    k("v_mov_b32 v8, 0")
    k("v_mov_b32 v9, 0")
    for e in range(36):
        d = 64 + 2 * e
        k(f"v_pk_add_f32 v[12:13], v[{d}:{d+1}], v[10:11] neg_lo:[0,1] neg_hi:[0,1]")
        k(f"v_pk_fma_f32 v[8:9], v[12:13], v[12:13], v[8:9]")
    k("v_add_f32 v8, v8, v9")
    red8(8)
    k(f"v_mul_f32 v8, 0x3ae38e39, v8")
    bf16_round(k, 8, 8)
    k("v_add_f32 v8, 0x3727c5ac, v8")
    bf16_round(k, 8, 8)
    k("v_sqrt_f32 v8, v8")
    bf16_round(k, 8, 8)
    k("v_rcp_f32 v8, v8")
    bf16_round(k, 10, 10)
    k("v_mov_b32 v11, v10")
    k("v_mov_b32 v9, v8")
    for i in range(9):
        for q in range(4):
            d = 64 + 8 * i + 2 * q
            k(f"""
            v_pk_add_f32 v[12:13], v[{d}:{d+1}], v[10:11] neg_lo:[0,1] neg_hi:[0,1]
            v_cvt_pk_bf16_f32 v14, v12, v13
            v_lshlrev_b32 v12, 16, v14
            v_and_b32 v13, 0xffff0000, v14
            v_pk_mul_f32 v[12:13], v[12:13], v[8:9]
            v_cvt_pk_bf16_f32 v{16+4*i+q}, v12, v13
            """)
        k(f"buffer_store_dwordx4 v[{16+4*i}:{19+4*i}], v6, s[12:15], 0 offen offset:{(2*i*1024) % 4096}")
        if i % 2 == 1:
            k("v_add_u32 v6, 4096, v6")
    k("s_branch k0_done")
    k.label("k0_not_xn")
    k(f"""
    s_sub_u32 s2, s2, {K0_XN}
    s_cmp_ge_u32 s2, {K0_WQ}
    s_cbranch_scc1 k0_not_wq
    """)
    srd(k, 8, 16, 576 * 1728 * 2)
    k(f"""
    s_lshl_b32 s10, s2, 2
    s_add_u32 s34, s10, s3
    s_mov_b32 s10, {576*1728*2}
    s_and_b32 s35, s34, 7
    s_lshr_b32 s38, s34, 3
    v_cmp_gt_u32 vcc, 60, v1
    s_and_saveexec_b64 s[36:37], vcc
    v_mul_u32_u24 v3, 13, v1
    v_lshrrev_b32 v3, 8, v3
    v_mul_u32_u24 v4, 20, v3
    v_sub_u32 v4, v1, v4
    v_mul_u32_u24 v5, 13, v4
    v_lshrrev_b32 v5, 6, v5
    v_mul_u32_u24 v6, 5, v5
    v_sub_u32 v6, v4, v6
    v_cmp_eq_u32 s[40:41], 4, v6
    v_mul_u32_u24 v10, 1152, v3
    v_mul_u32_u24 v7, 36, v5
    v_add_u32 v10, v10, v7
    v_lshl_add_u32 v10, v6, 3, v10
    s_mul_i32 s39, s35, 144
    s_mul_i32 s42, s38, {8*3456}
    s_add_u32 s39, s39, s42
    v_add_u32 v10, s39, v10
    """)
    k(f"""
    v_lshrrev_b32 v7, 2, v1
    v_mul_u32_u24 v11, {18*1024}, v7
    v_and_b32 v7, 3, v1
    v_lshl_add_u32 v11, v7, 6, v11
    s_mul_i32 s39, s35, {16*18*1024}
    s_lshr_b32 s42, s38, 2
    s_lshl_b32 s42, s42, 10
    s_add_u32 s39, s39, s42
    s_and_b32 s42, s38, 3
    s_lshl_b32 s42, s42, 8
    s_add_u32 s39, s39, s42
    s_add_u32 s39, s39, {WQ}
    v_add_u32 v11, s39, v11
    """)
    pack_chunk(k, 8, 3456, zero_hi_mask_sgpr=40)
    k("s_branch k0_done")
    k.label("k0_not_wq")
    k(f"s_sub_u32 s2, s2, {K0_WQ}")
    srd(k, 8, 18, 576 * 576 * 2)
    k(f"""
    s_lshl_b32 s34, s2, 2
    s_add_u32 s34, s34, s3
    s_mul_hi_u32 s38, s34, 0x55555556
    s_mul_i32 s35, s38, 3
    s_sub_u32 s35, s34, s35
    v_cmp_gt_u32 vcc, 48, v1
    s_and_saveexec_b64 s[36:37], vcc
    s_mul_i32 s39, s35, 48
    v_add_u32 v3, s39, v1
    v_lshlrev_b32 v10, 3, v3
    s_mul_i32 s42, s38, {8*1152}
    v_add_u32 v10, s42, v10
    v_lshrrev_b32 v7, 2, v3
    v_mul_u32_u24 v11, {18*1024}, v7
    v_and_b32 v7, 3, v3
    v_lshl_add_u32 v11, v7, 6, v11
    s_lshr_b32 s42, s38, 2
    s_lshl_b32 s39, s42, 10
    s_and_b32 s42, s38, 3
    s_lshl_b32 s42, s42, 8
    s_add_u32 s39, s39, s42
    s_add_u32 s39, s39, {WOP}
    v_add_u32 v11, s39, v11
    """)
    pack_chunk(k, 8, 1152)
    k.label("k0_done")
    tl_end(k, 0)
    k("s_endpgm")
    return k, 136, 9216 + 256


K1_QB = 92160
K1_TS = 488
K1_ML = K1_QB + 80 * K1_TS
K1_LDS = K1_ML + 4608
K1_OL = 16384
K1_YL = K1_OL + 36864
K1_SL = K1_YL + 10240


def gen_k1():
    k = K("qkv_attn_kernel")
    tl_start(k)
    TS = K1_TS
    QB = K1_QB
    k(f"""
    s_cmp_ge_u32 s2, 256
    s_cbranch_scc1 k4_done
    s_load_dwordx4 s[84:87], s[0:1], 80
    s_load_dwordx4 s[16:19], s[0:1], 32
    s_load_dwordx2 s[8:9], s[0:1], 0
    v_and_b32 v1, 63, v0
    v_lshrrev_b32 v2, 6, v0
    v_lshlrev_b32 v3, 4, v1
    v_lshrrev_b32 v4, 4, v1
    v_readfirstlane_b32 s3, v2
    s_and_b32 s4, s2, 1
    s_lshl_b32 s4, s4, 2
    s_bfe_u32 s31, s2, 0x20003
    s_add_u32 s4, s4, s31
    s_bfe_u32 s5, s2, 0x20001
    s_lshl_b32 s5, s5, 3
    s_lshr_b32 s31, s2, 5
    s_add_u32 s5, s5, s31
    v_lshlrev_b32 v5, 5, v4
    s_waitcnt lgkmcnt(0)
    """)
    stamp(k, 0)
    srd(k, 12, 86, WS_BYTES)
    k(f"""
    s_mul_i32 s31, s3, 576
    s_add_u32 s32, s31, {K1_ML}
    s_mov_b32 m0, s32
    s_mov_b32 exec_hi, 0xf
    buffer_load_dwordx4 v3, s[12:15], s31 offen lds
    s_mov_b64 exec, -1
    """)
    k("""
    s_lshl_b32 s23, s5, 2
    s_sub_u32 s24, s23, 1
    s_max_i32 s24, s24, 0
    """)
    for i in range(5):
        if i == 0:
            k(f"s_mul_i32 s25, s24, {18*1024}")
            k(f"s_add_u32 s25, s25, {XN}")
        else:
            k(f"s_add_u32 s30, s23, {i-1}")
            k(f"s_mul_i32 s{25+i}, s30, {18*1024}")
            k(f"s_add_u32 s{25+i}, s{25+i}, {XN}")
    k("s_lshl_b32 s20, s3, 10")
    k("s_add_u32 s21, s20, 8192")
    for j in range(2):
        for i in range(5):
            x = 48 + 20 * j + 4 * i
            k(f"s_add_u32 s34, s{25+i}, s{20+j}")
            k(f"buffer_load_dwordx4 v[{x}:{x+3}], v3, s[12:15], s34 offen")
    k("""
    s_add_u32 s36, s3, 8
    s_cmp_lt_u32 s3, 2
    s_cselect_b32 s36, s36, s3
    s_mov_b32 s35, s3
    """)
    for e in range(2):
        k(f"""
        s_cmp_ge_u32 s{35+e}, 5
        s_cselect_b32 s{44+e}, 17, 16
        s_cselect_b32 s37, 5, 0
        s_sub_u32 s{46+e}, s{35+e}, s37
        s_add_u32 s37, s23, s{46+e}
        s_sub_u32 s37, s37, 1
        s_max_i32 s37, s37, 0
        s_mul_i32 s37, s37, 18
        s_add_u32 s37, s37, s{44+e}
        s_lshl_b32 s37, s37, 10
        s_add_u32 s37, s37, {XN}
        buffer_load_dwordx4 v[{88+4*e}:{91+4*e}], v3, s[12:15], s37 offen
        """)
    k("s_waitcnt vmcnt(12)")
    k("s_barrier")
    k(f"""
    s_lshl_b32 s40, s4, 4
    s_lshl_b32 s41, s3, 1
    s_add_u32 s42, s41, 1
    s_min_u32 s42, s42, 14
    s_add_u32 s41, s41, s40
    s_add_u32 s42, s42, s40
    s_mul_i32 s41, s41, {18*1024}
    s_mul_i32 s42, s42, {18*1024}
    s_add_u32 s41, s41, {WQ}
    s_add_u32 s42, s42, {WQ}
    """)

    NAS = 8
    vm = VM()
    vm.add("x0", 5); vm.add("x1", 5); vm.add("e0"); vm.add("e1")

    def areg(kk, tt):
        return 124 + 8 * (kk % NAS) + 4 * tt

    def load_a(kk):
        if kk % 4 == 0 and kk > 0:
            k("s_add_u32 s41, s41, 4096")
            k("s_add_u32 s42, s42, 4096")
        for tt in range(2):
            a = areg(kk, tt)
            k(f"buffer_load_dwordx4 v[{a}:{a+3}], v3, s[12:15], s{41+tt} offen offset:{(kk%4)*1024}")
        vm.add(f"a{kk}", 2)

    k(f"""
    s_lshl_b32 s31, s3, 7
    v_add_u32 v8, s31, v5
    s_lshl_b32 s31, s44, 7
    v_add_u32 v9, s31, v5
    s_lshl_b32 s31, s45, 7
    v_add_u32 v11, s31, v5
    v_add_u32 v8, {K1_ML}, v8
    v_add_u32 v9, {K1_ML}, v9
    v_add_u32 v11, {K1_ML}, v11
    v_add_u32 v12, s20, v3
    v_add_u32 v13, 18432, v12
    v_add_u32 v14, s21, v3
    v_add_u32 v15, 18432, v14
    """)
    for e in range(2):
        k(f"""
        s_mul_i32 s37, s{46+e}, 18
        s_add_u32 s37, s37, s{44+e}
        s_lshl_b32 s37, s37, 10
        v_add_u32 v{228+e}, s37, v3
        """)

    def read_mod(j):
        va, off = ((8, 0), (8, 1024), (9, 0), (11, 0))[j]
        b = 16 + 16 * (j & 1)
        return [f"ds_read_b128 v[{b}:{b+3}], v{va} offset:{off + 2304}",
                f"ds_read_b128 v[{b+4}:{b+7}], v{va} offset:{off + 2304 + 16}",
                f"ds_read_b128 v[{b+8}:{b+11}], v{va} offset:{off}",
                f"ds_read_b128 v[{b+12}:{b+15}], v{va} offset:{off + 16}"]

    def xform(f):
        if f < 10:
            j, i = divmod(f, 5)
            x = 48 + 20 * j + 4 * i
        else:
            j = 2 + (f - 10)
            x = 88 + 4 * (f - 10)
        b = 16 + 16 * (j & 1)
        T = 96
        o = []
        for q in range(4):
            o.append(f"v_lshlrev_b32 v{T+2*q}, 16, v{x+q}")
            o.append(f"v_and_b32 v{T+2*q+1}, 0xffff0000, v{x+q}")
        if "fma1" in ABL:
            for e_ in range(8):
                o.append(f"v_fma_f32 v{T+e_}, v{T+e_}, v{b+e_}, v{b+8+e_}")
        else:
            for e_ in range(8):
                o.append(f"v_mul_f32 v{T+e_}, v{T+e_}, v{b+e_}")
            for q in range(4):
                o.append(f"v_cvt_pk_bf16_f32 v{x+q}, v{T+2*q}, v{T+2*q+1}")
            for q in range(4):
                o.append(f"v_lshlrev_b32 v{T+2*q}, 16, v{x+q}")
                o.append(f"v_and_b32 v{T+2*q+1}, 0xffff0000, v{x+q}")
            for e_ in range(8):
                o.append(f"v_add_f32 v{T+e_}, v{T+e_}, v{b+8+e_}")
        for q in range(4):
            o.append(f"v_cvt_pk_bf16_f32 v{x+q}, v{T+2*q}, v{T+2*q+1}")
        if f < 10:
            base = 12 + 2 * j
            if i < 4:
                o.append(f"ds_write_b128 v{base}, v[{x}:{x+3}] offset:{i*18432}")
            else:
                o.append(f"ds_write_b128 v{base+1}, v[{x}:{x+3}] offset:{3*18432}")
        else:
            o.append(f"ds_write_b128 v{228+f-10}, v[{x}:{x+3}]")
        return o

    for ln in read_mod(0) + read_mod(1):
        k(ln)
    k("s_waitcnt lgkmcnt(4)")
    nw = 0
    for f in range(5):
        k(f"s_waitcnt vmcnt({len(vm.ops) - 1 - f})")
        for ln in xform(f):
            k(ln)
        if f >= 1:
            load_a(nw); nw += 1
    k("s_waitcnt lgkmcnt(0)")
    stamp(k, 1)
    k("s_barrier")
    stamp(k, 2)
    k("v_add_u32 v6, 55296, v3")

    def breg(kk, i):
        return (48 if (kk & 1) == 0 else 104) + 4 * i

    def read_b(kk):
        for i in range(5):
            b = breg(kk, i)
            if i < 3:
                k(f"ds_read_b128 v[{b}:{b+3}], v3 offset:{i*18432 + kk*1024}")
            else:
                k(f"ds_read_b128 v[{b}:{b+3}], v6 offset:{(i-3)*18432 + kk*1024}")

    def acc(tt, i):
        return 188 + 20 * tt + 4 * i

    sidew = {0: [5], 1: [6], 2: [7], 3: [8], 4: [9], 5: [10], 6: [11]}
    read_b(0)
    for kk in range(18):
        if kk == 7:
            k("s_waitcnt lgkmcnt(0)")
            k("s_barrier")
        if kk < 17:
            read_b(kk + 1)
        while nw < 18 and nw < kk + NAS:
            load_a(nw); nw += 1
            if kk > 0:
                break
        side = []
        if kk == 4:
            side += read_mod(2)
        if kk == 5:
            side += read_mod(3)
        fl = sidew.get(kk, [])
        tags = [f"a{kk}"] + [("x1" if f < 10 else f"e{f-10}") for f in fl]
        k(f"s_waitcnt vmcnt({vm.need(*tags)})")
        k(f"s_waitcnt lgkmcnt({5 if kk < 17 else 0})")
        for f in fl:
            side += xform(f)
        nm = 0
        for i in range(5):
            for tt in range(2):
                a = areg(kk, tt); b = breg(kk, i); c = acc(tt, i)
                cs = "0" if kk == 0 else f"v[{c}:{c+3}]"
                k(f"v_mfma_f32_16x16x32_bf16 v[{c}:{c+3}], v[{a}:{a+3}], v[{b}:{b+3}], {cs}")
                nm += 1
                take = -(-len(side) // (11 - nm)) if side else 0
                for _ in range(take):
                    k(side.pop(0))
        assert not side
    stamp(k, 3)
    k(f"""
    v_and_b32 v6, 15, v1
    v_mul_u32_u24 v6, {TS}, v6
    v_lshl_add_u32 v6, v4, 3, v6
    s_lshl_b32 s31, s3, 6
    s_add_u32 s31, s31, {QB}
    v_add_u32 v6, s31, v6
    """)
    for tt in range(2):
        if tt == 1:
            k("s_cmp_eq_u32 s3, 7")
            k("s_cbranch_scc1 k1_skip_t1")
        for i in range(5):
            c = acc(tt, i)
            k(f"v_cvt_pk_bf16_f32 v{60+2*i}, v{c}, v{c+1}")
            k(f"v_cvt_pk_bf16_f32 v{61+2*i}, v{c+2}, v{c+3}")
            k(f"ds_write_b64 v6, v[{60+2*i}:{61+2*i}] offset:{i*16*TS + tt*32}")
    k.label("k1_skip_t1")
    k("s_waitcnt lgkmcnt(0)")
    k("s_barrier")
    stamp(k, 4)

    k(f"""
    s_and_b32 s50, s4, 1
    s_lshr_b32 s51, s4, 1
    s_lshl_b32 s52, s5, 2
    s_lshl_b32 s53, s50, 1
    s_add_u32 s52, s52, s53
    s_mul_i32 s53, s51, 9
    s_add_u32 s54, s53, s3
    s_mul_i32 s55, s54, {18*1024}
    s_add_u32 s55, s55, {WOP}
    v_add_u32 v216, 4096, v3
    v_add_u32 v217, 8192, v3
    v_add_u32 v218, 12288, v3
    v_add_u32 v219, 16384, v3
    v_and_b32 v220, 15, v1
    s_lshl_b32 s31, s52, 4
    v_add_u32 v220, s31, v220
    v_mul_u32_u24 v221, 1152, v220
    v_lshl_add_u32 v221, v4, 3, v221
    s_lshl_b32 s31, s54, 5
    v_add_u32 v222, s31, v221
    v_add_u32 v223, {16*1152}, v222
    v_lshlrev_b32 v224, 4, v4
    s_lshl_b32 s31, s54, 6
    v_add_u32 v225, s31, v224
    s_mov_b32 s56, {MOD + 2*576*4}
    s_mov_b32 s57, {MOD + 4*576*4}
    """)
    side = []
    for kk in range(18):
        vo = 3 if kk < 4 else 215 + kk // 4
        side.append(f"buffer_load_dwordx4 v[{128+4*kk}:{131+4*kk}], v{vo}, s[12:15], s55 offen offset:{(kk%4)*1024}")
    side.append("global_load_dwordx2 v[200:201], v222, s[8:9]")
    side.append("global_load_dwordx2 v[202:203], v223, s[8:9]")
    side.append("buffer_load_dwordx4 v[204:207], v225, s[12:15], s56 offen")
    side.append("buffer_load_dwordx4 v[208:211], v225, s[12:15], s57 offen")
    kreal = k
    cnt = [0]

    class KS:
        def __call__(self, txt):
            for ln in txt.strip("\n").split("\n"):
                ln = ln.strip()
                if not ln:
                    continue
                kreal(ln)
                if ln.startswith("v_") and side:
                    cnt[0] += 1
                    if cnt[0] % 10 == 0:
                        kreal(side.pop(0))

        def label(self, l):
            kreal.label(l)

    k = KS()
    k(f"""
    v_and_b32 v6, 1, v1
    v_bfe_u32 v7, v1, 1, 2
    v_lshrrev_b32 v8, 3, v1
    s_lshl_b32 s31, s3, 3
    v_add_u32 v8, s31, v8
    v_mul_u32_u24 v9, {TS}, v8
    v_mul_u32_u24 v10, 40, v7
    v_add_u32 v9, v9, v10
    v_add_u32 v9, {QB + 16*TS}, v9
    v_mul_u32_u24 v10, {8*TS}, v6
    v_sub_u32 v11, v9, v10
    v_add_u32 v12, {160 - 6*TS}, v11
    v_lshl_add_u32 v13, v6, 4, v11
    v_add_u32 v13, {320 - 6*TS}, v13
    v_add_u32 v14, v9, v10
    v_lshl_add_u32 v14, v6, 4, v14
    v_add_u32 v14, {320 - 14*TS}, v14
    """)
    for j in range(5):
        k(f"ds_read_b64 v[{16+2*j}:{17+2*j}], v9 offset:{8*j}")
    for u in range(4):
        for j in range(5):
            r = 32 + 10 * u + 2 * j
            k(f"ds_read_b64 v[{r}:{r+1}], v12 offset:{(3-u)*2*TS + 8*j}")
    for u in range(4):
        for j in range(3):
            r = 80 + 6 * u + 2 * j
            k(f"ds_read_b64 v[{r}:{r+1}], v13 offset:{(3-u)*2*TS + 8*j}")
    for u in range(4):
        for j in range(3):
            r = 104 + 6 * u + 2 * j
            k(f"ds_read_b64 v[{r}:{r+1}], v14 offset:{(3-u)*2*TS + 8*j}")
    k(f"""
    s_lshl_b32 s31, s5, 6
    v_add_u32 v15, s31, v8
    v_lshlrev_b32 v26, 3, v6
    v_sub_u32 v15, v15, v26
    v_mov_b32 v27, 0xce6e6b28
    s_waitcnt lgkmcnt(15)
    """)
    k("s_waitcnt lgkmcnt(0)")
    stamp(k, 5)
    for j in range(9):
        for u in range(4):
            src = "0" if j == 0 else f"v{28+u}"
            k(f"v_dot2_f32_bf16 v{28+u}, v{16+j}, v{32+10*u+j}, {src}")
    for u in range(4):
        bf16_round(k, 28 + u, 28 + u)
        k(f"v_mul_f32 v{28+u}, 0x3e715bef, v{28+u}")
        bf16_round(k, 28 + u, 28 + u)
        k(f"v_cmp_gt_i32 vcc, {2*u}, v15")
        k(f"v_cndmask_b32 v{28+u}, v{28+u}, v27, vcc")
    for u in range(4):
        k(f"v_mov_b32_dpp v{32+u}, v{28+u} quad_perm:[1,0,3,2] row_mask:0xf bank_mask:0xf")
    k("""
    v_max3_f32 v36, v28, v29, v30
    v_max3_f32 v36, v36, v31, v32
    v_max3_f32 v36, v36, v33, v34
    v_max_f32 v36, v36, v35
    """)
    for u in range(8):
        k(f"v_sub_f32 v{28+u}, v{28+u}, v36")
        k(f"v_mul_f32 v{28+u}, {LOG2E}, v{28+u}")
        k(f"v_exp_f32 v{28+u}, v{28+u}")
    k("""
    v_add_f32 v36, v28, v29
    v_add_f32 v37, v30, v31
    v_add_f32 v38, v32, v33
    v_add_f32 v39, v34, v35
    v_add_f32 v36, v36, v37
    v_add_f32 v38, v38, v39
    v_add_f32 v36, v36, v38
    v_rcp_f32 v36, v36
    """)
    for u in range(8):
        k(f"v_mul_f32 v{28+u}, v{28+u}, v36")
        k(f"v_cvt_pk_bf16_f32 v{40+u}, v{28+u}, 0")
        k(f"v_lshlrev_b32 v{48+u}, 16, v{40+u}")
    for u in range(8):
        vb = (80 + 6 * u) if u < 4 else (104 + 6 * (u - 4))
        for j in range(5):
            s0 = "0" if u == 0 else f"v{60+2*j}"
            s1 = "0" if u == 0 else f"v{61+2*j}"
            k(f"v_dot2_f32_bf16 v{60+2*j}, v{vb+j}, v{40+u}, {s0}")
            k(f"v_dot2_f32_bf16 v{61+2*j}, v{vb+j}, v{48+u}, {s1}")
    k(f"""
    v_mul_u32_u24 v9, 160, v8
    v_mul_u32_u24 v10, 36, v7
    v_add_u32 v9, v9, v10
    v_lshl_add_u32 v9, v6, 4, v9
    """)
    for j in range(5):
        k(f"v_cvt_pk_bf16_f32 v{70+j}, v{60+2*j}, v{61+2*j}")
        k(f"ds_write_b32 v9, v{70+j} offset:{4*j}")
    k("s_waitcnt lgkmcnt(0)")
    k = kreal
    for ln in side:
        k(ln)
    stamp(k, 6)
    k("s_barrier")
    k(f"""
    v_mul_u32_u24 v6, 160, v1
    s_lshl_b32 s31, s3, 4
    v_add_u32 v6, s31, v6
    ds_read_b128 v[16:19], v6
    ds_read_b128 v[20:23], v6 offset:128
    v_mul_u32_u24 v7, {18*1024}, v4
    v_and_b32 v8, 15, v1
    v_lshl_add_u32 v7, v8, 4, v7
    s_mul_i32 s31, s5, {4*18*1024}
    s_mul_i32 s32, s4, 9
    s_add_u32 s32, s32, s3
    s_lshl_b32 s32, s32, 8
    s_add_u32 s31, s31, s32
    s_add_u32 s31, s31, {OO}
    s_waitcnt lgkmcnt(0)
    buffer_store_dwordx4 v[16:19], v7, s[12:15], s31 offen sc1
    s_cmp_lg_u32 s3, 0
    s_cbranch_scc1 k1_st1
    buffer_store_dwordx4 v[20:23], v7, s[12:15], s31 offen offset:2048 sc1
    """)
    k.label("k1_st1")
    k(f"""
    s_waitcnt vmcnt(0)
    s_barrier
    s_lshl_b32 s33, s5, 8
    s_add_u32 s33, s33, {CNT}
    v_mov_b32 v9, s33
    s_cmp_lg_u32 s3, 7
    s_cbranch_scc1 k1_nosig
    v_mov_b32 v8, 1
    s_mov_b64 exec, 1
    global_atomic_add v9, v8, s[86:87]
    s_mov_b64 exec, -1
    """)
    k.label("k1_nosig")
    k(f"""
    s_cmp_ge_u32 s3, 2
    s_cbranch_scc1 k1_noextra
    s_add_u32 s58, s53, 8
    s_mul_i32 s59, s58, {18*1024}
    s_add_u32 s59, s59, {WOP}
    """)
    for kk in range(18):
        vo = 3 if kk < 4 else 215 + kk // 4
        k(f"buffer_load_dwordx4 v[{16+4*kk}:{19+4*kk}], v{vo}, s[12:15], s59 offen offset:{(kk%4)*1024}")
    k(f"""
    s_lshl_b32 s31, s58, 5
    s_mul_i32 s32, s3, {16*1152}
    s_add_u32 s31, s31, s32
    v_add_u32 v10, s31, v221
    global_load_dwordx2 v[88:89], v10, s[8:9]
    s_lshl_b32 s31, s58, 6
    v_add_u32 v10, s31, v224
    buffer_load_dwordx4 v[92:95], v10, s[12:15], s56 offen
    buffer_load_dwordx4 v[96:99], v10, s[12:15], s57 offen
    """)
    k.label("k1_noextra")
    k("s_mov_b32 s37, 0")
    k("s_cmp_lg_u32 s3, 7")
    k("s_cbranch_scc1 k1_ready")
    k("s_mov_b64 exec, 1")
    k.label("k1_poll")
    k("""
    global_load_dword v8, v9, s[86:87] sc1
    s_waitcnt vmcnt(0)
    v_readfirstlane_b32 s38, v8
    s_add_u32 s37, s37, 1
    s_cmp_ge_u32 s38, 8
    s_cbranch_scc1 k1_ready
    s_cmp_lt_u32 s37, 0x400000
    s_cbranch_scc0 k1_ready
    s_sleep 2
    s_branch k1_poll
    """)
    k.label("k1_ready")
    k("s_mov_b64 exec, -1")
    k("s_barrier")
    stamp(k, 7)
    k(f"""
    s_mul_i32 s31, s52, {18*1024}
    s_add_u32 s31, s31, {OO}
    s_lshl_b32 s32, s3, 10
    s_add_u32 s31, s31, s32
    s_add_u32 s34, s32, 32768
    s_add_u32 s35, s32, 24576
    s_cmp_lt_u32 s3, 4
    s_cselect_b32 s34, s34, s35
    s_sub_u32 s35, s34, s32
    s_add_u32 s35, s35, s31
    v_add_u32 v10, 24576, v3
    buffer_load_dwordx4 v[100:103], v3, s[12:15], s31 offen sc1
    buffer_load_dwordx4 v[104:107], v217, s[12:15], s31 offen sc1
    buffer_load_dwordx4 v[108:111], v219, s[12:15], s31 offen sc1
    buffer_load_dwordx4 v[112:115], v10, s[12:15], s31 offen sc1
    buffer_load_dwordx4 v[116:119], v3, s[12:15], s35 offen sc1
    v_add_u32 v11, s32, v3
    v_add_u32 v11, {K1_OL}, v11
    v_add_u32 v12, s34, v3
    v_add_u32 v12, {K1_OL}, v12
    s_waitcnt vmcnt(4)
    ds_write_b128 v11, v[100:103]
    s_waitcnt vmcnt(3)
    ds_write_b128 v11, v[104:107] offset:8192
    s_waitcnt vmcnt(2)
    ds_write_b128 v11, v[108:111] offset:16384
    s_waitcnt vmcnt(1)
    ds_write_b128 v11, v[112:115] offset:24576
    s_waitcnt vmcnt(0)
    ds_write_b128 v12, v[116:119]
    v_add_u32 v13, {K1_OL}, v3
    s_mul_i32 s31, s3, {18*1024}
    v_add_u32 v14, s31, v13
    s_waitcnt lgkmcnt(0)
    s_barrier
    """)

    stamp(k, 4)
    k(f"""
    s_sub_u32 s31, s3, 2
    s_cmp_ge_u32 s31, 2
    s_cbranch_scc1 k1_nopfw
    v_subrev_u32 v24, 128, v0
    v_min_u32 v24, 71, v24
    v_cmp_le_u32 vcc, 36, v24
    v_subrev_u32 v25, 36, v24
    v_cndmask_b32 v24, v24, v25, vcc
    v_mul_u32_u24 v25, 57, v24
    v_lshrrev_b32 v25, 9, v25
    v_mul_u32_u24 v26, 9, v25
    v_sub_u32 v26, v24, v26
    v_mul_u32_u24 v25, 9216, v25
    v_lshl_add_u32 v25, v26, 7, v25
    s_lshr_b32 s31, s2, 3
    s_mul_i32 s31, s31, {4*9216}
    s_and_b32 s32, s2, 7
    s_mul_i32 s32, s32, 1152
    s_add_u32 s31, s31, s32
    v_add_u32 v25, s31, v25
    v_mov_b32 v26, s16
    v_mov_b32 v27, s17
    v_mov_b32 v28, s18
    v_mov_b32 v29, s19
    v_cndmask_b32 v26, v26, v28, vcc
    v_cndmask_b32 v27, v27, v29, vcc
    v_add_co_u32 v26, vcc, v26, v25
    v_addc_co_u32 v27, vcc, 0, v27, vcc
    global_load_dword v40, v[26:27], off
    """)
    k.label("k1_nopfw")
    BB = [100, 108, 116, 212]

    def b2(kk, tt):
        return BB[kk % 4] + 4 * tt

    def read_b2(kk):
        for tt in range(2):
            b = b2(kk, tt)
            k(f"ds_read_b128 v[{b}:{b+3}], v13 offset:{(tt*18 + kk)*1024}")

    A2 = [232, 236]

    def gemm2(extra):
        for kk in range(3):
            read_b2(kk)
        for kk in range(18):
            if kk + 3 < 18:
                read_b2(kk + 3)
            k(f"s_waitcnt lgkmcnt({2 * min(3, 17 - kk)})")
            for tt in range(2):
                c = A2[tt]; b = b2(kk, tt)
                cs = "0" if kk == 0 else f"v[{c}:{c+3}]"
                k(f"v_mfma_f32_16x16x32_bf16 v[{c}:{c+3}], v[{128+4*kk}:{131+4*kk}], v[{b}:{b+3}], {cs}")
            if extra is not None:
                b = b2(kk, extra)
                cs = "0" if kk == 0 else "v[240:243]"
                k(f"v_mfma_f32_16x16x32_bf16 v[240:243], v[{16+4*kk}:{19+4*kk}], v[{b}:{b+3}], {cs}")

    k("s_cmp_eq_u32 s3, 0")
    k("s_cbranch_scc1 k1_g2a")
    k("s_cmp_eq_u32 s3, 1")
    k("s_cbranch_scc1 k1_g2b")
    gemm2(None)
    k("s_branch k1_g2e")
    k.label("k1_g2a")
    gemm2(0)
    k("s_branch k1_g2e")
    k.label("k1_g2b")
    gemm2(1)
    k.label("k1_g2e")
    k("s_nop 7")
    stamp(k, 5)

    def unit_epi(c, xr, ga, g2, sm, x1o, yo, first):
        k(f"""
        v_cvt_pk_bf16_f32 v110, v{c}, v{c+1}
        v_cvt_pk_bf16_f32 v111, v{c+2}, v{c+3}
        v_lshlrev_b32 v112, 16, v110
        v_and_b32 v113, 0xffff0000, v110
        v_lshlrev_b32 v114, 16, v111
        v_and_b32 v115, 0xffff0000, v111
        v_pk_mul_f32 v[112:113], v[112:113], v[{ga}:{ga+1}]
        v_pk_mul_f32 v[114:115], v[114:115], v[{ga+2}:{ga+3}]
        v_cvt_pk_bf16_f32 v110, v112, v113
        v_cvt_pk_bf16_f32 v111, v114, v115
        v_lshlrev_b32 v112, 16, v110
        v_and_b32 v113, 0xffff0000, v110
        v_lshlrev_b32 v114, 16, v111
        v_and_b32 v115, 0xffff0000, v111
        v_lshlrev_b32 v116, 16, v{xr}
        v_and_b32 v117, 0xffff0000, v{xr}
        v_lshlrev_b32 v118, 16, v{xr+1}
        v_and_b32 v119, 0xffff0000, v{xr+1}
        v_pk_add_f32 v[112:113], v[112:113], v[116:117]
        v_pk_add_f32 v[114:115], v[114:115], v[118:119]
        v_cvt_pk_bf16_f32 v{x1o}, v112, v113
        v_cvt_pk_bf16_f32 v{x1o+1}, v114, v115
        v_lshlrev_b32 v112, 16, v{x1o}
        v_and_b32 v113, 0xffff0000, v{x1o}
        v_lshlrev_b32 v114, 16, v{x1o+1}
        v_and_b32 v115, 0xffff0000, v{x1o+1}
        """)
        if first:
            k(f"v_add_f32 v{sm}, v112, v113")
            k(f"v_mul_f32 v{sm+1}, v112, v112")
        else:
            k(f"v_add_f32 v{sm}, v{sm}, v112")
            k(f"v_fmac_f32 v{sm+1}, v112, v112")
            k(f"v_add_f32 v{sm}, v{sm}, v113")
        k(f"""
        v_fmac_f32 v{sm+1}, v113, v113
        v_add_f32 v{sm}, v{sm}, v114
        v_fmac_f32 v{sm+1}, v114, v114
        v_add_f32 v{sm}, v{sm}, v115
        v_fmac_f32 v{sm+1}, v115, v115
        v_pk_mul_f32 v[112:113], v[112:113], v[{g2}:{g2+1}]
        v_pk_mul_f32 v[114:115], v[114:115], v[{g2+2}:{g2+3}]
        v_cvt_pk_bf16_f32 v{yo}, v112, v113
        v_cvt_pk_bf16_f32 v{yo+1}, v114, v115
        """)

    k(f"""
    s_lshr_b32 s33, s3, 1
    s_lshl_b32 s33, s33, 10
    s_and_b32 s32, s3, 1
    s_lshl_b32 s32, s32, 3
    s_add_u32 s33, s33, s32
    s_add_u32 s33, s33, {K1_YL}
    v_add_u32 v6, s33, v3
    s_mul_i32 s36, s52, {144*128}
    s_lshl_b32 s37, s54, 9
    s_add_u32 s36, s36, s37
    s_add_u32 s36, s36, {X1}
    s_add_u32 s37, s36, {144*128}
    v_lshlrev_b32 v7, 3, v1
    """)
    for tt in range(2):
        unit_epi(A2[tt], 200 + 2 * tt, 204, 208, 120 + 2 * tt, 244 + 2 * tt, 248 + 2 * tt, True)
        k(f"ds_write_b64 v6, v[{248+2*tt}:{249+2*tt}] offset:{5120*tt}")
        k(f"buffer_store_dwordx2 v[{244+2*tt}:{245+2*tt}], v7, s[12:15], s{36+tt} offen sc1")
    for w in range(2):
        k(f"s_cmp_lg_u32 s3, {w}")
        k(f"s_cbranch_scc1 k1_noex3_{w}")
        unit_epi(240, 88, 92, 96, 120 + 2 * w, 252, 254, False)
        k(f"""
        v_add_u32 v8, {K1_YL + 5120*w + 4096}, v3
        ds_write_b64 v8, v[254:255]
        s_add_u32 s38, s52, {w}
        s_mul_i32 s38, s38, {144*128}
        s_add_u32 s39, s53, 8
        s_lshl_b32 s39, s39, 9
        s_add_u32 s38, s38, s39
        s_add_u32 s38, s38, {X1}
        buffer_store_dwordx2 v[252:253], v7, s[12:15], s38 offen sc1
        """)
        k.label(f"k1_noex3_{w}")
    for r in range(120, 124):
        k(f"v_mov_b32 v{r+4}, v{r}")
    for r in range(120, 124):
        k(f"v_permlane16_swap_b32 v{r}, v{r+4}")
    for r in range(120, 124):
        k(f"v_add_f32 v{r}, v{r}, v{r+4}")
    for r in range(120, 124):
        k(f"v_mov_b32 v{r+4}, v{r}")
    for r in range(120, 124):
        k(f"v_permlane32_swap_b32 v{r}, v{r+4}")
    for r in range(120, 124):
        k(f"v_add_f32 v{r}, v{r}, v{r+4}")
    k(f"""
    v_cmp_gt_u32 vcc, 16, v1
    v_cndmask_b32 v120, v122, v120, vcc
    v_cndmask_b32 v121, v123, v121, vcc
    s_lshl_b32 s31, s3, 8
    s_add_u32 s31, s31, {K1_SL}
    v_lshlrev_b32 v5, 3, v1
    v_add_u32 v5, s31, v5
    s_mov_b32 exec_hi, 0
    ds_write_b64 v5, v[120:121]
    s_mov_b64 exec, -1
    s_waitcnt lgkmcnt(0)
    s_barrier
    """)
    if DIAG:
        k("s_mov_b32 s71, s76")
        k("s_mov_b32 s72, s77")
    stamp(k, 3)
    stamp_flush(k, 7, 3, "k1", 60)
    k(f"""
    s_lshr_b32 s32, s3, 2
    s_and_b32 s31, s3, 3
    s_mul_i32 s33, s32, 5120
    s_lshl_b32 s34, s31, 10
    s_add_u32 s33, s33, s34
    s_add_u32 s33, s33, {K1_YL}
    v_add_u32 v6, s33, v3
    ds_read_b128 v[24:27], v6
    s_lshr_b32 s35, s51, 1
    s_mul_i32 s35, s35, 9
    s_and_b32 s36, s51, 1
    s_lshl_b32 s37, s36, 2
    s_add_u32 s37, s37, s35
    s_add_u32 s37, s37, s31
    s_add_u32 s38, s52, s32
    s_mul_i32 s38, s38, 18
    s_add_u32 s37, s37, s38
    s_lshl_b32 s37, s37, 10
    s_add_u32 s37, s37, {YY}
    s_waitcnt lgkmcnt(0)
    buffer_store_dwordx4 v[24:27], v3, s[12:15], s37 offen sc1
    s_cmp_eq_u32 s3, 1
    s_cbranch_scc1 k1_stats
    s_cmp_lg_u32 s31, 0
    s_cbranch_scc1 k1_done
    ds_read_b64 v[28:29], v6 offset:4096
    s_add_u32 s37, s35, 8
    s_add_u32 s37, s37, s38
    s_lshl_b32 s37, s37, 10
    s_lshl_b32 s36, s36, 3
    s_add_u32 s37, s37, s36
    s_add_u32 s37, s37, {YY}
    s_waitcnt lgkmcnt(0)
    buffer_store_dwordx2 v[28:29], v3, s[12:15], s37 offen sc1
    s_branch k1_done
    """)
    k.label("k1_stats")
    k("v_lshlrev_b32 v5, 2, v1")
    for w in range(8):
        k(f"ds_read_b32 v{32+w}, v5 offset:{K1_SL + 256*w}")
    k("s_waitcnt lgkmcnt(0)")
    k(f"""
    v_add_f32 v32, v32, v33
    v_add_f32 v34, v34, v35
    v_add_f32 v36, v36, v37
    v_add_f32 v38, v38, v39
    v_add_f32 v32, v32, v34
    v_add_f32 v36, v36, v38
    v_add_f32 v32, v32, v36
    s_lshl_b32 s31, s51, 14
    s_lshl_b32 s32, s52, 7
    s_add_u32 s31, s31, s32
    s_add_u32 s31, s31, {STAT}
    buffer_store_dword v32, v5, s[12:15], s31 offen sc1
    """)
    k.label("k1_done")
    k(f"""
    s_waitcnt vmcnt(0) lgkmcnt(0)
    s_barrier
    s_lshr_b32 s33, s5, 2
    s_lshl_b32 s33, s33, 8
    s_add_u32 s33, s33, {CNT + 32*256}
    v_mov_b32 v9, s33
    s_cmp_lg_u32 s3, 7
    s_cbranch_scc1 k1_nosig2
    v_mov_b32 v8, 1
    s_mov_b64 exec, 1
    global_atomic_add v9, v8, s[86:87]
    s_mov_b64 exec, -1
    """)
    k.label("k1_nosig2")
    return gen_k3(k)


K2_GRID = 256
K2_YL = 36864 + 2304
K2_LDS = K2_YL + 10240


def gen_k2():
    k = K("wo_kernel")
    tl_start(k)
    k(f"""
    s_cmp_ge_u32 s2, {K2_GRID}
    s_cbranch_scc1 k2_done
    s_load_dwordx2 s[4:5], s[0:1], 0
    s_load_dwordx4 s[16:19], s[0:1], 32
    s_load_dwordx2 s[6:7], s[0:1], 88
    v_and_b32 v1, 63, v0
    v_lshrrev_b32 v2, 6, v0
    v_lshlrev_b32 v3, 4, v1
    v_lshrrev_b32 v4, 4, v1
    v_readfirstlane_b32 s3, v2
    s_waitcnt lgkmcnt(0)
    """)
    srd(k, 12, 6, WS_BYTES)
    k(f"""
    s_and_b32 s20, s2, 7
    s_lshl_b32 s20, s20, 3
    s_bfe_u32 s21, s2, 0x30003
    s_add_u32 s20, s20, s21
    s_lshr_b32 s21, s2, 6
    s_lshl_b32 s24, s20, 1
    s_mul_i32 s25, s21, 9
    s_add_u32 s25, s25, s3
    s_mul_i32 s27, s24, {18*1024}
    s_add_u32 s27, s27, {OO}
    s_lshl_b32 s26, s3, 12
    s_add_u32 s27, s27, s26
    s_mul_i32 s28, s25, {18*1024}
    s_add_u32 s28, s28, {WOP}
    """)
    stamp(k, 0)
    k("s_mov_b32 m0, s26")
    for i in range(4):
        k(f"buffer_load_dwordx4 v3, s[12:15], s27 offen offset:{1024*i} lds")
    for q in range(5):
        k(f"v_add_u32 v{5+q}, {4096*q}, v3")

    def areg(kk):
        return 24 + 4 * (kk % 11)

    def load_a(kk):
        a = areg(kk)
        k(f"buffer_load_dwordx4 v[{a}:{a+3}], v{5+kk//4}, s[12:15], s28 offen offset:{(kk%4)*1024}")

    for kk in range(11):
        load_a(kk)
    k(f"""
    v_and_b32 v10, 15, v1
    s_lshl_b32 s31, s24, 4
    v_add_u32 v10, s31, v10
    v_mul_u32_u24 v11, 1152, v10
    v_lshl_add_u32 v11, v4, 3, v11
    s_lshl_b32 s31, s25, 5
    v_add_u32 v11, s31, v11
    v_add_u32 v13, {16*1152}, v11
    v_lshlrev_b32 v12, 4, v4
    s_lshl_b32 s31, s25, 6
    v_add_u32 v12, s31, v12
    s_mov_b32 s34, {MOD + 2*576*4}
    s_mov_b32 s35, {MOD + 4*576*4}
    global_load_dwordx2 v[14:15], v11, s[4:5]
    global_load_dwordx2 v[16:17], v13, s[4:5]
    buffer_load_dwordx4 v[72:75], v12, s[12:15], s34 offen
    buffer_load_dwordx4 v[76:79], v12, s[12:15], s35 offen
    s_waitcnt vmcnt(15)
    s_barrier
    """)
    stamp(k, 1)

    def breg(kk, tt):
        return 80 + 8 * (kk & 1) + 4 * tt

    def read_b(kk):
        for tt in range(2):
            b = breg(kk, tt)
            k(f"ds_read_b128 v[{b}:{b+3}], v3 offset:{(tt*18 + kk)*1024}")

    accs = [18, 68]
    read_b(0)
    for kk in range(18):
        if kk < 17:
            read_b(kk + 1)
        if kk < 11:
            n_after = (10 - kk) + 4 + min(kk, 7)
        else:
            n_after = 17 - kk
        k(f"s_waitcnt vmcnt({n_after}) lgkmcnt({2 if kk < 17 else 0})")
        a = areg(kk)
        for tt in range(2):
            c = accs[tt]
            b = breg(kk, tt)
            cs = "0" if kk == 0 else f"v[{c}:{c+3}]"
            k(f"v_mfma_f32_16x16x32_bf16 v[{c}:{c+3}], v[{a}:{a+3}], v[{b}:{b+3}], {cs}")
        if kk + 11 < 18:
            load_a(kk + 11)
    stamp(k, 2)
    k(f"""
    s_cmp_ge_u32 s3, 2
    s_cbranch_scc1 k2_nopf
    v_min_u32 v24, 71, v0
    v_cmp_le_u32 vcc, 36, v24
    v_subrev_u32 v25, 36, v24
    v_cndmask_b32 v24, v24, v25, vcc
    v_mul_u32_u24 v25, 57, v24
    v_lshrrev_b32 v25, 9, v25
    v_mul_u32_u24 v26, 9, v25
    v_sub_u32 v26, v24, v26
    v_mul_u32_u24 v25, 9216, v25
    v_lshl_add_u32 v25, v26, 7, v25
    s_lshr_b32 s31, s2, 3
    s_mul_i32 s31, s31, {4*9216}
    s_and_b32 s32, s2, 7
    s_mul_i32 s32, s32, 1152
    s_add_u32 s31, s31, s32
    v_add_u32 v25, s31, v25
    v_mov_b32 v26, s16
    v_mov_b32 v27, s17
    v_mov_b32 v28, s18
    v_mov_b32 v29, s19
    v_cndmask_b32 v26, v26, v28, vcc
    v_cndmask_b32 v27, v27, v29, vcc
    v_add_co_u32 v26, vcc, v26, v25
    v_addc_co_u32 v27, vcc, 0, v27, vcc
    global_load_dword v95, v[26:27], off
    """)
    k.label("k2_nopf")
    k(f"""
    s_lshr_b32 s33, s3, 1
    s_lshl_b32 s33, s33, 10
    s_and_b32 s32, s3, 1
    s_lshl_b32 s32, s32, 3
    s_add_u32 s33, s33, s32
    s_add_u32 s33, s33, {K2_YL}
    v_add_u32 v6, s33, v3
    s_mul_i32 s36, s24, {144*128}
    s_lshl_b32 s37, s25, 9
    s_add_u32 s36, s36, s37
    s_add_u32 s36, s36, {X1}
    s_add_u32 s37, s36, {144*128}
    v_lshlrev_b32 v7, 3, v1
    """)
    ga, g2 = 72, 76
    for tt in range(2):
        c = accs[tt]
        xr = 14 + 2 * tt
        sm, sq = 40 + 2 * tt, 41 + 2 * tt
        k(f"""
        v_cvt_pk_bf16_f32 v24, v{c}, v{c+1}
        v_cvt_pk_bf16_f32 v25, v{c+2}, v{c+3}
        v_lshlrev_b32 v26, 16, v24
        v_and_b32 v27, 0xffff0000, v24
        v_lshlrev_b32 v28, 16, v25
        v_and_b32 v29, 0xffff0000, v25
        v_pk_mul_f32 v[26:27], v[26:27], v[{ga}:{ga+1}]
        v_pk_mul_f32 v[28:29], v[28:29], v[{ga+2}:{ga+3}]
        v_cvt_pk_bf16_f32 v24, v26, v27
        v_cvt_pk_bf16_f32 v25, v28, v29
        v_lshlrev_b32 v26, 16, v24
        v_and_b32 v27, 0xffff0000, v24
        v_lshlrev_b32 v28, 16, v25
        v_and_b32 v29, 0xffff0000, v25
        v_lshlrev_b32 v30, 16, v{xr}
        v_and_b32 v31, 0xffff0000, v{xr}
        v_lshlrev_b32 v32, 16, v{xr+1}
        v_and_b32 v33, 0xffff0000, v{xr+1}
        v_pk_add_f32 v[26:27], v[26:27], v[30:31]
        v_pk_add_f32 v[28:29], v[28:29], v[32:33]
        v_cvt_pk_bf16_f32 v{34+2*tt}, v26, v27
        v_cvt_pk_bf16_f32 v{35+2*tt}, v28, v29
        v_lshlrev_b32 v26, 16, v{34+2*tt}
        v_and_b32 v27, 0xffff0000, v{34+2*tt}
        v_lshlrev_b32 v28, 16, v{35+2*tt}
        v_and_b32 v29, 0xffff0000, v{35+2*tt}
        v_add_f32 v{sm}, v26, v27
        v_mul_f32 v{sq}, v26, v26
        v_fmac_f32 v{sq}, v27, v27
        v_add_f32 v{sm}, v{sm}, v28
        v_fmac_f32 v{sq}, v28, v28
        v_add_f32 v{sm}, v{sm}, v29
        v_fmac_f32 v{sq}, v29, v29
        v_pk_mul_f32 v[26:27], v[26:27], v[{g2}:{g2+1}]
        v_pk_mul_f32 v[28:29], v[28:29], v[{g2+2}:{g2+3}]
        v_cvt_pk_bf16_f32 v{44+2*tt}, v26, v27
        v_cvt_pk_bf16_f32 v{45+2*tt}, v28, v29
        ds_write_b64 v6, v[{44+2*tt}:{45+2*tt}] offset:{5120*tt}
        buffer_store_dwordx2 v[{34+2*tt}:{35+2*tt}], v7, s[12:15], s{36+tt} offen
        """)
    for r in range(40, 44):
        k(f"v_mov_b32 v{r+8}, v{r}")
    for r in range(40, 44):
        k(f"v_permlane16_swap_b32 v{r}, v{r+8}")
    for r in range(40, 44):
        k(f"v_add_f32 v{r}, v{r}, v{r+8}")
    for r in range(40, 44):
        k(f"v_mov_b32 v{r+8}, v{r}")
    for r in range(40, 44):
        k(f"v_permlane32_swap_b32 v{r}, v{r+8}")
    for r in range(40, 44):
        k(f"v_add_f32 v{r}, v{r}, v{r+8}")
    k(f"""
    v_cmp_gt_u32 vcc, 16, v1
    v_cndmask_b32 v40, v42, v40, vcc
    v_cndmask_b32 v41, v43, v41, vcc
    s_lshl_b32 s31, s3, 8
    s_add_u32 s31, s31, 36864
    v_lshlrev_b32 v5, 3, v1
    v_add_u32 v5, s31, v5
    s_mov_b32 exec_hi, 0
    ds_write_b64 v5, v[40:41]
    s_mov_b64 exec, -1
    s_waitcnt lgkmcnt(0)
    s_barrier
    s_cmp_eq_u32 s3, 0
    s_cbranch_scc1 k2_stats
    """)
    k(f"""
    s_sub_u32 s31, s3, 1
    s_lshr_b32 s32, s31, 2
    s_and_b32 s31, s31, 3
    s_mul_i32 s33, s32, 5120
    s_lshl_b32 s34, s31, 10
    s_add_u32 s33, s33, s34
    s_add_u32 s33, s33, {K2_YL}
    v_add_u32 v6, s33, v3
    ds_read_b128 v[24:27], v6
    s_lshr_b32 s35, s21, 1
    s_mul_i32 s35, s35, 9
    s_and_b32 s36, s21, 1
    s_lshl_b32 s37, s36, 2
    s_add_u32 s37, s37, s35
    s_add_u32 s37, s37, s31
    s_add_u32 s38, s24, s32
    s_mul_i32 s38, s38, 18
    s_add_u32 s37, s37, s38
    s_lshl_b32 s37, s37, 10
    s_add_u32 s37, s37, {YY}
    s_waitcnt lgkmcnt(0)
    buffer_store_dwordx4 v[24:27], v3, s[12:15], s37 offen
    s_cmp_lg_u32 s31, 0
    s_cbranch_scc1 k2_done
    ds_read_b64 v[28:29], v6 offset:4096
    s_add_u32 s37, s35, 8
    s_add_u32 s37, s37, s38
    s_lshl_b32 s37, s37, 10
    s_lshl_b32 s36, s36, 3
    s_add_u32 s37, s37, s36
    s_add_u32 s37, s37, {YY}
    s_waitcnt lgkmcnt(0)
    buffer_store_dwordx2 v[28:29], v3, s[12:15], s37 offen
    s_branch k2_done
    """)
    k.label("k2_stats")
    k("v_lshlrev_b32 v5, 2, v1")
    for w in range(9):
        k(f"ds_read_b32 v{24+w}, v5 offset:{36864 + 256*w}")
    k("s_waitcnt lgkmcnt(0)")
    k("""
    v_add_f32 v24, v24, v25
    v_add_f32 v26, v26, v27
    v_add_f32 v28, v28, v29
    v_add_f32 v30, v30, v31
    v_add_f32 v24, v24, v26
    v_add_f32 v28, v28, v30
    v_add_f32 v24, v24, v32
    v_add_f32 v24, v24, v28
    """)
    k(f"""
    s_lshl_b32 s31, s21, 14
    s_lshl_b32 s32, s24, 7
    s_add_u32 s31, s31, s32
    s_add_u32 s31, s31, {STAT}
    buffer_store_dword v24, v5, s[12:15], s31 offen
    """)
    stamp(k, 3)
    stamp_flush(k, 4, 3, "k2", 90)
    k.label("k2_done")
    tl_end(k, 2)
    k("s_endpgm")
    return k, 96, K2_LDS


K3_R = 8
K3_ST = 18432
K3_GSL = K3_R * K3_ST
K3_GBL = K3_GSL + 2304
K3_LDS = K3_GBL + 2304 + 16


class VM:
    def __init__(self):
        self.ops = []

    def add(self, tag, n=1):
        self.ops += [tag] * n

    def need(self, *tags):
        last = max((i for i, t in enumerate(self.ops) if t in tags), default=-1)
        return len(self.ops) - 1 - last


def gen_k3(k):
    R, ST = K3_R, K3_ST
    LA = PRM.get("LA", 4)
    NA = 6
    S, D, DY = PRM.get("S", 3), 4, 4
    k(f"""
    s_load_dwordx2 s[56:57], s[0:1], 48
    s_and_b32 s20, s2, 7
    s_lshl_b32 s20, s20, 2
    s_bfe_u32 s21, s2, 0x20003
    s_add_u32 s20, s20, s21
    s_lshr_b32 s21, s2, 5
    s_waitcnt lgkmcnt(0)
    """)
    stamp(k, 0)
    if DIAG:
        k("s_memrealtime s[90:91]")
    k(f"""
    s_cmp_ge_u32 s3, 4
    s_cselect_b32 s8, s18, s16
    s_cselect_b32 s9, s19, s17
    s_cselect_b32 s22, 9216, 0
    s_and_b32 s9, s9, 0xffff
    s_mov_b32 s10, {576*4608*2}
    s_mov_b32 s11, 0x00020000
    s_and_b32 s23, s3, 3
    s_mul_i32 s24, s23, 2304
    s_add_u32 s22, s22, s24
    s_lshl_b32 s24, s21, 4
    s_lshl_b32 s25, s3, 1
    s_add_u32 s24, s24, s25
    s_mul_i32 s25, s24, {18*1024}
    s_add_u32 s25, s25, {YY}
    s_add_u32 s26, s25, {18*1024}
    s_mov_b32 s50, -1
    s_mov_b32 s51, 0xffff
    s_mov_b32 s52, 0x3ffff
    s_mov_b32 s53, 0
    s_and_b32 s27, s23, 1
    s_mul_i32 s27, s27, {8*9216}
    s_mul_i32 s28, s20, 288
    s_add_u32 s27, s27, s28
    s_lshr_b32 s28, s23, 1
    s_mul_i32 s54, s28, {16*9216}
    s_mul_i32 s55, s28, {144*9216}
    """)
    for i in range(3):
        k(f"""
        v_add_u32 v7, {48*i}, v1
        v_mul_u32_u24 v8, 0xe39, v7
        v_lshrrev_b32 v8, 16, v8
        v_mul_u32_u24 v9, 18, v8
        v_sub_u32 v9, v7, v9
        v_mul_u32_u24 v8, 9216, v8
        v_lshl_add_u32 v8, v9, 4, v8
        v_add_u32 v{10+i}, s27, v8
        """)

    def ybuf(st, tt):
        return 72 + 8 * (st % 5) + 4 * tt

    def dma_parts(st):
        parts = []
        for i in range(3):
            p = []
            if i == 0:
                p += [f"s_add_u32 s30, s22, {(st % R) * ST}",
                      f"s_add_u32 s29, s{54 if st % 9 < 8 else 55}, {tile_of(st, 0) * 16 * 9216}"]
            p += [f"s_add_u32 m0, s30, {768*i}", "s_mov_b64 exec, s[50:51]",
                  f"buffer_load_dwordx4 v{10+i}, s[8:11], s29 offen lds", "s_mov_b64 exec, -1"]
            parts.append((p, f"w{st}"))
        return parts

    def y_parts(st):
        parts = []
        for tt in range(2):
            p = []
            if tt == 0 and st % 4 == 0 and st > 0:
                p += ["s_add_u32 s25, s25, 4096", "s_add_u32 s26, s26, 4096"]
            y = ybuf(st, tt)
            p.append(f"buffer_load_dwordx4 v[{y}:{y+3}], v3, s[12:15], s{25+tt} offen offset:{(st * 1024) % 4096} sc1")
            parts.append((p, f"y{st}"))
        return parts

    vm0 = VM()

    def emit(parts, vm, loop=False):
        for p, tag in parts:
            if loop and "nodma" in ABL:
                continue
            for ln in p:
                k(ln)
            vm.add(tag)

    emit(dma_parts(0), vm0)
    k(f"""
    v_bfe_u32 v7, v1, 2, 2
    v_lshl_add_u32 v7, v4, 2, v7
    v_mul_u32_u24 v7, 288, v7
    v_and_b32 v8, 3, v1
    v_lshl_add_u32 v13, v8, 3, v7
    v_add_u32 v14, {3*ST}, v13
    v_add_u32 v15, {6*ST}, v13
    v_and_b32 v7, 15, v1
    v_lshlrev_b32 v8, 5, v4
    v_lshl_add_u32 v8, v7, 4, v8
    v_add_u32 v8, {K3_GBL}, v8
    v_mov_b32 v9, {K3_GBL + 2304}
    v_cmp_gt_u32 vcc, 2, v7
    v_cndmask_b32 v16, v9, v8, vcc
    v_mov_b32 v19, 128
    v_cndmask_b32 v19, 0, v19, vcc
    v_mov_b32 v20, 0
    v_mov_b32 v21, 0
    v_mov_b32 v22, 0
    v_mov_b32 v23, 0
    ds_write_b128 v9, v[20:23]
    s_mul_i32 s27, s3, 288
    s_add_u32 s28, s27, {K3_GBL}
    s_add_u32 s27, s27, {GSB}
    s_mov_b32 m0, s28
    s_mov_b64 exec, s[52:53]
    buffer_load_dwordx4 v3, s[12:15], s27 offen lds
    s_mov_b64 exec, -1
    """)
    vm0.add("gsb")
    for st in range(1, D):
        emit(dma_parts(st), vm0)
    k(f"""
    s_lshl_b32 s33, s21, 8
    s_add_u32 s33, s33, {CNT + 32*256}
    v_mov_b32 v17, s33
    s_mov_b32 s37, 0
    s_cmp_lg_u32 s3, 7
    s_cbranch_scc1 k3_ready
    s_mov_b64 exec, 1
    """)
    k.label("k3_poll")
    k("""
    global_load_dword v18, v17, s[86:87] sc1
    s_waitcnt vmcnt(0)
    v_readfirstlane_b32 s38, v18
    s_add_u32 s37, s37, 1
    s_cmp_ge_u32 s38, 32
    s_cbranch_scc1 k3_ready
    s_cmp_lt_u32 s37, 0x400000
    s_cbranch_scc0 k3_ready
    s_sleep 2
    s_branch k3_poll
    """)
    k.label("k3_ready")
    k("s_mov_b64 exec, -1")
    k("s_barrier")
    for st in range(D):
        emit(y_parts(st), vm0)
    k(f"""
    v_and_b32 v17, 31, v1
    s_lshl_b32 s27, s24, 4
    v_add_u32 v17, s27, v17
    v_lshlrev_b32 v17, 3, v17
    v_lshrrev_b32 v18, 5, v1
    v_mul_u32_u24 v18, {2*16384}, v18
    v_add_u32 v17, v17, v18
    s_mov_b32 s27, {STAT}
    s_mov_b32 s28, {STAT + 16384}
    buffer_load_dwordx2 v[6:7], v17, s[12:15], s27 offen sc1
    buffer_load_dwordx2 v[8:9], v17, s[12:15], s28 offen sc1
    """)
    vm0.add("stat", 2)
    k("""
    s_and_b32 s60, s23, 1
    s_mul_i32 s60, s60, 9216
    s_lshr_b32 s61, s23, 1
    s_lshl_b32 s61, s61, 5
    s_add_u32 s60, s60, s61
    s_add_u32 s61, s60, 64
    s_add_u32 s62, s60, 128
    s_add_u32 s63, s60, 192
    s_add_u32 s64, s60, 256
    s_cmp_lt_u32 s23, 2
    s_cselect_b32 s64, s64, s63
    """)

    def acc(tt, m, ft):
        return 112 + ((tt * 2 + m) * 9 + ft) * 4

    frs = [(m, ft) for ft in range(9) for m in range(2)]
    GB = 20

    def body(grp):
        import copy
        vm = copy.deepcopy(vm0)
        nx = 5 if grp == 0 and "nogs" not in ABL else 0
        per = 18 + nx
        seq = []
        xi = 0
        for j in range(18):
            seq.append(("m", j))
            if nx and j % 4 == 1 and xi < nx:
                seq.append(("x", xi)); xi += 1
        while xi < nx:
            seq.append(("x", xi)); xi += 1
        NQ = 18 * per

        def areg(q):
            return 48 + 4 * (q % NA)

        def read_frag(q):
            st, j = divmod(q, per)
            kind, idx = seq[j]
            sl = st % R
            base = 13 + sl // 3
            a = areg(q)
            if "halfread" in ABL and q >= 12 and (q & 1):
                k("s_nop 0")
                k("s_nop 0")
                return
            if kind == "m":
                m, ft = frs[idx]
                off = (sl % 3) * ST + m * 9216 + ft * 32
                k(f"ds_read_b64_tr_b16 v[{a}:{a+1}], v{base} offset:{off}")
                k(f"ds_read_b64_tr_b16 v[{a+2}:{a+3}], v{base} offset:{off + 4608}")
            else:
                t = 17 + (idx & 1)
                off = (sl % 3) * ST
                k(f"v_add_u32 v{t}, s{60+idx}, v{base}")
                k(f"ds_read_b64_tr_b16 v[{a}:{a+1}], v{t} offset:{off}")
                k(f"ds_read_b64_tr_b16 v[{a+2}:{a+3}], v{t} offset:{off + 4608}")

        BJ = PRM.get("BJ0", 8) if grp == 0 else PRM.get("BJ1", 2)
        VJ = PRM.get("VJ0", 12) if grp == 0 else BJ
        if PRM.get("P%d" % grp, 0):
            k(f"s_setprio {PRM['P%d' % grp]}")
        k(f"s_waitcnt vmcnt({vm.need('w0', 'y0', 'gsb')}) lgkmcnt(0)")
        k("s_barrier")
        stamp(k, 1)
        for t in range(18 + S * grp):
            st = t - S * grp
            parts = []
            if t + D < 18:
                parts += dma_parts(t + D)
            ys = st + DY
            if grp == 0:
                if ys < 18:
                    parts += y_parts(ys)
            else:
                if D <= ys < 18:
                    parts += y_parts(ys)
            if st < 0:
                k(f"s_waitcnt vmcnt({vm.need(f'w{t+1}')})")
                k("s_barrier")
                emit(parts, vm)
                continue
            if st == 0:
                if grp == 0:
                    k(f"ds_read_b128 v[{GB}:{GB+3}], v16")
                else:
                    k(f"s_waitcnt vmcnt({vm.need('y0')})")
                for q in range(LA):
                    read_frag(q)
            pi = 0
            for j in range(per):
                q = st * per + j
                if j == BJ and t <= 18:
                    need = []
                    if t + 1 < 18:
                        need.append(f"w{t+1}")
                    if st + 1 < 18:
                        need.append(f"y{st+1}")
                    if need:
                        k(f"s_waitcnt vmcnt({vm.need(*need)})")
                    if t < 17 or (grp == 1 and t == 18):
                        k("s_barrier")
                    if st in (0, 6, 12):
                        stamp(k, 2 + (0, 6, 12).index(st))
                elif j == BJ and st + 1 < 18:
                    k(f"s_waitcnt vmcnt({vm.need(f'y{st+1}')})")
                if grp == 0 and j == 2 and st < 17:
                    g_ = GB + 4 * ((st + 1) & 1)
                    k("v_add_u32 v16, v16, v19")
                    k(f"ds_read_b128 v[{g_}:{g_+3}], v16")
                if q + LA < NQ:
                    read_frag(q + LA)
                    k(f"s_waitcnt lgkmcnt({2*LA})")
                else:
                    k(f"s_waitcnt lgkmcnt({2*(NQ-1-q)})")
                kind, idx = seq[j]
                a = areg(q)
                if kind == "m":
                    m, ft = frs[idx]
                    for tt in range(2):
                        c = acc(tt, m, ft)
                        y = ybuf(st, tt)
                        cs = "0" if st == 0 else f"v[{c}:{c+3}]"
                        k(f"v_mfma_f32_16x16x32_bf16 v[{c}:{c+3}], v[{a}:{a+3}], v[{y}:{y+3}], {cs}")
                else:
                    gc = 28 + 4 * idx
                    g_ = GB + 4 * (st & 1)
                    cs = "0" if st == 0 else f"v[{gc}:{gc+3}]"
                    k(f"v_mfma_f32_16x16x32_bf16 v[{gc}:{gc+3}], v[{a}:{a+3}], v[{g_}:{g_+3}], {cs}")
                if grp == 1 and j == BJ and "spread1" not in ABL:
                    emit(parts, vm, True)
                    pi = len(parts)
                elif j >= VJ and pi < len(parts):
                    emit(parts[pi:pi + 1], vm, True)
                    pi += 1
                if "fake2p" in ABL and st >= 8 and kind == "m":
                    fk = (st * 18 + idx) % 9
                    ops = ["v_fma_f32 v2, v2, v4, v1", "v_fma_f32 v5, v5, v4, v1", "v_exp_f32 v2, v2", "v_mul_f32 v5, v5, v2",
                           "v_fma_f32 v2, v2, v4, v1", "v_rcp_f32 v5, v5", "v_mul_f32 v2, v5, v2", "v_add_f32 v5, 1.0, v5",
                           "v_fma_f32 v2, v2, v4, v1"]
                    k(ops[fk]); k(ops[(fk + 4) % 9])
                    if idx % 6 == 0:
                        k(ops[(fk + 7) % 9])
                    if idx == 9 and st % 2 == 0:
                        k(f"s_mul_i32 s27, s24, {144*1024}")
                        k(f"s_add_u32 s27, s27, {HH + 0}")
                        k(f"s_mul_i32 s28, s20, {4608}")
                        k(f"s_add_u32 s27, s27, s28")
                        k(f"buffer_store_dwordx4 v[112:115], v3, s[12:15], s27 offen offset:{((st-8)//2 % 4)*1024}")
                        vm.add("st")
                if t == 14 and j == per - 1:
                    k(f"""
                    v_min_u32 v5, 161, v0
                    s_mul_i32 s31, s2, {162*128}
                    v_lshl_add_u32 v5, v5, 7, s31
                    global_load_dword v2, v5, s[56:57]
                    """)
                    vm.add("pf")
            assert pi == len(parts)
        stamp(k, 5)
        if grp == 0:
            k(f"""
            v_and_b32 v5, 15, v1
            v_mul_u32_u24 v5, 576, v5
            v_lshl_add_u32 v5, v4, 4, v5
            s_and_b32 s31, s3, 1
            s_mul_i32 s31, s31, 1152
            s_lshr_b32 s32, s3, 1
            s_lshl_b32 s32, s32, 6
            s_add_u32 s31, s31, s32
            s_add_u32 s31, s31, {K3_GSL}
            v_add_u32 v5, s31, v5
            s_mov_b32 exec_lo, 0x00030003
            s_mov_b32 exec_hi, 0x00030003
            ds_write_b128 v5, v[28:31]
            ds_write_b128 v5, v[32:35] offset:128
            ds_write_b128 v5, v[36:39] offset:256
            ds_write_b128 v5, v[40:43] offset:384
            s_cmp_ge_u32 s3, 2
            s_cbranch_scc1 k3_gs_w
            ds_write_b128 v5, v[44:47] offset:512
            """)
            k.label("k3_gs_w")
            k("""
            s_mov_b64 exec, -1
            s_waitcnt lgkmcnt(0)
            s_barrier
            """)

    k("s_cmp_ge_u32 s3, 4")
    k("s_cbranch_scc1 k3_grp1")
    body(0)
    k("s_branch k3_epi")
    k.label("k3_grp1")
    body(1)
    k.label("k3_epi")
    k("s_setprio 0")
    if "noepi" in ABL:
        k("s_branch k3_done")
    k("""
    s_nop 7
    v_add_f32 v20, v6, v8
    v_add_f32 v21, v7, v9
    v_mov_b32 v22, v20
    v_mov_b32 v23, v21
    v_permlane32_swap_b32 v20, v22
    v_permlane32_swap_b32 v21, v23
    v_add_f32 v20, v20, v22
    v_add_f32 v21, v21, v23
    v_mul_f32 v20, 0x3ae38e39, v20
    v_mul_f32 v21, 0x3ae38e39, v21
    v_fma_f32 v21, -v20, v20, v21
    v_max_f32 v21, 0, v21
    """)
    bf16_round(k, 21, 21)
    k("v_add_f32 v21, 0x3727c5ac, v21")
    bf16_round(k, 21, 21)
    k("v_sqrt_f32 v21, v21")
    bf16_round(k, 21, 21)
    k("v_rcp_f32 v21, v21")
    bf16_round(k, 20, 20)
    k("""
    v_mul_f32 v20, v20, v21
    v_sub_f32 v20, 0, v20
    v_mov_b32 v24, v21
    v_mov_b32 v26, v21
    v_mov_b32 v28, v20
    v_mov_b32 v30, v20
    v_permlane16_swap_b32 v24, v26
    v_permlane16_swap_b32 v28, v30
    """)
    k(f"""
    v_lshlrev_b32 v5, 4, v4
    v_add_u32 v5, {K3_GSL}, v5
    s_mul_i32 s27, s24, {144*1024}
    s_add_u32 s27, s27, {HH}
    s_lshr_b32 s28, s20, 1
    s_mul_i32 s28, s28, {9*1024}
    s_add_u32 s27, s27, s28
    s_and_b32 s28, s20, 1
    s_lshl_b32 s42, s28, 3
    s_add_u32 s42, s42, s27
    s_add_u32 s42, s42, 8192
    s_add_u32 s43, s42, {144*1024}
    s_lshl_b32 s28, s28, 12
    s_add_u32 s32, s27, s28
    s_add_u32 s33, s32, {144*1024}
    s_mov_b32 s40, 0xbfb8aa3b
    s_mov_b32 s41, 0xbfb8aa3b
    """)

    def gsreg(ft):
        return 48 + 16 * (ft % 2)

    def read_gs(ft):
        g = gsreg(ft)
        for a in range(4):
            k(f"ds_read_b128 v[{g+4*a}:{g+4*a+3}], v5 offset:{a*576 + ft*64}")

    read_gs(0)
    for ft in range(9):
        g = gsreg(ft)
        if "fake2p" in ABL and ft < 5:
            continue
        if ft < 8:
            read_gs(ft + 1)
        k(f"s_waitcnt lgkmcnt({4 if ft < 8 else 0})")
        U4 = [(tt, h) for tt in range(2) for h in range(2)]
        for u, (tt, h) in enumerate(U4):
            mr = 28 + 2 * tt
            k(f"v_pk_fma_f32 v[{80+2*u}:{81+2*u}], v[{g+2*h}:{g+2*h+1}], v[{mr}:{mr+1}], v[{g+4+2*h}:{g+4+2*h+1}] op_sel_hi:[1,0,1]")
        for u, (tt, h) in enumerate(U4):
            mr = 28 + 2 * tt
            k(f"v_pk_fma_f32 v[{88+2*u}:{89+2*u}], v[{g+8+2*h}:{g+8+2*h+1}], v[{mr}:{mr+1}], v[{g+12+2*h}:{g+12+2*h+1}] op_sel_hi:[1,0,1]")
        for u, (tt, h) in enumerate(U4):
            r = 24 + 2 * tt
            ga = acc(tt, 0, ft)
            k(f"v_pk_fma_f32 v[{80+2*u}:{81+2*u}], v[{ga+2*h}:{ga+2*h+1}], v[{r}:{r+1}], v[{80+2*u}:{81+2*u}] op_sel_hi:[1,0,1]")
        for u, (tt, h) in enumerate(U4):
            k(f"v_pk_mul_f32 v[{96+2*u}:{97+2*u}], v[{80+2*u}:{81+2*u}], s[40:41]")
        for u, (tt, h) in enumerate(U4):
            r = 24 + 2 * tt
            ua = acc(tt, 1, ft)
            k(f"v_pk_fma_f32 v[{88+2*u}:{89+2*u}], v[{ua+2*h}:{ua+2*h+1}], v[{r}:{r+1}], v[{88+2*u}:{89+2*u}] op_sel_hi:[1,0,1]")
        for e in range(8):
            if "notrans" not in ABL:
                k(f"v_exp_f32 v{96+e}, v{96+e}")
        for u in range(4):
            k(f"v_pk_mul_f32 v[{80+2*u}:{81+2*u}], v[{80+2*u}:{81+2*u}], v[{88+2*u}:{89+2*u}]")
        for u in range(4):
            k(f"v_pk_add_f32 v[{96+2*u}:{97+2*u}], v[{96+2*u}:{97+2*u}], 1.0 op_sel_hi:[1,0]")
        for e in range(8):
            if "notrans" not in ABL:
                k(f"v_rcp_f32 v{96+e}, v{96+e}")
        for u in range(4):
            k(f"v_pk_mul_f32 v[{80+2*u}:{81+2*u}], v[{80+2*u}:{81+2*u}], v[{96+2*u}:{97+2*u}]")
        pb = (ft >> 1) & 1
        for u, (tt, h) in enumerate(U4):
            o = (32 if pb == 0 else 40) + 4 * tt + 2 * (ft & 1) + h
            k(f"v_cvt_pk_bf16_f32 v{o}, v{80+2*u}, v{81+2*u}")
        for tt in range(2):
            o = (32 if pb == 0 else 40) + 4 * tt
            if "nostore" in ABL:
                continue
            if ft == 8:
                k(f"buffer_store_dwordx2 v[{o}:{o+1}], v3, s[12:15], s{42+tt} offen sc1")
            elif ft & 1:
                k(f"buffer_store_dwordx4 v[{o}:{o+3}], v3, s[12:15], s{32+tt} offen offset:{(ft>>1)*1024} sc1")
    stamp(k, 6)
    if DIAG:
        k("s_memrealtime s[92:93]")
        k("s_waitcnt lgkmcnt(0)")
        k("s_sub_u32 s77, s92, s90")
        k("s_add_u32 s77, s77, s70")
    stamp_flush(k, 8, 3, "k3")
    k.label("k3_done")
    k(f"""
    s_waitcnt vmcnt(0) lgkmcnt(0)
    s_barrier
    s_lshl_b32 s33, s21, 8
    s_add_u32 s33, s33, {CNT + 40*256}
    v_mov_b32 v9, s33
    s_cmp_lg_u32 s3, 7
    s_cbranch_scc1 k3_nosig
    v_mov_b32 v8, 1
    s_mov_b64 exec, 1
    global_atomic_add v9, v8, s[86:87]
    s_mov_b64 exec, -1
    """)
    k.label("k3_nosig")
    return gen_k4(k)


K4_LDS = 160 * 1024
K4_GRID = 240


def gen_k4(k):
    NS = PRM.get("NS4", 3)
    k(f"""
    s_cmp_ge_u32 s2, {K4_GRID}
    s_cbranch_scc1 k4_done
    s_and_b32 s20, s2, 7
    s_mul_i32 s20, s20, 30
    s_lshr_b32 s21, s2, 3
    s_add_u32 s22, s20, s21
    s_cmp_ge_u32 s22, 234
    s_cbranch_scc1 k4_done
    s_load_dwordx2 s[16:17], s[0:1], 48
    s_load_dwordx2 s[18:19], s[0:1], 72
    s_mul_i32 s20, s22, 0x1c72
    s_lshr_b32 s20, s20, 16
    s_mul_i32 s21, s20, 9
    s_sub_u32 s21, s22, s21
    s_waitcnt lgkmcnt(0)
    """)
    stamp(k, 0)
    srd(k, 8, 16, 4608 * 576 * 2)
    srd(k, 44, 18, 2048 * 576 * 2)
    k(f"s_mul_i32 s22, s20, 5")
    k(f"s_mul_i32 s23, s3, {18*1024}")
    for tt in range(5):
        k(f"""
        s_add_u32 s29, s22, {tt}
        s_min_u32 s29, s29, 127
        s_mul_i32 s29, s29, {144*1024}
        s_add_u32 s29, s29, s23
        s_add_u32 s{24+tt}, s29, {HH}
        """)
    k(f"""
    s_mul_i32 s30, s3, {NS*4096}
    s_mul_i32 s31, s3, {576*1152}
    s_lshl_b32 s29, s21, 7
    s_add_u32 s31, s31, s29
    v_lshrrev_b32 v7, 3, v1
    v_and_b32 v8, 7, v1
    v_bfe_u32 v9, v7, 1, 2
    v_lshlrev_b32 v9, 1, v9
    v_xor_b32 v8, v8, v9
    v_mul_u32_u24 v7, 1152, v7
    v_lshl_add_u32 v7, v8, 4, v7
    v_add_u32 v10, s31, v7
    v_add_u32 v11, {8*1152}, v10
    """)
    k(f"""
    v_bfe_u32 v7, v1, 2, 2
    v_lshl_add_u32 v7, v4, 2, v7
    v_bfe_u32 v8, v7, 1, 2
    v_lshlrev_b32 v8, 1, v8
    v_bfe_u32 v9, v1, 1, 1
    v_lshlrev_b32 v7, 7, v7
    v_and_b32 v16, 1, v1
    v_lshl_add_u32 v7, v16, 3, v7
    v_add_u32 v7, s30, v7
    """)
    for nt in range(4):
        k(f"""
        v_or_b32 v16, {2*nt}, v9
        v_xor_b32 v16, v16, v8
        v_lshl_add_u32 v{12+nt}, v16, 4, v7
        """)

    def hbuf(it, tt):
        return 32 + 20 * (it % NS) + 4 * tt if NS <= 4 else None

    vm4 = VM()

    def issue_w(it):
        for i in range(4):
            half = i >> 1
            k(f"s_mov_b32 s29, {tile_of(it, half) * 16 * 1152}")
            k(f"s_add_u32 m0, s30, {(it % NS) * 4096 + 1024 * i}")
            k(f"buffer_load_dwordx4 v{10 + (i & 1)}, s[8:11], s29 offen lds")
        vm4.add(f"w{it}", 4)

    def issue_h(it):
        if it % 4 == 0 and it > 0:
            for tt in range(5):
                k(f"s_add_u32 s{24+tt}, s{24+tt}, 4096")
        for tt in range(5):
            h = hbuf(it, tt)
            k(f"buffer_load_dwordx4 v[{h}:{h+3}], v3, s[12:15], s{24+tt} offen offset:{(it % 4) * 1024} sc1")
        vm4.add(f"h{it}", 5)

    def acc(tt, nt):
        return 128 + (tt * 4 + nt) * 4

    NIT = 18
    for it in range(NS - 1):
        issue_w(it)
    k(f"""
    s_lshr_b32 s33, s22, 4
    s_add_u32 s34, s22, 4
    s_min_u32 s34, s34, 127
    s_lshr_b32 s34, s34, 4
    s_lshl_b32 s33, s33, 8
    s_lshl_b32 s34, s34, 8
    s_add_u32 s33, s33, {CNT + 40*256}
    s_add_u32 s34, s34, {CNT + 40*256}
    v_mov_b32 v17, s33
    v_mov_b32 v18, s34
    s_mov_b32 s37, 0
    s_cmp_lg_u32 s3, 7
    s_cbranch_scc1 k4_ready
    s_mov_b64 exec, 1
    """)
    k.label("k4_poll")
    k("""
    global_load_dword v19, v17, s[86:87] sc1
    global_load_dword v20, v18, s[86:87] sc1
    s_waitcnt vmcnt(0)
    v_min_u32 v19, v19, v20
    v_readfirstlane_b32 s38, v19
    s_add_u32 s37, s37, 1
    s_cmp_ge_u32 s38, 32
    s_cbranch_scc1 k4_ready
    s_cmp_lt_u32 s37, 0x400000
    s_cbranch_scc0 k4_ready
    s_sleep 2
    s_branch k4_poll
    """)
    k.label("k4_ready")
    k("s_mov_b64 exec, -1")
    k("s_barrier")
    for it in range(NS - 1):
        issue_h(it)
    for it in range(NIT):
        if it + NS - 1 < NIT:
            issue_w(it + NS - 1)
            issue_h(it + NS - 1)
        k(f"s_waitcnt vmcnt({vm4.need(f'w{it}', f'h{it}')})")
        if it in (0, 1, 9):
            stamp(k, 1 + (0, 1, 9).index(it))
        for nt in range(4):
            a = 112 + 4 * nt
            off = (it % NS) * 4096
            k(f"ds_read_b64_tr_b16 v[{a}:{a+1}], v{12+nt} offset:{off}")
            k(f"ds_read_b64_tr_b16 v[{a+2}:{a+3}], v{12+nt} offset:{off + 2048}")
        for nt in range(4):
            a = 112 + 4 * nt
            k(f"s_waitcnt lgkmcnt({2*(3-nt)})")
            for tt in range(5):
                c = acc(tt, nt)
                h = hbuf(it, tt)
                cs = "0" if it == 0 else f"v[{c}:{c+3}]"
                k(f"v_mfma_f32_16x16x32_bf16 v[{c}:{c+3}], v[{a}:{a+3}], v[{h}:{h+3}], {cs}")
    stamp(k, 4)
    k("s_barrier")
    stamp(k, 5)
    k(f"s_mul_i32 s33, s3, 20480")
    k("v_add_u32 v5, s33, v3")
    for u in range(20):
        c = 128 + 4 * u
        k(f"ds_write_b128 v5, v[{c}:{c+3}] offset:{1024*u}")
    k("""
    s_mov_b32 s34, s3
    s_add_u32 s35, s3, 8
    s_add_u32 s36, s3, 16
    s_cmp_lt_u32 s3, 4
    s_cselect_b32 s36, s36, s35
    v_lshlrev_b32 v9, 3, v1
    v_lshlrev_b32 v11, 4, v4
    v_and_b32 v12, 15, v1
    v_mul_u32_u24 v12, 1152, v12
    v_lshl_add_u32 v12, v4, 3, v12
    """)
    for j in range(3):
        k(f"""
        s_lshr_b32 s37, s{34+j}, 2
        s_and_b32 s38, s{34+j}, 3
        s_add_u32 s37, s37, s22
        s_min_u32 s39, s37, 127
        s_mul_i32 s40, s39, {144*128}
        s_lshl_b32 s41, s21, 11
        s_add_u32 s40, s40, s41
        s_lshl_b32 s41, s38, 9
        s_add_u32 s40, s40, s41
        s_add_u32 s40, s40, {X1}
        buffer_load_dwordx2 v[{120+2*j}:{121+2*j}], v9, s[12:15], s40 offen sc1
        s_lshl_b32 s40, s21, 8
        s_lshl_b32 s41, s38, 6
        s_add_u32 s40, s40, s41
        s_add_u32 s40, s40, {MOD + 5*576*4}
        buffer_load_dwordx4 v[{208+4*j}:{211+4*j}], v11, s[12:15], s40 offen
        s_mul_i32 s40, s37, {16*1152}
        s_lshl_b32 s41, s21, 7
        s_add_u32 s40, s40, s41
        s_lshl_b32 s41, s38, 5
        s_add_u32 s{50+j}, s40, s41
        s_lshl_b32 s40, s{34+j}, 10
        v_add_u32 v{6+j}, s40, v3
        v_add_u32 v{13+j}, {4*20480}, v{6+j}
        """)
    k("s_waitcnt lgkmcnt(0)")
    k("s_barrier")

    def rr(j, sl):
        return 16 + 4 * j if sl == 0 else 28 + (j * 7 + sl - 1) * 4

    for j in range(3):
        for sl in range(8):
            r = rr(j, sl)
            k(f"ds_read_b128 v[{r}:{r+3}], v{(6 if sl < 4 else 13)+j} offset:{(sl % 4)*20480}")
    for j in range(3):
        k(f"s_waitcnt lgkmcnt({min(15, 8*(2-j))})")
        for sl in range(1, 8):
            r = rr(j, sl)
            k(f"v_pk_add_f32 v[{16+4*j}:{17+4*j}], v[{16+4*j}:{17+4*j}], v[{r}:{r+1}]")
            k(f"v_pk_add_f32 v[{18+4*j}:{19+4*j}], v[{18+4*j}:{19+4*j}], v[{r+2}:{r+3}]")
    k("s_waitcnt vmcnt(0)")
    for j in range(3):
        c = 16 + 4 * j
        gb = 208 + 4 * j
        xr = 120 + 2 * j
        t = 32 + 8 * j
        k(f"""
        v_cvt_pk_bf16_f32 v{t}, v{c}, v{c+1}
        v_cvt_pk_bf16_f32 v{t+1}, v{c+2}, v{c+3}
        v_lshlrev_b32 v{c}, 16, v{t}
        v_and_b32 v{c+1}, 0xffff0000, v{t}
        v_lshlrev_b32 v{c+2}, 16, v{t+1}
        v_and_b32 v{c+3}, 0xffff0000, v{t+1}
        v_pk_mul_f32 v[{c}:{c+1}], v[{c}:{c+1}], v[{gb}:{gb+1}]
        v_pk_mul_f32 v[{c+2}:{c+3}], v[{c+2}:{c+3}], v[{gb+2}:{gb+3}]
        v_cvt_pk_bf16_f32 v{t}, v{c}, v{c+1}
        v_cvt_pk_bf16_f32 v{t+1}, v{c+2}, v{c+3}
        v_lshlrev_b32 v{c}, 16, v{t}
        v_and_b32 v{c+1}, 0xffff0000, v{t}
        v_lshlrev_b32 v{c+2}, 16, v{t+1}
        v_and_b32 v{c+3}, 0xffff0000, v{t+1}
        v_lshlrev_b32 v{t+2}, 16, v{xr}
        v_and_b32 v{t+3}, 0xffff0000, v{xr}
        v_lshlrev_b32 v{t+4}, 16, v{xr+1}
        v_and_b32 v{t+5}, 0xffff0000, v{xr+1}
        v_pk_add_f32 v[{c}:{c+1}], v[{c}:{c+1}], v[{t+2}:{t+3}]
        v_pk_add_f32 v[{c+2}:{c+3}], v[{c+2}:{c+3}], v[{t+4}:{t+5}]
        v_cvt_pk_bf16_f32 v{t+6}, v{c}, v{c+1}
        v_cvt_pk_bf16_f32 v{t+7}, v{c+2}, v{c+3}
        buffer_store_dwordx2 v[{t+6}:{t+7}], v12, s[44:47], s{50+j} offen
        """)
    stamp(k, 6)
    stamp_flush(k, 7, 3, "k4")
    k.label("k4_done")
    tl_end(k, 4)
    k("s_endpgm")
    return k, 256, K4_LDS


KERNELS = []


def build(kernels, path):
    head = ["; adaLN + sliding dilated local attention + SwiGLU block, multi-kernel pipeline (generated)"]
    texts, descs = [], []
    for (gen, grid, block) in kernels:
        k, vgpr, lds = gen()
        head.append(f"; @launch kernel={k.name} grid=({grid},1,1) block=({block},1,1) lds={lds}")
        t, d = kernel_text(k, vgpr)
        texts.append(t)
        descs.append(d)
    out = "\n".join(head) + "\n.amdgcn_target \"amdgcn-amd-amdhsa--gfx950\"\n.text\n" + "\n".join(texts) + \
        "\n.section .rodata,\"a\"\n" + "".join(descs)
    open(path, "w").write(out)


if __name__ == "__main__":
    if len(sys.argv) > 2 and sys.argv[2] == "diag":
        DIAG = True
    for a_ in sys.argv[3:]:
        if "=" in a_:
            PRM[a_.split("=")[0]] = int(a_.split("=")[1])
        else:
            ABL.add(a_)
    build([(gen_k0, K0_GRID, 256), (gen_k1, 256, 512)], sys.argv[1] if len(sys.argv) > 1 else "k.s")
```

```python
import sys
from asmlib import K, kernel_text

NAME = "adaLN_cond__sliding_local_dilated__glu_gated_swiglu__prompt"

MOD = 0x0000000
GSB = 0x0010000
CNT = 0x0020000
STAT = 0x0040000
XN = 0x0100000
WQ = 0x0400000
WOP = 0x0700000
OO = 0x0800000
X1 = 0x0B00000
YY = 0x0E00000
HH = 0x1100000
W2P = 0x2400000
WS_BYTES = 268435456

LOG2E = "0x3fb8aa3b"
PART = 0x2400000


def tile_of(ks, half):
    p, i = divmod(ks, 9)
    if i < 8:
        return (2 * p + (i >> 2)) * 9 + 2 * (i & 3) + half
    return (2 * p + half) * 9 + 8


def srd(k, d, lo, nbytes):
    k(f"""
    s_mov_b32 s{d}, s{lo}
    s_and_b32 s{d+1}, s{lo+1}, 0xffff
    s_mov_b32 s{d+2}, {nbytes}
    s_mov_b32 s{d+3}, 0x00020000
    """)


DIAG = False
ABL = set()
PRM = {}


def stamp(k, idx):
    pass


def stamp_flush(k, n, wave_sgpr, tag, vb=200):
    pass


TSN = [0]


def ts(k, idx, vt=2):
    if not DIAG:
        return
    TSN[0] += 1
    n = TSN[0]
    k(f"""
    s_cmp_lg_u32 s3, 7
    s_cbranch_scc1 ts_skip_{n}
    s_memrealtime s[98:99]
    s_memtime s[94:95]
    s_lshl_b32 s97, s2, 7
    s_add_u32 s97, s97, {0x3000000 + 4*idx}
    s_waitcnt lgkmcnt(0)
    v_mov_b32 v{vt}, s98
    s_mov_b64 exec, 1
    buffer_store_dword v{vt}, off, s[12:15], s97
    v_mov_b32 v{vt}, s94
    buffer_store_dword v{vt}, off, s[12:15], s97 offset:64
    s_mov_b64 exec, -1
    """)
    k.label(f"ts_skip_{n}")


TL = 0x3000000


def tl_start(k):
    pass


def tl_end(k, kid):
    pass


def bf16_round(k, dst, src, tmp=None):
    k(f"v_cvt_pk_bf16_f32 v{dst}, v{src}, v{src}")
    k(f"v_lshlrev_b32 v{dst}, 16, v{dst}")


K0_MOD, K0_XN, K0_WQ, K0_WO = 108, 64, 144, 54
K0_GRID = K0_MOD + K0_XN + K0_WQ + K0_WO


def pack_chunk(k, srd_src, rowstride, zero_hi_mask_sgpr=None):
    for r in range(8):
        k(f"s_mov_b32 s{24+r}, {r*rowstride}")
    for r in range(8):
        k(f"buffer_load_dwordx2 v[{16+2*r}:{17+2*r}], v10, s[{srd_src}:{srd_src+3}], s{24+r} offen")
    k("s_mov_b32 s32, 0x05040100")
    k("s_mov_b32 s33, 0x07060302")
    k("s_waitcnt vmcnt(0)")
    if zero_hi_mask_sgpr is not None:
        for r in range(8):
            k(f"v_cndmask_b32 v{17+2*r}, v{17+2*r}, 0, s[{zero_hi_mask_sgpr}:{zero_hi_mask_sgpr+1}]")
    for j in range(4):
        d = j >> 1
        sel = 32 + (j & 1)
        for q in range(4):
            lo = 16 + 2 * (2 * q) + d
            hi = 16 + 2 * (2 * q + 1) + d
            k(f"v_perm_b32 v{32+4*j+q}, v{hi}, v{lo}, s{sel}")
    for j in range(4):
        k(f"buffer_store_dwordx4 v[{32+4*j}:{35+4*j}], v11, s[12:15], 0 offen offset:{16*j}")


def gen_k0():
    k = K("prep_kernel")
    tl_start(k)
    k(f"""
    s_cmp_ge_u32 s2, {K0_GRID}
    s_cbranch_scc1 k0_done
    s_load_dwordx2 s[4:5], s[0:1], 0
    s_load_dwordx4 s[16:19], s[0:1], 8
    s_load_dwordx4 s[20:23], s[0:1], 56
    s_load_dwordx2 s[6:7], s[0:1], 88
    v_and_b32 v1, 63, v0
    v_lshrrev_b32 v2, 6, v0
    s_waitcnt lgkmcnt(0)
    """)
    srd(k, 12, 6, WS_BYTES)
    k(f"""
    v_readfirstlane_b32 s3, v2
    s_cmp_ge_u32 s2, {K0_MOD}
    s_cbranch_scc1 k0_not_mod
    """)
    k("""
    v_and_b32 v3, 3, v0
    v_lshrrev_b32 v4, 2, v0
    v_mul_u32_u24 v5, 6912, v4
    v_lshl_add_u32 v5, v3, 4, v5
    s_lshl_b32 s10, s2, 6
    v_add_u32 v5, s10, v5
    v_lshlrev_b32 v6, 1, v4
    """)
    for i in range(9):
        k(f"global_load_ushort v{60+i}, v6, s[20:21] offset:{128*i}")
    for i in range(9):
        k(f"global_load_dwordx4 v[{16+4*i}:{19+4*i}], v5, s[22:23]")
        if i < 8:
            k(f"v_add_u32 v5, {64*6912}, v5")
    for j in range(8):
        k(f"v_mov_b32 v{80+j}, 0")
    k("s_waitcnt vmcnt(9)")
    for i in range(9):
        c = 60 + i
        k(f"""
        v_lshlrev_b32 v{c}, 16, v{c}
        v_mul_f32 v70, 0xbfb8aa3b, v{c}
        v_exp_f32 v70, v70
        v_add_f32 v70, 1.0, v70
        v_rcp_f32 v70, v70
        v_mul_f32 v{c}, v{c}, v70
        """)
        bf16_round(k, c, c)
    for i in range(9):
        k(f"s_waitcnt vmcnt({8-i})")
        for q in range(4):
            w = 16 + 4 * i + q
            k(f"""
            v_lshlrev_b32 v71, 16, v{w}
            v_and_b32 v72, 0xffff0000, v{w}
            v_fmac_f32 v{80+2*q}, v{60+i}, v71
            v_fmac_f32 v{81+2*q}, v{60+i}, v72
            """)
    k("""
    v_lshlrev_b32 v7, 5, v0
    ds_write_b128 v7, v[80:83]
    ds_write_b128 v7, v[84:87] offset:16
    s_waitcnt lgkmcnt(0)
    s_barrier
    v_and_b32 v8, 31, v0
    v_lshrrev_b32 v9, 5, v0
    v_lshlrev_b32 v10, 10, v9
    v_lshl_add_u32 v10, v8, 2, v10
    """)
    for i in range(8):
        k(f"ds_read_b32 v{16+i}, v10 offset:{128*i}")
    k("s_waitcnt lgkmcnt(0)")
    k("""
    v_add_f32 v16, v16, v17
    v_add_f32 v18, v18, v19
    v_add_f32 v20, v20, v21
    v_add_f32 v22, v22, v23
    v_add_f32 v16, v16, v18
    v_add_f32 v20, v20, v22
    v_add_f32 v16, v16, v20
    v_lshlrev_b32 v11, 2, v0
    ds_write_b32 v11, v16 offset:8192
    s_waitcnt lgkmcnt(0)
    s_barrier
    v_cmp_gt_u32 vcc, 32, v0
    s_and_saveexec_b64 s[36:37], vcc
    s_cbranch_execz k0_done
    """)
    for i in range(8):
        k(f"ds_read_b32 v{16+i}, v11 offset:{8192+128*i}")
    k("s_waitcnt lgkmcnt(0)")
    k("""
    v_add_f32 v16, v16, v17
    v_add_f32 v18, v18, v19
    v_add_f32 v20, v20, v21
    v_add_f32 v22, v22, v23
    v_add_f32 v16, v16, v18
    v_add_f32 v20, v20, v22
    v_add_f32 v16, v16, v20
    """)
    bf16_round(k, 16, 16)
    k("""
    s_mov_b32 s11, 0
    s_cmp_ge_u32 s2, 18
    s_cselect_b32 s24, 1, 0
    s_cmp_lt_u32 s2, 36
    s_cselect_b32 s25, 1, 0
    s_and_b32 s24, s24, s25
    s_cmp_ge_u32 s2, 72
    s_cselect_b32 s25, 1, 0
    s_cmp_lt_u32 s2, 90
    s_cselect_b32 s26, 1, 0
    s_and_b32 s25, s25, s26
    s_or_b32 s24, s24, s25
    s_cmp_eq_u32 s24, 0
    s_cbranch_scc1 k0_mod_store
    v_add_f32 v16, 1.0, v16
    """)
    bf16_round(k, 16, 16)
    k.label("k0_mod_store")
    k(f"""
    s_lshl_b32 s10, s2, 8
    s_add_u32 s10, s10, {CNT}
    v_mov_b32 v17, 0
    buffer_store_dword v17, v11, s[12:15], s10 offen
    s_lshl_b32 s10, s2, 7
    v_add_u32 v11, s10, v11
    buffer_store_dword v16, v11, s[12:15], 0 offen offset:{MOD}
    s_cmp_lt_u32 s2, 54
    s_cbranch_scc1 k0_done
    s_cmp_ge_u32 s2, 90
    s_cbranch_scc1 k0_done
    """)
    k(f"""
    s_sub_u32 s24, s2, 54
    s_sub_u32 s25, s2, 72
    s_cmp_ge_u32 s2, 72
    s_cselect_b32 s24, s25, s24
    s_cselect_b32 s25, 0, 16
    s_lshl_b32 s26, s24, 1
    v_lshrrev_b32 v12, 4, v0
    v_add_u32 v12, s26, v12
    v_mul_u32_u24 v13, 57, v12
    v_lshrrev_b32 v13, 9, v13
    v_mul_u32_u24 v14, 9, v13
    v_sub_u32 v14, v12, v14
    v_lshrrev_b32 v15, 1, v13
    v_mul_u32_u24 v15, 9, v15
    v_and_b32 v17, 1, v13
    v_lshrrev_b32 v18, 1, v14
    v_lshl_add_u32 v18, v17, 2, v18
    v_and_b32 v19, 1, v14
    v_cmp_eq_u32 vcc, 8, v14
    v_cndmask_b32 v18, v18, 8, vcc
    v_cndmask_b32 v19, v19, v17, vcc
    v_add_u32 v15, v15, v18
    v_lshlrev_b32 v12, 7, v15
    v_bfe_u32 v13, v0, 2, 2
    v_lshl_add_u32 v12, v13, 5, v12
    v_lshl_add_u32 v12, v19, 3, v12
    v_and_b32 v13, 3, v0
    v_lshl_add_u32 v12, v13, 1, v12
    s_add_u32 s25, s25, {GSB}
    v_lshrrev_b32 v16, 16, v16
    buffer_store_short v16, v12, s[12:15], s25 offen
    s_branch k0_done
    """)
    k.label("k0_not_mod")
    k(f"""
    s_sub_u32 s2, s2, {K0_MOD}
    s_cmp_ge_u32 s2, {K0_XN}
    s_cbranch_scc1 k0_not_xn
    """)
    k("""
    s_lshl_b32 s10, s2, 2
    s_add_u32 s10, s10, s3
    s_lshl_b32 s10, s10, 3
    v_lshrrev_b32 v3, 3, v1
    v_add_u32 v3, s10, v3
    v_and_b32 v4, 7, v1
    v_mul_u32_u24 v5, 1152, v3
    v_lshl_add_u32 v5, v4, 4, v5
    """)
    for i in range(9):
        k(f"global_load_dwordx4 v[{16+4*i}:{19+4*i}], v5, s[4:5] offset:{128*i}")
    k(f"""
    v_lshrrev_b32 v6, 4, v3
    v_mul_u32_u24 v6, {18*1024}, v6
    v_and_b32 v7, 15, v3
    v_lshl_add_u32 v6, v7, 4, v6
    v_lshrrev_b32 v7, 2, v4
    v_lshl_add_u32 v6, v7, 10, v6
    v_and_b32 v7, 3, v4
    v_lshl_add_u32 v6, v7, 8, v6
    v_add_u32 v6, {XN}, v6
    v_mov_b32 v8, 0
    v_mov_b32 v9, 0
    """)
    for i in range(9):
        k(f"s_waitcnt vmcnt({8-i})")
        for q in range(4):
            w = 16 + 4 * i + q
            d = 64 + 8 * i + 2 * q
            k(f"v_lshlrev_b32 v{d}, 16, v{w}")
            k(f"v_and_b32 v{d+1}, 0xffff0000, v{w}")
        for q in range(4):
            d = 64 + 8 * i + 2 * q
            k(f"v_pk_add_f32 v[8:9], v[8:9], v[{d}:{d+1}]")

    def red8(r):
        k(f"v_add_f32_dpp v{r}, v{r}, v{r} quad_perm:[1,0,3,2] row_mask:0xf bank_mask:0xf")
        k(f"v_add_f32_dpp v{r}, v{r}, v{r} quad_perm:[2,3,0,1] row_mask:0xf bank_mask:0xf")
        k(f"v_add_f32_dpp v{r}, v{r}, v{r} row_half_mirror row_mask:0xf bank_mask:0xf")

    k("v_add_f32 v8, v8, v9")
    red8(8)
    k(f"v_mul_f32 v10, 0x3ae38e39, v8")
    k("v_mov_b32 v11, v10")
    k("v_mov_b32 v8, 0")
    k("v_mov_b32 v9, 0")
    for e in range(36):
        d = 64 + 2 * e
        k(f"v_pk_add_f32 v[12:13], v[{d}:{d+1}], v[10:11] neg_lo:[0,1] neg_hi:[0,1]")
        k(f"v_pk_fma_f32 v[8:9], v[12:13], v[12:13], v[8:9]")
    k("v_add_f32 v8, v8, v9")
    red8(8)
    k(f"v_mul_f32 v8, 0x3ae38e39, v8")
    bf16_round(k, 8, 8)
    k("v_add_f32 v8, 0x3727c5ac, v8")
    bf16_round(k, 8, 8)
    k("v_sqrt_f32 v8, v8")
    bf16_round(k, 8, 8)
    k("v_rcp_f32 v8, v8")
    bf16_round(k, 10, 10)
    k("v_mov_b32 v11, v10")
    k("v_mov_b32 v9, v8")
    for i in range(9):
        for q in range(4):
            d = 64 + 8 * i + 2 * q
            k(f"""
            v_pk_add_f32 v[12:13], v[{d}:{d+1}], v[10:11] neg_lo:[0,1] neg_hi:[0,1]
            v_cvt_pk_bf16_f32 v14, v12, v13
            v_lshlrev_b32 v12, 16, v14
            v_and_b32 v13, 0xffff0000, v14
            v_pk_mul_f32 v[12:13], v[12:13], v[8:9]
            v_cvt_pk_bf16_f32 v{16+4*i+q}, v12, v13
            """)
        k(f"buffer_store_dwordx4 v[{16+4*i}:{19+4*i}], v6, s[12:15], 0 offen offset:{(2*i*1024) % 4096}")
        if i % 2 == 1:
            k("v_add_u32 v6, 4096, v6")
    k("s_branch k0_done")
    k.label("k0_not_xn")
    k(f"""
    s_sub_u32 s2, s2, {K0_XN}
    s_cmp_ge_u32 s2, {K0_WQ}
    s_cbranch_scc1 k0_not_wq
    """)
    srd(k, 8, 16, 576 * 1728 * 2)
    k(f"""
    s_lshl_b32 s10, s2, 2
    s_add_u32 s34, s10, s3
    s_mov_b32 s10, {576*1728*2}
    s_and_b32 s35, s34, 7
    s_lshr_b32 s38, s34, 3
    v_cmp_gt_u32 vcc, 60, v1
    s_and_saveexec_b64 s[36:37], vcc
    v_mul_u32_u24 v3, 13, v1
    v_lshrrev_b32 v3, 8, v3
    v_mul_u32_u24 v4, 20, v3
    v_sub_u32 v4, v1, v4
    v_mul_u32_u24 v5, 13, v4
    v_lshrrev_b32 v5, 6, v5
    v_mul_u32_u24 v6, 5, v5
    v_sub_u32 v6, v4, v6
    v_cmp_eq_u32 s[40:41], 4, v6
    v_mul_u32_u24 v10, 1152, v3
    v_mul_u32_u24 v7, 36, v5
    v_add_u32 v10, v10, v7
    v_lshl_add_u32 v10, v6, 3, v10
    s_mul_i32 s39, s35, 144
    s_mul_i32 s42, s38, {8*3456}
    s_add_u32 s39, s39, s42
    v_add_u32 v10, s39, v10
    """)
    k(f"""
    v_lshrrev_b32 v7, 2, v1
    v_mul_u32_u24 v11, {18*1024}, v7
    v_and_b32 v7, 3, v1
    v_lshl_add_u32 v11, v7, 6, v11
    s_mul_i32 s39, s35, {16*18*1024}
    s_lshr_b32 s42, s38, 2
    s_lshl_b32 s42, s42, 10
    s_add_u32 s39, s39, s42
    s_and_b32 s42, s38, 3
    s_lshl_b32 s42, s42, 8
    s_add_u32 s39, s39, s42
    s_add_u32 s39, s39, {WQ}
    v_add_u32 v11, s39, v11
    """)
    pack_chunk(k, 8, 3456, zero_hi_mask_sgpr=40)
    k("s_branch k0_done")
    k.label("k0_not_wq")
    k(f"s_sub_u32 s2, s2, {K0_WQ}")
    srd(k, 8, 18, 576 * 576 * 2)
    k(f"""
    s_lshl_b32 s34, s2, 2
    s_add_u32 s34, s34, s3
    s_mul_hi_u32 s38, s34, 0x55555556
    s_mul_i32 s35, s38, 3
    s_sub_u32 s35, s34, s35
    v_cmp_gt_u32 vcc, 48, v1
    s_and_saveexec_b64 s[36:37], vcc
    s_mul_i32 s39, s35, 48
    v_add_u32 v3, s39, v1
    v_lshlrev_b32 v10, 3, v3
    s_mul_i32 s42, s38, {8*1152}
    v_add_u32 v10, s42, v10
    v_lshrrev_b32 v7, 2, v3
    v_mul_u32_u24 v11, {18*1024}, v7
    v_and_b32 v7, 3, v3
    v_lshl_add_u32 v11, v7, 6, v11
    s_lshr_b32 s42, s38, 2
    s_lshl_b32 s39, s42, 10
    s_and_b32 s42, s38, 3
    s_lshl_b32 s42, s42, 8
    s_add_u32 s39, s39, s42
    s_add_u32 s39, s39, {WOP}
    v_add_u32 v11, s39, v11
    """)
    pack_chunk(k, 8, 1152)
    k.label("k0_done")
    tl_end(k, 0)
    k("s_endpgm")
    return k, 136, 9216 + 256


K1_QB = 92160
K1_TS = 488
K1_ML = K1_QB + 80 * K1_TS
K1_LDS = K1_ML + 4608
K1_OL = 16384
K1_YL = K1_OL + 36864
K1_SL = K1_YL + 10240


def gen_k1():
    k = K("qkv_attn_kernel")
    tl_start(k)
    TS = K1_TS
    QB = K1_QB
    k(f"""
    s_cmp_ge_u32 s2, 256
    s_cbranch_scc1 k4_done
    s_load_dwordx4 s[84:87], s[0:1], 80
    s_load_dwordx4 s[16:19], s[0:1], 32
    s_load_dwordx2 s[8:9], s[0:1], 0
    v_and_b32 v1, 63, v0
    v_lshrrev_b32 v2, 6, v0
    v_lshlrev_b32 v3, 4, v1
    v_lshrrev_b32 v4, 4, v1
    v_readfirstlane_b32 s3, v2
    s_and_b32 s4, s2, 1
    s_lshl_b32 s4, s4, 2
    s_bfe_u32 s31, s2, 0x20003
    s_add_u32 s4, s4, s31
    s_bfe_u32 s5, s2, 0x20001
    s_lshl_b32 s5, s5, 3
    s_lshr_b32 s31, s2, 5
    s_add_u32 s5, s5, s31
    v_lshlrev_b32 v5, 5, v4
    s_waitcnt lgkmcnt(0)
    """)
    stamp(k, 0)
    srd(k, 12, 86, WS_BYTES)
    ts(k, 0)
    k(f"""
    s_mul_i32 s31, s3, 576
    s_add_u32 s32, s31, {K1_ML}
    s_mov_b32 m0, s32
    s_mov_b32 exec_hi, 0xf
    buffer_load_dwordx4 v3, s[12:15], s31 offen lds
    s_mov_b64 exec, -1
    """)
    k("""
    s_lshl_b32 s23, s5, 2
    s_sub_u32 s24, s23, 1
    s_max_i32 s24, s24, 0
    """)
    for i in range(5):
        if i == 0:
            k(f"s_mul_i32 s25, s24, {18*1024}")
            k(f"s_add_u32 s25, s25, {XN}")
        else:
            k(f"s_add_u32 s30, s23, {i-1}")
            k(f"s_mul_i32 s{25+i}, s30, {18*1024}")
            k(f"s_add_u32 s{25+i}, s{25+i}, {XN}")
    k("s_lshl_b32 s20, s3, 10")
    k("s_add_u32 s21, s20, 8192")
    for j in range(2):
        for i in range(5):
            x = 48 + 20 * j + 4 * i
            k(f"s_add_u32 s34, s{25+i}, s{20+j}")
            k(f"buffer_load_dwordx4 v[{x}:{x+3}], v3, s[12:15], s34 offen")
    k("""
    s_add_u32 s36, s3, 8
    s_cmp_lt_u32 s3, 2
    s_cselect_b32 s36, s36, s3
    s_mov_b32 s35, s3
    """)
    for e in range(2):
        k(f"""
        s_cmp_ge_u32 s{35+e}, 5
        s_cselect_b32 s{44+e}, 17, 16
        s_cselect_b32 s37, 5, 0
        s_sub_u32 s{46+e}, s{35+e}, s37
        s_add_u32 s37, s23, s{46+e}
        s_sub_u32 s37, s37, 1
        s_max_i32 s37, s37, 0
        s_mul_i32 s37, s37, 18
        s_add_u32 s37, s37, s{44+e}
        s_lshl_b32 s37, s37, 10
        s_add_u32 s37, s37, {XN}
        buffer_load_dwordx4 v[{88+4*e}:{91+4*e}], v3, s[12:15], s37 offen
        """)
    k("s_waitcnt vmcnt(12)")
    k("s_barrier")
    k(f"""
    s_lshl_b32 s40, s4, 4
    s_lshl_b32 s41, s3, 1
    s_add_u32 s42, s41, 1
    s_min_u32 s42, s42, 14
    s_add_u32 s41, s41, s40
    s_add_u32 s42, s42, s40
    s_mul_i32 s41, s41, {18*1024}
    s_mul_i32 s42, s42, {18*1024}
    s_add_u32 s41, s41, {WQ}
    s_add_u32 s42, s42, {WQ}
    """)

    NAS = 8
    vm = VM()
    vm.add("x0", 5); vm.add("x1", 5); vm.add("e0"); vm.add("e1")

    def areg(kk, tt):
        return 124 + 8 * (kk % NAS) + 4 * tt

    def load_a(kk):
        if kk % 4 == 0 and kk > 0:
            k("s_add_u32 s41, s41, 4096")
            k("s_add_u32 s42, s42, 4096")
        for tt in range(2):
            a = areg(kk, tt)
            k(f"buffer_load_dwordx4 v[{a}:{a+3}], v3, s[12:15], s{41+tt} offen offset:{(kk%4)*1024}")
        vm.add(f"a{kk}", 2)

    k(f"""
    s_lshl_b32 s31, s3, 7
    v_add_u32 v8, s31, v5
    s_lshl_b32 s31, s44, 7
    v_add_u32 v9, s31, v5
    s_lshl_b32 s31, s45, 7
    v_add_u32 v11, s31, v5
    v_add_u32 v8, {K1_ML}, v8
    v_add_u32 v9, {K1_ML}, v9
    v_add_u32 v11, {K1_ML}, v11
    v_add_u32 v12, s20, v3
    v_add_u32 v13, 18432, v12
    v_add_u32 v14, s21, v3
    v_add_u32 v15, 18432, v14
    """)
    for e in range(2):
        k(f"""
        s_mul_i32 s37, s{46+e}, 18
        s_add_u32 s37, s37, s{44+e}
        s_lshl_b32 s37, s37, 10
        v_add_u32 v{228+e}, s37, v3
        """)

    def read_mod(j):
        va, off = ((8, 0), (8, 1024), (9, 0), (11, 0))[j]
        b = 16 + 16 * (j & 1)
        return [f"ds_read_b128 v[{b}:{b+3}], v{va} offset:{off + 2304}",
                f"ds_read_b128 v[{b+4}:{b+7}], v{va} offset:{off + 2304 + 16}",
                f"ds_read_b128 v[{b+8}:{b+11}], v{va} offset:{off}",
                f"ds_read_b128 v[{b+12}:{b+15}], v{va} offset:{off + 16}"]

    def xform(f):
        if f < 10:
            j, i = divmod(f, 5)
            x = 48 + 20 * j + 4 * i
        else:
            j = 2 + (f - 10)
            x = 88 + 4 * (f - 10)
        b = 16 + 16 * (j & 1)
        T = 96
        o = []
        for q in range(4):
            o.append(f"v_lshlrev_b32 v{T+2*q}, 16, v{x+q}")
            o.append(f"v_and_b32 v{T+2*q+1}, 0xffff0000, v{x+q}")
        if "fma1" in ABL:
            for e_ in range(8):
                o.append(f"v_fma_f32 v{T+e_}, v{T+e_}, v{b+e_}, v{b+8+e_}")
        else:
            for e_ in range(8):
                o.append(f"v_mul_f32 v{T+e_}, v{T+e_}, v{b+e_}")
            for q in range(4):
                o.append(f"v_cvt_pk_bf16_f32 v{x+q}, v{T+2*q}, v{T+2*q+1}")
            for q in range(4):
                o.append(f"v_lshlrev_b32 v{T+2*q}, 16, v{x+q}")
                o.append(f"v_and_b32 v{T+2*q+1}, 0xffff0000, v{x+q}")
            for e_ in range(8):
                o.append(f"v_add_f32 v{T+e_}, v{T+e_}, v{b+8+e_}")
        for q in range(4):
            o.append(f"v_cvt_pk_bf16_f32 v{x+q}, v{T+2*q}, v{T+2*q+1}")
        if f < 10:
            base = 12 + 2 * j
            if i < 4:
                o.append(f"ds_write_b128 v{base}, v[{x}:{x+3}] offset:{i*18432}")
            else:
                o.append(f"ds_write_b128 v{base+1}, v[{x}:{x+3}] offset:{3*18432}")
        else:
            o.append(f"ds_write_b128 v{228+f-10}, v[{x}:{x+3}]")
        return o

    for ln in read_mod(0) + read_mod(1):
        k(ln)
    nw = 0
    for _ in range(PRM.get("W0", 0)):
        load_a(nw); nw += 1
    k("s_waitcnt lgkmcnt(4)")
    for f in range(5):
        k(f"s_waitcnt vmcnt({len(vm.ops) - 1 - f})")
        for ln in xform(f):
            k(ln)
        if f >= PRM.get("WF", 1) and nw < NAS:
            load_a(nw); nw += 1
    k("s_waitcnt lgkmcnt(0)")
    stamp(k, 1)
    k("s_barrier")
    stamp(k, 2)
    ts(k, 1)
    k("v_add_u32 v6, 55296, v3")

    def breg(kk, i):
        return (48 if (kk & 1) == 0 else 104) + 4 * i

    def read_b(kk):
        for i in range(5):
            b = breg(kk, i)
            if i < 3:
                k(f"ds_read_b128 v[{b}:{b+3}], v3 offset:{i*18432 + kk*1024}")
            else:
                k(f"ds_read_b128 v[{b}:{b+3}], v6 offset:{(i-3)*18432 + kk*1024}")

    def acc(tt, i):
        return 188 + 20 * tt + 4 * i

    sidew = {0: [5], 1: [6], 2: [7], 3: [8], 4: [9], 5: [10], 6: [11]}
    read_b(0)
    for kk in range(18):
        if kk == 7:
            k("s_waitcnt lgkmcnt(0)")
            k("s_barrier")
        if kk < 17:
            read_b(kk + 1)
        while nw < 18 and nw < kk + NAS:
            load_a(nw); nw += 1
            if kk > 0:
                break
        side = []
        if kk == 4:
            side += read_mod(2)
        if kk == 5:
            side += read_mod(3)
        fl = sidew.get(kk, [])
        tags = [f"a{kk}"] + [("x1" if f < 10 else f"e{f-10}") for f in fl]
        k(f"s_waitcnt vmcnt({vm.need(*tags)})")
        k(f"s_waitcnt lgkmcnt({5 if kk < 17 else 0})")
        for f in fl:
            side += xform(f)
        nm = 0
        for i in range(5):
            for tt in range(2):
                a = areg(kk, tt); b = breg(kk, i); c = acc(tt, i)
                cs = "0" if kk == 0 else f"v[{c}:{c+3}]"
                k(f"v_mfma_f32_16x16x32_bf16 v[{c}:{c+3}], v[{a}:{a+3}], v[{b}:{b+3}], {cs}")
                nm += 1
                take = -(-len(side) // (11 - nm)) if side else 0
                for _ in range(take):
                    k(side.pop(0))
        assert not side
    stamp(k, 3)
    ts(k, 2)
    k(f"""
    v_and_b32 v6, 15, v1
    v_mul_u32_u24 v6, {TS}, v6
    v_lshl_add_u32 v6, v4, 3, v6
    s_lshl_b32 s31, s3, 6
    s_add_u32 s31, s31, {QB}
    v_add_u32 v6, s31, v6
    """)
    for tt in range(2):
        if tt == 1:
            k("s_cmp_eq_u32 s3, 7")
            k("s_cbranch_scc1 k1_skip_t1")
        for i in range(5):
            c = acc(tt, i)
            k(f"v_cvt_pk_bf16_f32 v{60+2*i}, v{c}, v{c+1}")
            k(f"v_cvt_pk_bf16_f32 v{61+2*i}, v{c+2}, v{c+3}")
            k(f"ds_write_b64 v6, v[{60+2*i}:{61+2*i}] offset:{i*16*TS + tt*32}")
    k.label("k1_skip_t1")
    k("s_waitcnt lgkmcnt(0)")
    k("s_barrier")
    stamp(k, 4)

    k(f"""
    s_and_b32 s50, s4, 1
    s_lshr_b32 s51, s4, 1
    s_lshl_b32 s52, s5, 2
    s_lshl_b32 s53, s50, 1
    s_add_u32 s52, s52, s53
    s_mul_i32 s53, s51, 9
    s_add_u32 s54, s53, s3
    s_mul_i32 s55, s54, {18*1024}
    s_add_u32 s55, s55, {WOP}
    v_add_u32 v216, 4096, v3
    v_add_u32 v217, 8192, v3
    v_add_u32 v218, 12288, v3
    v_add_u32 v219, 16384, v3
    v_and_b32 v220, 15, v1
    s_lshl_b32 s31, s52, 4
    v_add_u32 v220, s31, v220
    v_mul_u32_u24 v221, 1152, v220
    v_lshl_add_u32 v221, v4, 3, v221
    s_lshl_b32 s31, s54, 5
    v_add_u32 v222, s31, v221
    v_add_u32 v223, {16*1152}, v222
    v_lshlrev_b32 v224, 4, v4
    s_lshl_b32 s31, s54, 6
    v_add_u32 v225, s31, v224
    s_mov_b32 s56, {MOD + 2*576*4}
    s_mov_b32 s57, {MOD + 4*576*4}
    """)
    side = []
    for kk in range(18):
        vo = 3 if kk < 4 else 215 + kk // 4
        side.append(f"buffer_load_dwordx4 v[{128+4*kk}:{131+4*kk}], v{vo}, s[12:15], s55 offen offset:{(kk%4)*1024}")
    side.append("global_load_dwordx2 v[200:201], v222, s[8:9]")
    side.append("global_load_dwordx2 v[202:203], v223, s[8:9]")
    side.append("buffer_load_dwordx4 v[204:207], v225, s[12:15], s56 offen")
    side.append("buffer_load_dwordx4 v[208:211], v225, s[12:15], s57 offen")
    kreal = k
    cnt = [0]

    class KS:
        def __call__(self, txt):
            for ln in txt.strip("\n").split("\n"):
                ln = ln.strip()
                if not ln:
                    continue
                kreal(ln)
                if ln.startswith("v_") and side:
                    cnt[0] += 1
                    if cnt[0] % 10 == 0:
                        kreal(side.pop(0))

        def label(self, l):
            kreal.label(l)

    k = KS()
    k(f"""
    v_and_b32 v6, 1, v1
    v_bfe_u32 v7, v1, 1, 2
    v_lshrrev_b32 v8, 3, v1
    s_lshl_b32 s31, s3, 3
    v_add_u32 v8, s31, v8
    v_mul_u32_u24 v9, {TS}, v8
    v_mul_u32_u24 v10, 40, v7
    v_add_u32 v9, v9, v10
    v_add_u32 v9, {QB + 16*TS}, v9
    v_mul_u32_u24 v10, {8*TS}, v6
    v_sub_u32 v11, v9, v10
    v_add_u32 v12, {160 - 6*TS}, v11
    v_lshl_add_u32 v13, v6, 4, v11
    v_add_u32 v13, {320 - 6*TS}, v13
    v_add_u32 v14, v9, v10
    v_lshl_add_u32 v14, v6, 4, v14
    v_add_u32 v14, {320 - 14*TS}, v14
    """)
    for j in range(5):
        k(f"ds_read_b64 v[{16+2*j}:{17+2*j}], v9 offset:{8*j}")
    for u in range(4):
        for j in range(5):
            r = 32 + 10 * u + 2 * j
            k(f"ds_read_b64 v[{r}:{r+1}], v12 offset:{(3-u)*2*TS + 8*j}")
    for u in range(4):
        for j in range(3):
            r = 80 + 6 * u + 2 * j
            k(f"ds_read_b64 v[{r}:{r+1}], v13 offset:{(3-u)*2*TS + 8*j}")
    for u in range(4):
        for j in range(3):
            r = 104 + 6 * u + 2 * j
            k(f"ds_read_b64 v[{r}:{r+1}], v14 offset:{(3-u)*2*TS + 8*j}")
    k(f"""
    s_lshl_b32 s31, s5, 6
    v_add_u32 v15, s31, v8
    v_lshlrev_b32 v26, 3, v6
    v_sub_u32 v15, v15, v26
    v_mov_b32 v27, 0xce6e6b28
    s_waitcnt lgkmcnt(15)
    """)
    k("s_waitcnt lgkmcnt(0)")
    stamp(k, 5)
    for j in range(9):
        for u in range(4):
            src = "0" if j == 0 else f"v{28+u}"
            k(f"v_dot2_f32_bf16 v{28+u}, v{16+j}, v{32+10*u+j}, {src}")
    for u in range(4):
        bf16_round(k, 28 + u, 28 + u)
        k(f"v_mul_f32 v{28+u}, 0x3e715bef, v{28+u}")
        bf16_round(k, 28 + u, 28 + u)
        k(f"v_cmp_gt_i32 vcc, {2*u}, v15")
        k(f"v_cndmask_b32 v{28+u}, v{28+u}, v27, vcc")
    for u in range(4):
        k(f"v_mov_b32_dpp v{32+u}, v{28+u} quad_perm:[1,0,3,2] row_mask:0xf bank_mask:0xf")
    k("""
    v_max3_f32 v36, v28, v29, v30
    v_max3_f32 v36, v36, v31, v32
    v_max3_f32 v36, v36, v33, v34
    v_max_f32 v36, v36, v35
    """)
    for u in range(8):
        k(f"v_sub_f32 v{28+u}, v{28+u}, v36")
        k(f"v_mul_f32 v{28+u}, {LOG2E}, v{28+u}")
        k(f"v_exp_f32 v{28+u}, v{28+u}")
    k("""
    v_add_f32 v36, v28, v29
    v_add_f32 v37, v30, v31
    v_add_f32 v38, v32, v33
    v_add_f32 v39, v34, v35
    v_add_f32 v36, v36, v37
    v_add_f32 v38, v38, v39
    v_add_f32 v36, v36, v38
    v_rcp_f32 v36, v36
    """)
    for u in range(8):
        k(f"v_mul_f32 v{28+u}, v{28+u}, v36")
        k(f"v_cvt_pk_bf16_f32 v{40+u}, v{28+u}, 0")
        k(f"v_lshlrev_b32 v{48+u}, 16, v{40+u}")
    for u in range(8):
        vb = (80 + 6 * u) if u < 4 else (104 + 6 * (u - 4))
        for j in range(5):
            s0 = "0" if u == 0 else f"v{60+2*j}"
            s1 = "0" if u == 0 else f"v{61+2*j}"
            k(f"v_dot2_f32_bf16 v{60+2*j}, v{vb+j}, v{40+u}, {s0}")
            k(f"v_dot2_f32_bf16 v{61+2*j}, v{vb+j}, v{48+u}, {s1}")
    k(f"""
    v_mul_u32_u24 v9, 160, v8
    v_mul_u32_u24 v10, 36, v7
    v_add_u32 v9, v9, v10
    v_lshl_add_u32 v9, v6, 4, v9
    """)
    for j in range(5):
        k(f"v_cvt_pk_bf16_f32 v{70+j}, v{60+2*j}, v{61+2*j}")
        k(f"ds_write_b32 v9, v{70+j} offset:{4*j}")
    k("s_waitcnt lgkmcnt(0)")
    k = kreal
    for ln in side:
        k(ln)
    stamp(k, 6)
    k("s_barrier")
    ts(k, 3)
    k(f"""
    v_mul_u32_u24 v6, 160, v1
    s_lshl_b32 s31, s3, 4
    v_add_u32 v6, s31, v6
    ds_read_b128 v[16:19], v6
    ds_read_b128 v[20:23], v6 offset:128
    v_mul_u32_u24 v7, {18*1024}, v4
    v_and_b32 v8, 15, v1
    v_lshl_add_u32 v7, v8, 4, v7
    s_mul_i32 s31, s5, {4*18*1024}
    s_mul_i32 s32, s4, 9
    s_add_u32 s32, s32, s3
    s_lshl_b32 s32, s32, 8
    s_add_u32 s31, s31, s32
    s_add_u32 s31, s31, {OO}
    s_waitcnt lgkmcnt(0)
    buffer_store_dwordx4 v[16:19], v7, s[12:15], s31 offen sc1
    s_cmp_lg_u32 s3, 0
    s_cbranch_scc1 k1_st1
    buffer_store_dwordx4 v[20:23], v7, s[12:15], s31 offen offset:2048 sc1
    """)
    k.label("k1_st1")
    k(f"""
    s_waitcnt vmcnt(0)
    s_barrier
    s_lshl_b32 s33, s5, 8
    s_add_u32 s33, s33, {CNT}
    v_mov_b32 v9, s33
    s_cmp_lg_u32 s3, 7
    s_cbranch_scc1 k1_nosig
    v_mov_b32 v8, 1
    s_mov_b64 exec, 1
    global_atomic_add v9, v8, s[86:87]
    s_mov_b64 exec, -1
    """)
    k.label("k1_nosig")
    k(f"""
    s_cmp_ge_u32 s3, 2
    s_cbranch_scc1 k1_noextra
    s_add_u32 s58, s53, 8
    s_mul_i32 s59, s58, {18*1024}
    s_add_u32 s59, s59, {WOP}
    """)
    for kk in range(18):
        vo = 3 if kk < 4 else 215 + kk // 4
        k(f"buffer_load_dwordx4 v[{16+4*kk}:{19+4*kk}], v{vo}, s[12:15], s59 offen offset:{(kk%4)*1024}")
    k(f"""
    s_lshl_b32 s31, s58, 5
    s_mul_i32 s32, s3, {16*1152}
    s_add_u32 s31, s31, s32
    v_add_u32 v10, s31, v221
    global_load_dwordx2 v[88:89], v10, s[8:9]
    s_lshl_b32 s31, s58, 6
    v_add_u32 v10, s31, v224
    buffer_load_dwordx4 v[92:95], v10, s[12:15], s56 offen
    buffer_load_dwordx4 v[96:99], v10, s[12:15], s57 offen
    """)
    k.label("k1_noextra")
    k("s_mov_b32 s37, 0")
    k("s_cmp_lg_u32 s3, 7")
    k("s_cbranch_scc1 k1_ready")
    k("s_mov_b64 exec, 1")
    k.label("k1_poll")
    k("""
    global_load_dword v8, v9, s[86:87] sc1
    s_waitcnt vmcnt(0)
    v_readfirstlane_b32 s38, v8
    s_add_u32 s37, s37, 1
    s_cmp_ge_u32 s38, 8
    s_cbranch_scc1 k1_ready
    s_cmp_lt_u32 s37, 0x400000
    s_cbranch_scc0 k1_ready
    s_sleep 2
    s_branch k1_poll
    """)
    k.label("k1_ready")
    k("s_mov_b64 exec, -1")
    k("s_barrier")
    ts(k, 4)
    stamp(k, 7)
    k(f"""
    s_mul_i32 s31, s52, {18*1024}
    s_add_u32 s31, s31, {OO}
    s_lshl_b32 s32, s3, 10
    s_add_u32 s31, s31, s32
    s_add_u32 s34, s32, 32768
    s_add_u32 s35, s32, 24576
    s_cmp_lt_u32 s3, 4
    s_cselect_b32 s34, s34, s35
    s_sub_u32 s35, s34, s32
    s_add_u32 s35, s35, s31
    v_add_u32 v10, 24576, v3
    buffer_load_dwordx4 v[100:103], v3, s[12:15], s31 offen sc1
    buffer_load_dwordx4 v[104:107], v217, s[12:15], s31 offen sc1
    buffer_load_dwordx4 v[108:111], v219, s[12:15], s31 offen sc1
    buffer_load_dwordx4 v[112:115], v10, s[12:15], s31 offen sc1
    buffer_load_dwordx4 v[116:119], v3, s[12:15], s35 offen sc1
    v_add_u32 v11, s32, v3
    v_add_u32 v11, {K1_OL}, v11
    v_add_u32 v12, s34, v3
    v_add_u32 v12, {K1_OL}, v12
    s_waitcnt vmcnt(4)
    ds_write_b128 v11, v[100:103]
    s_waitcnt vmcnt(3)
    ds_write_b128 v11, v[104:107] offset:8192
    s_waitcnt vmcnt(2)
    ds_write_b128 v11, v[108:111] offset:16384
    s_waitcnt vmcnt(1)
    ds_write_b128 v11, v[112:115] offset:24576
    s_waitcnt vmcnt(0)
    ds_write_b128 v12, v[116:119]
    v_add_u32 v13, {K1_OL}, v3
    s_mul_i32 s31, s3, {18*1024}
    v_add_u32 v14, s31, v13
    s_waitcnt lgkmcnt(0)
    s_barrier
    """)

    stamp(k, 4)
    k(f"""
    s_sub_u32 s31, s3, 2
    s_cmp_ge_u32 s31, 2
    s_cbranch_scc1 k1_nopfw
    v_subrev_u32 v24, 128, v0
    v_min_u32 v24, 71, v24
    v_cmp_le_u32 vcc, 36, v24
    v_subrev_u32 v25, 36, v24
    v_cndmask_b32 v24, v24, v25, vcc
    v_mul_u32_u24 v25, 57, v24
    v_lshrrev_b32 v25, 9, v25
    v_mul_u32_u24 v26, 9, v25
    v_sub_u32 v26, v24, v26
    v_mul_u32_u24 v25, 9216, v25
    v_lshl_add_u32 v25, v26, 7, v25
    s_lshr_b32 s31, s2, 3
    s_mul_i32 s31, s31, {4*9216}
    s_and_b32 s32, s2, 7
    s_mul_i32 s32, s32, 1152
    s_add_u32 s31, s31, s32
    v_add_u32 v25, s31, v25
    v_mov_b32 v26, s16
    v_mov_b32 v27, s17
    v_mov_b32 v28, s18
    v_mov_b32 v29, s19
    v_cndmask_b32 v26, v26, v28, vcc
    v_cndmask_b32 v27, v27, v29, vcc
    v_add_co_u32 v26, vcc, v26, v25
    v_addc_co_u32 v27, vcc, 0, v27, vcc
    global_load_dword v40, v[26:27], off
    """)
    k.label("k1_nopfw")
    BB = [100, 108, 116, 212]

    def b2(kk, tt):
        return BB[kk % 4] + 4 * tt

    def read_b2(kk):
        for tt in range(2):
            b = b2(kk, tt)
            k(f"ds_read_b128 v[{b}:{b+3}], v13 offset:{(tt*18 + kk)*1024}")

    A2 = [232, 236]

    def gemm2(extra):
        for kk in range(3):
            read_b2(kk)
        for kk in range(18):
            if kk + 3 < 18:
                read_b2(kk + 3)
            k(f"s_waitcnt lgkmcnt({2 * min(3, 17 - kk)})")
            for tt in range(2):
                c = A2[tt]; b = b2(kk, tt)
                cs = "0" if kk == 0 else f"v[{c}:{c+3}]"
                k(f"v_mfma_f32_16x16x32_bf16 v[{c}:{c+3}], v[{128+4*kk}:{131+4*kk}], v[{b}:{b+3}], {cs}")
            if extra is not None:
                b = b2(kk, extra)
                cs = "0" if kk == 0 else "v[240:243]"
                k(f"v_mfma_f32_16x16x32_bf16 v[240:243], v[{16+4*kk}:{19+4*kk}], v[{b}:{b+3}], {cs}")

    k("s_cmp_eq_u32 s3, 0")
    k("s_cbranch_scc1 k1_g2a")
    k("s_cmp_eq_u32 s3, 1")
    k("s_cbranch_scc1 k1_g2b")
    gemm2(None)
    k("s_branch k1_g2e")
    k.label("k1_g2a")
    gemm2(0)
    k("s_branch k1_g2e")
    k.label("k1_g2b")
    gemm2(1)
    k.label("k1_g2e")
    k("s_nop 7")
    stamp(k, 5)

    def unit_epi(c, xr, ga, g2, sm, x1o, yo, first):
        k(f"""
        v_cvt_pk_bf16_f32 v110, v{c}, v{c+1}
        v_cvt_pk_bf16_f32 v111, v{c+2}, v{c+3}
        v_lshlrev_b32 v112, 16, v110
        v_and_b32 v113, 0xffff0000, v110
        v_lshlrev_b32 v114, 16, v111
        v_and_b32 v115, 0xffff0000, v111
        v_pk_mul_f32 v[112:113], v[112:113], v[{ga}:{ga+1}]
        v_pk_mul_f32 v[114:115], v[114:115], v[{ga+2}:{ga+3}]
        v_cvt_pk_bf16_f32 v110, v112, v113
        v_cvt_pk_bf16_f32 v111, v114, v115
        v_lshlrev_b32 v112, 16, v110
        v_and_b32 v113, 0xffff0000, v110
        v_lshlrev_b32 v114, 16, v111
        v_and_b32 v115, 0xffff0000, v111
        v_lshlrev_b32 v116, 16, v{xr}
        v_and_b32 v117, 0xffff0000, v{xr}
        v_lshlrev_b32 v118, 16, v{xr+1}
        v_and_b32 v119, 0xffff0000, v{xr+1}
        v_pk_add_f32 v[112:113], v[112:113], v[116:117]
        v_pk_add_f32 v[114:115], v[114:115], v[118:119]
        v_cvt_pk_bf16_f32 v{x1o}, v112, v113
        v_cvt_pk_bf16_f32 v{x1o+1}, v114, v115
        v_lshlrev_b32 v112, 16, v{x1o}
        v_and_b32 v113, 0xffff0000, v{x1o}
        v_lshlrev_b32 v114, 16, v{x1o+1}
        v_and_b32 v115, 0xffff0000, v{x1o+1}
        """)
        if first:
            k(f"v_add_f32 v{sm}, v112, v113")
            k(f"v_mul_f32 v{sm+1}, v112, v112")
        else:
            k(f"v_add_f32 v{sm}, v{sm}, v112")
            k(f"v_fmac_f32 v{sm+1}, v112, v112")
            k(f"v_add_f32 v{sm}, v{sm}, v113")
        k(f"""
        v_fmac_f32 v{sm+1}, v113, v113
        v_add_f32 v{sm}, v{sm}, v114
        v_fmac_f32 v{sm+1}, v114, v114
        v_add_f32 v{sm}, v{sm}, v115
        v_fmac_f32 v{sm+1}, v115, v115
        v_pk_mul_f32 v[112:113], v[112:113], v[{g2}:{g2+1}]
        v_pk_mul_f32 v[114:115], v[114:115], v[{g2+2}:{g2+3}]
        v_cvt_pk_bf16_f32 v{yo}, v112, v113
        v_cvt_pk_bf16_f32 v{yo+1}, v114, v115
        """)

    k(f"""
    s_lshr_b32 s33, s3, 1
    s_lshl_b32 s33, s33, 10
    s_and_b32 s32, s3, 1
    s_lshl_b32 s32, s32, 3
    s_add_u32 s33, s33, s32
    s_add_u32 s33, s33, {K1_YL}
    v_add_u32 v6, s33, v3
    s_mul_i32 s36, s52, {144*128}
    s_lshl_b32 s37, s54, 9
    s_add_u32 s36, s36, s37
    s_add_u32 s36, s36, {X1}
    s_add_u32 s37, s36, {144*128}
    v_lshlrev_b32 v7, 3, v1
    """)
    for tt in range(2):
        unit_epi(A2[tt], 200 + 2 * tt, 204, 208, 120 + 2 * tt, 244 + 2 * tt, 248 + 2 * tt, True)
        k(f"ds_write_b64 v6, v[{248+2*tt}:{249+2*tt}] offset:{5120*tt}")
        k(f"buffer_store_dwordx2 v[{244+2*tt}:{245+2*tt}], v7, s[12:15], s{36+tt} offen sc1")
    for w in range(2):
        k(f"s_cmp_lg_u32 s3, {w}")
        k(f"s_cbranch_scc1 k1_noex3_{w}")
        unit_epi(240, 88, 92, 96, 120 + 2 * w, 252, 254, False)
        k(f"""
        v_add_u32 v8, {K1_YL + 5120*w + 4096}, v3
        ds_write_b64 v8, v[254:255]
        s_add_u32 s38, s52, {w}
        s_mul_i32 s38, s38, {144*128}
        s_add_u32 s39, s53, 8
        s_lshl_b32 s39, s39, 9
        s_add_u32 s38, s38, s39
        s_add_u32 s38, s38, {X1}
        buffer_store_dwordx2 v[252:253], v7, s[12:15], s38 offen sc1
        """)
        k.label(f"k1_noex3_{w}")
    for r in range(120, 124):
        k(f"v_mov_b32 v{r+4}, v{r}")
    for r in range(120, 124):
        k(f"v_permlane16_swap_b32 v{r}, v{r+4}")
    for r in range(120, 124):
        k(f"v_add_f32 v{r}, v{r}, v{r+4}")
    for r in range(120, 124):
        k(f"v_mov_b32 v{r+4}, v{r}")
    for r in range(120, 124):
        k(f"v_permlane32_swap_b32 v{r}, v{r+4}")
    for r in range(120, 124):
        k(f"v_add_f32 v{r}, v{r}, v{r+4}")
    k(f"""
    v_cmp_gt_u32 vcc, 16, v1
    v_cndmask_b32 v120, v122, v120, vcc
    v_cndmask_b32 v121, v123, v121, vcc
    s_lshl_b32 s31, s3, 8
    s_add_u32 s31, s31, {K1_SL}
    v_lshlrev_b32 v5, 3, v1
    v_add_u32 v5, s31, v5
    s_mov_b32 exec_hi, 0
    ds_write_b64 v5, v[120:121]
    s_mov_b64 exec, -1
    s_waitcnt lgkmcnt(0)
    s_barrier
    """)
    stamp(k, 3)
    stamp_flush(k, 7, 3, "k1", 60)
    k(f"""
    s_lshr_b32 s32, s3, 2
    s_and_b32 s31, s3, 3
    s_mul_i32 s33, s32, 5120
    s_lshl_b32 s34, s31, 10
    s_add_u32 s33, s33, s34
    s_add_u32 s33, s33, {K1_YL}
    v_add_u32 v6, s33, v3
    ds_read_b128 v[24:27], v6
    s_lshr_b32 s35, s51, 1
    s_mul_i32 s35, s35, 9
    s_and_b32 s36, s51, 1
    s_lshl_b32 s37, s36, 2
    s_add_u32 s37, s37, s35
    s_add_u32 s37, s37, s31
    s_add_u32 s38, s52, s32
    s_mul_i32 s38, s38, 18
    s_add_u32 s37, s37, s38
    s_lshl_b32 s37, s37, 10
    s_add_u32 s37, s37, {YY}
    s_waitcnt lgkmcnt(0)
    buffer_store_dwordx4 v[24:27], v3, s[12:15], s37 offen sc1
    s_cmp_eq_u32 s3, 1
    s_cbranch_scc1 k1_stats
    s_cmp_lg_u32 s31, 0
    s_cbranch_scc1 k1_done
    ds_read_b64 v[28:29], v6 offset:4096
    s_add_u32 s37, s35, 8
    s_add_u32 s37, s37, s38
    s_lshl_b32 s37, s37, 10
    s_lshl_b32 s36, s36, 3
    s_add_u32 s37, s37, s36
    s_add_u32 s37, s37, {YY}
    s_waitcnt lgkmcnt(0)
    buffer_store_dwordx2 v[28:29], v3, s[12:15], s37 offen sc1
    s_branch k1_done
    """)
    k.label("k1_stats")
    k("v_lshlrev_b32 v5, 2, v1")
    for w in range(8):
        k(f"ds_read_b32 v{32+w}, v5 offset:{K1_SL + 256*w}")
    k("s_waitcnt lgkmcnt(0)")
    k(f"""
    v_add_f32 v32, v32, v33
    v_add_f32 v34, v34, v35
    v_add_f32 v36, v36, v37
    v_add_f32 v38, v38, v39
    v_add_f32 v32, v32, v34
    v_add_f32 v36, v36, v38
    v_add_f32 v32, v32, v36
    s_lshl_b32 s31, s51, 14
    s_lshl_b32 s32, s52, 7
    s_add_u32 s31, s31, s32
    s_add_u32 s31, s31, {STAT}
    buffer_store_dword v32, v5, s[12:15], s31 offen sc1
    """)
    k.label("k1_done")
    k(f"""
    s_waitcnt vmcnt(0) lgkmcnt(0)
    s_barrier
    s_lshr_b32 s33, s5, 2
    s_lshl_b32 s33, s33, 8
    s_add_u32 s33, s33, {CNT + 32*256}
    v_mov_b32 v9, s33
    s_cmp_lg_u32 s3, 7
    s_cbranch_scc1 k1_nosig2
    v_mov_b32 v8, 1
    s_mov_b64 exec, 1
    global_atomic_add v9, v8, s[86:87]
    s_mov_b64 exec, -1
    """)
    k.label("k1_nosig2")
    ts(k, 5)
    return gen_k3(k)


K2_GRID = 256
K2_YL = 36864 + 2304
K2_LDS = K2_YL + 10240


def gen_k2():
    k = K("wo_kernel")
    tl_start(k)
    k(f"""
    s_cmp_ge_u32 s2, {K2_GRID}
    s_cbranch_scc1 k2_done
    s_load_dwordx2 s[4:5], s[0:1], 0
    s_load_dwordx4 s[16:19], s[0:1], 32
    s_load_dwordx2 s[6:7], s[0:1], 88
    v_and_b32 v1, 63, v0
    v_lshrrev_b32 v2, 6, v0
    v_lshlrev_b32 v3, 4, v1
    v_lshrrev_b32 v4, 4, v1
    v_readfirstlane_b32 s3, v2
    s_waitcnt lgkmcnt(0)
    """)
    srd(k, 12, 6, WS_BYTES)
    k(f"""
    s_and_b32 s20, s2, 7
    s_lshl_b32 s20, s20, 3
    s_bfe_u32 s21, s2, 0x30003
    s_add_u32 s20, s20, s21
    s_lshr_b32 s21, s2, 6
    s_lshl_b32 s24, s20, 1
    s_mul_i32 s25, s21, 9
    s_add_u32 s25, s25, s3
    s_mul_i32 s27, s24, {18*1024}
    s_add_u32 s27, s27, {OO}
    s_lshl_b32 s26, s3, 12
    s_add_u32 s27, s27, s26
    s_mul_i32 s28, s25, {18*1024}
    s_add_u32 s28, s28, {WOP}
    """)
    stamp(k, 0)
    k("s_mov_b32 m0, s26")
    for i in range(4):
        k(f"buffer_load_dwordx4 v3, s[12:15], s27 offen offset:{1024*i} lds")
    for q in range(5):
        k(f"v_add_u32 v{5+q}, {4096*q}, v3")

    def areg(kk):
        return 24 + 4 * (kk % 11)

    def load_a(kk):
        a = areg(kk)
        k(f"buffer_load_dwordx4 v[{a}:{a+3}], v{5+kk//4}, s[12:15], s28 offen offset:{(kk%4)*1024}")

    for kk in range(11):
        load_a(kk)
    k(f"""
    v_and_b32 v10, 15, v1
    s_lshl_b32 s31, s24, 4
    v_add_u32 v10, s31, v10
    v_mul_u32_u24 v11, 1152, v10
    v_lshl_add_u32 v11, v4, 3, v11
    s_lshl_b32 s31, s25, 5
    v_add_u32 v11, s31, v11
    v_add_u32 v13, {16*1152}, v11
    v_lshlrev_b32 v12, 4, v4
    s_lshl_b32 s31, s25, 6
    v_add_u32 v12, s31, v12
    s_mov_b32 s34, {MOD + 2*576*4}
    s_mov_b32 s35, {MOD + 4*576*4}
    global_load_dwordx2 v[14:15], v11, s[4:5]
    global_load_dwordx2 v[16:17], v13, s[4:5]
    buffer_load_dwordx4 v[72:75], v12, s[12:15], s34 offen
    buffer_load_dwordx4 v[76:79], v12, s[12:15], s35 offen
    s_waitcnt vmcnt(15)
    s_barrier
    """)
    stamp(k, 1)

    def breg(kk, tt):
        return 80 + 8 * (kk & 1) + 4 * tt

    def read_b(kk):
        for tt in range(2):
            b = breg(kk, tt)
            k(f"ds_read_b128 v[{b}:{b+3}], v3 offset:{(tt*18 + kk)*1024}")

    accs = [18, 68]
    read_b(0)
    for kk in range(18):
        if kk < 17:
            read_b(kk + 1)
        if kk < 11:
            n_after = (10 - kk) + 4 + min(kk, 7)
        else:
            n_after = 17 - kk
        k(f"s_waitcnt vmcnt({n_after}) lgkmcnt({2 if kk < 17 else 0})")
        a = areg(kk)
        for tt in range(2):
            c = accs[tt]
            b = breg(kk, tt)
            cs = "0" if kk == 0 else f"v[{c}:{c+3}]"
            k(f"v_mfma_f32_16x16x32_bf16 v[{c}:{c+3}], v[{a}:{a+3}], v[{b}:{b+3}], {cs}")
        if kk + 11 < 18:
            load_a(kk + 11)
    stamp(k, 2)
    k(f"""
    s_cmp_ge_u32 s3, 2
    s_cbranch_scc1 k2_nopf
    v_min_u32 v24, 71, v0
    v_cmp_le_u32 vcc, 36, v24
    v_subrev_u32 v25, 36, v24
    v_cndmask_b32 v24, v24, v25, vcc
    v_mul_u32_u24 v25, 57, v24
    v_lshrrev_b32 v25, 9, v25
    v_mul_u32_u24 v26, 9, v25
    v_sub_u32 v26, v24, v26
    v_mul_u32_u24 v25, 9216, v25
    v_lshl_add_u32 v25, v26, 7, v25
    s_lshr_b32 s31, s2, 3
    s_mul_i32 s31, s31, {4*9216}
    s_and_b32 s32, s2, 7
    s_mul_i32 s32, s32, 1152
    s_add_u32 s31, s31, s32
    v_add_u32 v25, s31, v25
    v_mov_b32 v26, s16
    v_mov_b32 v27, s17
    v_mov_b32 v28, s18
    v_mov_b32 v29, s19
    v_cndmask_b32 v26, v26, v28, vcc
    v_cndmask_b32 v27, v27, v29, vcc
    v_add_co_u32 v26, vcc, v26, v25
    v_addc_co_u32 v27, vcc, 0, v27, vcc
    global_load_dword v95, v[26:27], off
    """)
    k.label("k2_nopf")
    k(f"""
    s_lshr_b32 s33, s3, 1
    s_lshl_b32 s33, s33, 10
    s_and_b32 s32, s3, 1
    s_lshl_b32 s32, s32, 3
    s_add_u32 s33, s33, s32
    s_add_u32 s33, s33, {K2_YL}
    v_add_u32 v6, s33, v3
    s_mul_i32 s36, s24, {144*128}
    s_lshl_b32 s37, s25, 9
    s_add_u32 s36, s36, s37
    s_add_u32 s36, s36, {X1}
    s_add_u32 s37, s36, {144*128}
    v_lshlrev_b32 v7, 3, v1
    """)
    ga, g2 = 72, 76
    for tt in range(2):
        c = accs[tt]
        xr = 14 + 2 * tt
        sm, sq = 40 + 2 * tt, 41 + 2 * tt
        k(f"""
        v_cvt_pk_bf16_f32 v24, v{c}, v{c+1}
        v_cvt_pk_bf16_f32 v25, v{c+2}, v{c+3}
        v_lshlrev_b32 v26, 16, v24
        v_and_b32 v27, 0xffff0000, v24
        v_lshlrev_b32 v28, 16, v25
        v_and_b32 v29, 0xffff0000, v25
        v_pk_mul_f32 v[26:27], v[26:27], v[{ga}:{ga+1}]
        v_pk_mul_f32 v[28:29], v[28:29], v[{ga+2}:{ga+3}]
        v_cvt_pk_bf16_f32 v24, v26, v27
        v_cvt_pk_bf16_f32 v25, v28, v29
        v_lshlrev_b32 v26, 16, v24
        v_and_b32 v27, 0xffff0000, v24
        v_lshlrev_b32 v28, 16, v25
        v_and_b32 v29, 0xffff0000, v25
        v_lshlrev_b32 v30, 16, v{xr}
        v_and_b32 v31, 0xffff0000, v{xr}
        v_lshlrev_b32 v32, 16, v{xr+1}
        v_and_b32 v33, 0xffff0000, v{xr+1}
        v_pk_add_f32 v[26:27], v[26:27], v[30:31]
        v_pk_add_f32 v[28:29], v[28:29], v[32:33]
        v_cvt_pk_bf16_f32 v{34+2*tt}, v26, v27
        v_cvt_pk_bf16_f32 v{35+2*tt}, v28, v29
        v_lshlrev_b32 v26, 16, v{34+2*tt}
        v_and_b32 v27, 0xffff0000, v{34+2*tt}
        v_lshlrev_b32 v28, 16, v{35+2*tt}
        v_and_b32 v29, 0xffff0000, v{35+2*tt}
        v_add_f32 v{sm}, v26, v27
        v_mul_f32 v{sq}, v26, v26
        v_fmac_f32 v{sq}, v27, v27
        v_add_f32 v{sm}, v{sm}, v28
        v_fmac_f32 v{sq}, v28, v28
        v_add_f32 v{sm}, v{sm}, v29
        v_fmac_f32 v{sq}, v29, v29
        v_pk_mul_f32 v[26:27], v[26:27], v[{g2}:{g2+1}]
        v_pk_mul_f32 v[28:29], v[28:29], v[{g2+2}:{g2+3}]
        v_cvt_pk_bf16_f32 v{44+2*tt}, v26, v27
        v_cvt_pk_bf16_f32 v{45+2*tt}, v28, v29
        ds_write_b64 v6, v[{44+2*tt}:{45+2*tt}] offset:{5120*tt}
        buffer_store_dwordx2 v[{34+2*tt}:{35+2*tt}], v7, s[12:15], s{36+tt} offen
        """)
    for r in range(40, 44):
        k(f"v_mov_b32 v{r+8}, v{r}")
    for r in range(40, 44):
        k(f"v_permlane16_swap_b32 v{r}, v{r+8}")
    for r in range(40, 44):
        k(f"v_add_f32 v{r}, v{r}, v{r+8}")
    for r in range(40, 44):
        k(f"v_mov_b32 v{r+8}, v{r}")
    for r in range(40, 44):
        k(f"v_permlane32_swap_b32 v{r}, v{r+8}")
    for r in range(40, 44):
        k(f"v_add_f32 v{r}, v{r}, v{r+8}")
    k(f"""
    v_cmp_gt_u32 vcc, 16, v1
    v_cndmask_b32 v40, v42, v40, vcc
    v_cndmask_b32 v41, v43, v41, vcc
    s_lshl_b32 s31, s3, 8
    s_add_u32 s31, s31, 36864
    v_lshlrev_b32 v5, 3, v1
    v_add_u32 v5, s31, v5
    s_mov_b32 exec_hi, 0
    ds_write_b64 v5, v[40:41]
    s_mov_b64 exec, -1
    s_waitcnt lgkmcnt(0)
    s_barrier
    s_cmp_eq_u32 s3, 0
    s_cbranch_scc1 k2_stats
    """)
    k(f"""
    s_sub_u32 s31, s3, 1
    s_lshr_b32 s32, s31, 2
    s_and_b32 s31, s31, 3
    s_mul_i32 s33, s32, 5120
    s_lshl_b32 s34, s31, 10
    s_add_u32 s33, s33, s34
    s_add_u32 s33, s33, {K2_YL}
    v_add_u32 v6, s33, v3
    ds_read_b128 v[24:27], v6
    s_lshr_b32 s35, s21, 1
    s_mul_i32 s35, s35, 9
    s_and_b32 s36, s21, 1
    s_lshl_b32 s37, s36, 2
    s_add_u32 s37, s37, s35
    s_add_u32 s37, s37, s31
    s_add_u32 s38, s24, s32
    s_mul_i32 s38, s38, 18
    s_add_u32 s37, s37, s38
    s_lshl_b32 s37, s37, 10
    s_add_u32 s37, s37, {YY}
    s_waitcnt lgkmcnt(0)
    buffer_store_dwordx4 v[24:27], v3, s[12:15], s37 offen
    s_cmp_lg_u32 s31, 0
    s_cbranch_scc1 k2_done
    ds_read_b64 v[28:29], v6 offset:4096
    s_add_u32 s37, s35, 8
    s_add_u32 s37, s37, s38
    s_lshl_b32 s37, s37, 10
    s_lshl_b32 s36, s36, 3
    s_add_u32 s37, s37, s36
    s_add_u32 s37, s37, {YY}
    s_waitcnt lgkmcnt(0)
    buffer_store_dwordx2 v[28:29], v3, s[12:15], s37 offen
    s_branch k2_done
    """)
    k.label("k2_stats")
    k("v_lshlrev_b32 v5, 2, v1")
    for w in range(9):
        k(f"ds_read_b32 v{24+w}, v5 offset:{36864 + 256*w}")
    k("s_waitcnt lgkmcnt(0)")
    k("""
    v_add_f32 v24, v24, v25
    v_add_f32 v26, v26, v27
    v_add_f32 v28, v28, v29
    v_add_f32 v30, v30, v31
    v_add_f32 v24, v24, v26
    v_add_f32 v28, v28, v30
    v_add_f32 v24, v24, v32
    v_add_f32 v24, v24, v28
    """)
    k(f"""
    s_lshl_b32 s31, s21, 14
    s_lshl_b32 s32, s24, 7
    s_add_u32 s31, s31, s32
    s_add_u32 s31, s31, {STAT}
    buffer_store_dword v24, v5, s[12:15], s31 offen
    """)
    stamp(k, 3)
    stamp_flush(k, 4, 3, "k2", 90)
    k.label("k2_done")
    tl_end(k, 2)
    k("s_endpgm")
    return k, 96, K2_LDS


K3_R = 8
K3_ST = 18432
K3_GSL = K3_R * K3_ST
K3_GBL = K3_GSL + 2304
K3_LDS = K3_GBL + 2304 + 16


class VM:
    def __init__(self):
        self.ops = []

    def add(self, tag, n=1):
        self.ops += [tag] * n

    def need(self, *tags):
        last = max((i for i, t in enumerate(self.ops) if t in tags), default=-1)
        return len(self.ops) - 1 - last


def gen_k3(k):
    R, ST = K3_R, K3_ST
    LA = PRM.get("LA", 4)
    NA = 6
    S, D, DY = PRM.get("S", 3), 4, 4
    k(f"""
    s_load_dwordx2 s[56:57], s[0:1], 48
    s_and_b32 s20, s2, 7
    s_lshl_b32 s20, s20, 2
    s_bfe_u32 s21, s2, 0x20003
    s_add_u32 s20, s20, s21
    s_lshr_b32 s21, s2, 5
    s_waitcnt lgkmcnt(0)
    """)
    stamp(k, 0)
    k(f"""
    s_cmp_ge_u32 s3, 4
    s_cselect_b32 s8, s18, s16
    s_cselect_b32 s9, s19, s17
    s_cselect_b32 s22, 9216, 0
    s_and_b32 s9, s9, 0xffff
    s_mov_b32 s10, {576*4608*2}
    s_mov_b32 s11, 0x00020000
    s_and_b32 s23, s3, 3
    s_mul_i32 s24, s23, 2304
    s_add_u32 s22, s22, s24
    s_lshl_b32 s24, s21, 4
    s_lshl_b32 s25, s3, 1
    s_add_u32 s24, s24, s25
    s_mul_i32 s25, s24, {18*1024}
    s_add_u32 s25, s25, {YY}
    s_add_u32 s26, s25, {18*1024}
    s_mov_b32 s50, -1
    s_mov_b32 s51, 0xffff
    s_mov_b32 s52, 0x3ffff
    s_mov_b32 s53, 0
    s_and_b32 s27, s23, 1
    s_mul_i32 s27, s27, {8*9216}
    s_mul_i32 s28, s20, 288
    s_add_u32 s27, s27, s28
    s_lshr_b32 s28, s23, 1
    s_mul_i32 s54, s28, {16*9216}
    s_mul_i32 s55, s28, {144*9216}
    """)
    for i in range(3):
        k(f"""
        v_add_u32 v7, {48*i}, v1
        v_mul_u32_u24 v8, 0xe39, v7
        v_lshrrev_b32 v8, 16, v8
        v_mul_u32_u24 v9, 18, v8
        v_sub_u32 v9, v7, v9
        v_mul_u32_u24 v8, 9216, v8
        v_lshl_add_u32 v8, v9, 4, v8
        v_add_u32 v{10+i}, s27, v8
        """)

    def ybuf(st, tt):
        return 72 + 8 * (st % 5) + 4 * tt

    def dma_parts(st):
        parts = []
        for i in range(3):
            p = []
            if i == 0:
                p += [f"s_add_u32 s30, s22, {(st % R) * ST}",
                      f"s_add_u32 s29, s{54 if st % 9 < 8 else 55}, {tile_of(st, 0) * 16 * 9216}"]
            p += [f"s_add_u32 m0, s30, {768*i}", "s_mov_b64 exec, s[50:51]",
                  f"buffer_load_dwordx4 v{10+i}, s[8:11], s29 offen lds", "s_mov_b64 exec, -1"]
            parts.append((p, f"w{st}"))
        return parts

    def y_parts(st):
        parts = []
        for tt in range(2):
            p = []
            if tt == 0 and st % 4 == 0 and st > 0:
                p += ["s_add_u32 s25, s25, 4096", "s_add_u32 s26, s26, 4096"]
            y = ybuf(st, tt)
            p.append(f"buffer_load_dwordx4 v[{y}:{y+3}], v3, s[12:15], s{25+tt} offen offset:{(st * 1024) % 4096} sc1")
            parts.append((p, f"y{st}"))
        return parts

    vm0 = VM()

    def emit(parts, vm, loop=False):
        for p, tag in parts:
            if loop and "nodma" in ABL:
                continue
            for ln in p:
                k(ln)
            vm.add(tag)

    emit(dma_parts(0), vm0)
    k(f"""
    v_bfe_u32 v7, v1, 2, 2
    v_lshl_add_u32 v7, v4, 2, v7
    v_mul_u32_u24 v7, 288, v7
    v_and_b32 v8, 3, v1
    v_lshl_add_u32 v13, v8, 3, v7
    v_add_u32 v14, {3*ST}, v13
    v_add_u32 v15, {6*ST}, v13
    v_and_b32 v7, 15, v1
    v_lshlrev_b32 v8, 5, v4
    v_lshl_add_u32 v8, v7, 4, v8
    v_add_u32 v8, {K3_GBL}, v8
    v_mov_b32 v9, {K3_GBL + 2304}
    v_cmp_gt_u32 vcc, 2, v7
    v_cndmask_b32 v16, v9, v8, vcc
    v_mov_b32 v19, 128
    v_cndmask_b32 v19, 0, v19, vcc
    v_mov_b32 v20, 0
    v_mov_b32 v21, 0
    v_mov_b32 v22, 0
    v_mov_b32 v23, 0
    ds_write_b128 v9, v[20:23]
    s_mul_i32 s27, s3, 288
    s_add_u32 s28, s27, {K3_GBL}
    s_add_u32 s27, s27, {GSB}
    s_mov_b32 m0, s28
    s_mov_b64 exec, s[52:53]
    buffer_load_dwordx4 v3, s[12:15], s27 offen lds
    s_mov_b64 exec, -1
    """)
    vm0.add("gsb")
    for st in range(1, D):
        emit(dma_parts(st), vm0)
    k(f"""
    s_lshl_b32 s33, s21, 8
    s_add_u32 s33, s33, {CNT + 32*256}
    v_mov_b32 v17, s33
    s_mov_b32 s37, 0
    s_cmp_lg_u32 s3, 7
    s_cbranch_scc1 k3_ready
    s_mov_b64 exec, 1
    """)
    k.label("k3_poll")
    k("""
    global_load_dword v18, v17, s[86:87] sc1
    s_waitcnt vmcnt(0)
    v_readfirstlane_b32 s38, v18
    s_add_u32 s37, s37, 1
    s_cmp_ge_u32 s38, 32
    s_cbranch_scc1 k3_ready
    s_cmp_lt_u32 s37, 0x400000
    s_cbranch_scc0 k3_ready
    s_sleep 2
    s_branch k3_poll
    """)
    k.label("k3_ready")
    k("s_mov_b64 exec, -1")
    k("s_barrier")
    ts(k, 6)
    for st in range(D):
        emit(y_parts(st), vm0)
    k(f"""
    v_and_b32 v17, 31, v1
    s_lshl_b32 s27, s24, 4
    v_add_u32 v17, s27, v17
    v_lshlrev_b32 v17, 3, v17
    v_lshrrev_b32 v18, 5, v1
    v_mul_u32_u24 v18, {2*16384}, v18
    v_add_u32 v17, v17, v18
    s_mov_b32 s27, {STAT}
    s_mov_b32 s28, {STAT + 16384}
    buffer_load_dwordx2 v[6:7], v17, s[12:15], s27 offen sc1
    buffer_load_dwordx2 v[8:9], v17, s[12:15], s28 offen sc1
    """)
    vm0.add("stat", 2)
    k("""
    s_and_b32 s60, s23, 1
    s_mul_i32 s60, s60, 9216
    s_lshr_b32 s61, s23, 1
    s_lshl_b32 s61, s61, 5
    s_add_u32 s60, s60, s61
    s_add_u32 s61, s60, 64
    s_add_u32 s62, s60, 128
    s_add_u32 s63, s60, 192
    s_add_u32 s64, s60, 256
    s_cmp_lt_u32 s23, 2
    s_cselect_b32 s64, s64, s63
    """)

    def acc(tt, m, ft):
        return 112 + ((tt * 2 + m) * 9 + ft) * 4

    frs = [(m, ft) for ft in range(9) for m in range(2)]
    GB = 20

    def body(grp):
        import copy
        vm = copy.deepcopy(vm0)
        nx = 5 if grp == 0 and "nogs" not in ABL else 0
        per = 18 + nx
        seq = []
        xi = 0
        for j in range(18):
            seq.append(("m", j))
            if nx and j % 4 == 1 and xi < nx:
                seq.append(("x", xi)); xi += 1
        while xi < nx:
            seq.append(("x", xi)); xi += 1
        NQ = 18 * per

        def areg(q):
            return 48 + 4 * (q % NA)

        def read_frag(q):
            st, j = divmod(q, per)
            kind, idx = seq[j]
            sl = st % R
            base = 13 + sl // 3
            a = areg(q)
            if "halfread" in ABL and q >= 12 and (q & 1):
                k("s_nop 0")
                k("s_nop 0")
                return
            if kind == "m":
                m, ft = frs[idx]
                off = (sl % 3) * ST + m * 9216 + ft * 32
                k(f"ds_read_b64_tr_b16 v[{a}:{a+1}], v{base} offset:{off}")
                k(f"ds_read_b64_tr_b16 v[{a+2}:{a+3}], v{base} offset:{off + 4608}")
            else:
                t = 17 + (idx & 1)
                off = (sl % 3) * ST
                k(f"v_add_u32 v{t}, s{60+idx}, v{base}")
                k(f"ds_read_b64_tr_b16 v[{a}:{a+1}], v{t} offset:{off}")
                k(f"ds_read_b64_tr_b16 v[{a+2}:{a+3}], v{t} offset:{off + 4608}")

        BJ = PRM.get("BJ0", 8) if grp == 0 else PRM.get("BJ1", 2)
        VJ = PRM.get("VJ0", 12) if grp == 0 else BJ
        if PRM.get("P%d" % grp, 0):
            k(f"s_setprio {PRM['P%d' % grp]}")
        k(f"s_waitcnt vmcnt({vm.need('w0', 'y0', 'gsb')}) lgkmcnt(0)")
        k("s_barrier")
        stamp(k, 1)
        for t in range(18 + S * grp):
            st = t - S * grp
            parts = []
            if t + D < 18:
                parts += dma_parts(t + D)
            ys = st + DY
            if grp == 0:
                if ys < 18:
                    parts += y_parts(ys)
            else:
                if D <= ys < 18:
                    parts += y_parts(ys)
            if st < 0:
                k(f"s_waitcnt vmcnt({vm.need(f'w{t+1}')})")
                k("s_barrier")
                emit(parts, vm)
                continue
            if st == 0:
                if grp == 0:
                    k(f"ds_read_b128 v[{GB}:{GB+3}], v16")
                else:
                    k(f"s_waitcnt vmcnt({vm.need('y0')})")
                for q in range(LA):
                    read_frag(q)
            pi = 0
            for j in range(per):
                q = st * per + j
                if j == BJ and t <= 18:
                    need = []
                    if t + 1 < 18:
                        need.append(f"w{t+1}")
                    if st + 1 < 18:
                        need.append(f"y{st+1}")
                    if need:
                        k(f"s_waitcnt vmcnt({vm.need(*need)})")
                    if t < 17 or (grp == 1 and t == 18):
                        k("s_barrier")
                    if st in (0, 6, 12):
                        stamp(k, 2 + (0, 6, 12).index(st))
                elif j == BJ and st + 1 < 18:
                    k(f"s_waitcnt vmcnt({vm.need(f'y{st+1}')})")
                if grp == 0 and j == 2 and st < 17:
                    g_ = GB + 4 * ((st + 1) & 1)
                    k("v_add_u32 v16, v16, v19")
                    k(f"ds_read_b128 v[{g_}:{g_+3}], v16")
                if q + LA < NQ:
                    read_frag(q + LA)
                    k(f"s_waitcnt lgkmcnt({2*LA})")
                else:
                    k(f"s_waitcnt lgkmcnt({2*(NQ-1-q)})")
                kind, idx = seq[j]
                a = areg(q)
                if kind == "m":
                    m, ft = frs[idx]
                    for tt in range(2):
                        c = acc(tt, m, ft)
                        y = ybuf(st, tt)
                        cs = "0" if st == 0 else f"v[{c}:{c+3}]"
                        k(f"v_mfma_f32_16x16x32_bf16 v[{c}:{c+3}], v[{a}:{a+3}], v[{y}:{y+3}], {cs}")
                else:
                    gc = 28 + 4 * idx
                    g_ = GB + 4 * (st & 1)
                    cs = "0" if st == 0 else f"v[{gc}:{gc+3}]"
                    k(f"v_mfma_f32_16x16x32_bf16 v[{gc}:{gc+3}], v[{a}:{a+3}], v[{g_}:{g_+3}], {cs}")
                if grp == 1 and j == BJ and "spread1" not in ABL:
                    emit(parts, vm, True)
                    pi = len(parts)
                elif j >= VJ and pi < len(parts):
                    emit(parts[pi:pi + 1], vm, True)
                    pi += 1
                if "fake2p" in ABL and st >= 8 and kind == "m":
                    fk = (st * 18 + idx) % 9
                    ops = ["v_fma_f32 v2, v2, v4, v1", "v_fma_f32 v5, v5, v4, v1", "v_exp_f32 v2, v2", "v_mul_f32 v5, v5, v2",
                           "v_fma_f32 v2, v2, v4, v1", "v_rcp_f32 v5, v5", "v_mul_f32 v2, v5, v2", "v_add_f32 v5, 1.0, v5",
                           "v_fma_f32 v2, v2, v4, v1"]
                    k(ops[fk]); k(ops[(fk + 4) % 9])
                    if idx % 6 == 0:
                        k(ops[(fk + 7) % 9])
                    if idx == 9 and st % 2 == 0:
                        k(f"s_mul_i32 s27, s24, {144*1024}")
                        k(f"s_add_u32 s27, s27, {HH + 0}")
                        k(f"s_mul_i32 s28, s20, {4608}")
                        k(f"s_add_u32 s27, s27, s28")
                        k(f"buffer_store_dwordx4 v[112:115], v3, s[12:15], s27 offen offset:{((st-8)//2 % 4)*1024}")
                        vm.add("st")
                if t == 14 and j == per - 1:
                    k(f"""
                    v_min_u32 v5, 161, v0
                    s_mul_i32 s31, s2, {162*128}
                    v_lshl_add_u32 v5, v5, 7, s31
                    global_load_dword v2, v5, s[56:57]
                    """)
                    vm.add("pf")
            assert pi == len(parts)
        stamp(k, 5)
        if grp == 0:
            k(f"""
            v_and_b32 v5, 15, v1
            v_mul_u32_u24 v5, 576, v5
            v_lshl_add_u32 v5, v4, 4, v5
            s_and_b32 s31, s3, 1
            s_mul_i32 s31, s31, 1152
            s_lshr_b32 s32, s3, 1
            s_lshl_b32 s32, s32, 6
            s_add_u32 s31, s31, s32
            s_add_u32 s31, s31, {K3_GSL}
            v_add_u32 v5, s31, v5
            s_mov_b32 exec_lo, 0x00030003
            s_mov_b32 exec_hi, 0x00030003
            ds_write_b128 v5, v[28:31]
            ds_write_b128 v5, v[32:35] offset:128
            ds_write_b128 v5, v[36:39] offset:256
            ds_write_b128 v5, v[40:43] offset:384
            s_cmp_ge_u32 s3, 2
            s_cbranch_scc1 k3_gs_w
            ds_write_b128 v5, v[44:47] offset:512
            """)
            k.label("k3_gs_w")
            k("""
            s_mov_b64 exec, -1
            s_waitcnt lgkmcnt(0)
            s_barrier
            """)

    k("s_cmp_ge_u32 s3, 4")
    k("s_cbranch_scc1 k3_grp1")
    body(0)
    k("s_branch k3_epi")
    k.label("k3_grp1")
    body(1)
    k.label("k3_epi")
    k("s_setprio 0")
    ts(k, 7)
    if "noepi" in ABL:
        k("s_branch k3_done")
    k("""
    s_nop 7
    v_add_f32 v20, v6, v8
    v_add_f32 v21, v7, v9
    v_mov_b32 v22, v20
    v_mov_b32 v23, v21
    v_permlane32_swap_b32 v20, v22
    v_permlane32_swap_b32 v21, v23
    v_add_f32 v20, v20, v22
    v_add_f32 v21, v21, v23
    v_mul_f32 v20, 0x3ae38e39, v20
    v_mul_f32 v21, 0x3ae38e39, v21
    v_fma_f32 v21, -v20, v20, v21
    v_max_f32 v21, 0, v21
    """)
    bf16_round(k, 21, 21)
    k("v_add_f32 v21, 0x3727c5ac, v21")
    bf16_round(k, 21, 21)
    k("v_sqrt_f32 v21, v21")
    bf16_round(k, 21, 21)
    k("v_rcp_f32 v21, v21")
    bf16_round(k, 20, 20)
    k("""
    v_mul_f32 v20, v20, v21
    v_sub_f32 v20, 0, v20
    v_mov_b32 v24, v21
    v_mov_b32 v26, v21
    v_mov_b32 v28, v20
    v_mov_b32 v30, v20
    v_permlane16_swap_b32 v24, v26
    v_permlane16_swap_b32 v28, v30
    """)
    k(f"""
    v_lshlrev_b32 v5, 4, v4
    v_add_u32 v5, {K3_GSL}, v5
    s_mul_i32 s27, s24, {144*1024}
    s_add_u32 s27, s27, {HH}
    s_lshr_b32 s28, s20, 1
    s_mul_i32 s28, s28, {9*1024}
    s_add_u32 s27, s27, s28
    s_and_b32 s28, s20, 1
    s_lshl_b32 s42, s28, 3
    s_add_u32 s42, s42, s27
    s_add_u32 s42, s42, 8192
    s_add_u32 s43, s42, {144*1024}
    s_lshl_b32 s28, s28, 12
    s_add_u32 s32, s27, s28
    s_add_u32 s33, s32, {144*1024}
    s_mov_b32 s40, 0xbfb8aa3b
    s_mov_b32 s41, 0xbfb8aa3b
    """)

    def gsreg(ft):
        return 48 + 16 * (ft % 2)

    def read_gs(ft):
        g = gsreg(ft)
        for a in range(4):
            k(f"ds_read_b128 v[{g+4*a}:{g+4*a+3}], v5 offset:{a*576 + ft*64}")

    read_gs(0)
    for ft in range(9):
        g = gsreg(ft)
        if "fake2p" in ABL and ft < 5:
            continue
        if ft < 8:
            read_gs(ft + 1)
        k(f"s_waitcnt lgkmcnt({4 if ft < 8 else 0})")
        U4 = [(tt, h) for tt in range(2) for h in range(2)]
        for u, (tt, h) in enumerate(U4):
            mr = 28 + 2 * tt
            k(f"v_pk_fma_f32 v[{80+2*u}:{81+2*u}], v[{g+2*h}:{g+2*h+1}], v[{mr}:{mr+1}], v[{g+4+2*h}:{g+4+2*h+1}] op_sel_hi:[1,0,1]")
        for u, (tt, h) in enumerate(U4):
            mr = 28 + 2 * tt
            k(f"v_pk_fma_f32 v[{88+2*u}:{89+2*u}], v[{g+8+2*h}:{g+8+2*h+1}], v[{mr}:{mr+1}], v[{g+12+2*h}:{g+12+2*h+1}] op_sel_hi:[1,0,1]")
        for u, (tt, h) in enumerate(U4):
            r = 24 + 2 * tt
            ga = acc(tt, 0, ft)
            k(f"v_pk_fma_f32 v[{80+2*u}:{81+2*u}], v[{ga+2*h}:{ga+2*h+1}], v[{r}:{r+1}], v[{80+2*u}:{81+2*u}] op_sel_hi:[1,0,1]")
        for u, (tt, h) in enumerate(U4):
            k(f"v_pk_mul_f32 v[{96+2*u}:{97+2*u}], v[{80+2*u}:{81+2*u}], s[40:41]")
        for u, (tt, h) in enumerate(U4):
            r = 24 + 2 * tt
            ua = acc(tt, 1, ft)
            k(f"v_pk_fma_f32 v[{88+2*u}:{89+2*u}], v[{ua+2*h}:{ua+2*h+1}], v[{r}:{r+1}], v[{88+2*u}:{89+2*u}] op_sel_hi:[1,0,1]")
        for e in range(8):
            if "notrans" not in ABL:
                k(f"v_exp_f32 v{96+e}, v{96+e}")
        for u in range(4):
            k(f"v_pk_mul_f32 v[{80+2*u}:{81+2*u}], v[{80+2*u}:{81+2*u}], v[{88+2*u}:{89+2*u}]")
        for u in range(4):
            k(f"v_pk_add_f32 v[{96+2*u}:{97+2*u}], v[{96+2*u}:{97+2*u}], 1.0 op_sel_hi:[1,0]")
        for e in range(8):
            if "notrans" not in ABL:
                k(f"v_rcp_f32 v{96+e}, v{96+e}")
        for u in range(4):
            k(f"v_pk_mul_f32 v[{80+2*u}:{81+2*u}], v[{80+2*u}:{81+2*u}], v[{96+2*u}:{97+2*u}]")
        pb = (ft >> 1) & 1
        for u, (tt, h) in enumerate(U4):
            o = (32 if pb == 0 else 40) + 4 * tt + 2 * (ft & 1) + h
            k(f"v_cvt_pk_bf16_f32 v{o}, v{80+2*u}, v{81+2*u}")
        for tt in range(2):
            o = (32 if pb == 0 else 40) + 4 * tt
            if "nostore" in ABL:
                continue
            if ft == 8:
                k(f"buffer_store_dwordx2 v[{o}:{o+1}], v3, s[12:15], s{42+tt} offen sc1")
            elif ft & 1:
                k(f"buffer_store_dwordx4 v[{o}:{o+3}], v3, s[12:15], s{32+tt} offen offset:{(ft>>1)*1024} sc1")
    stamp(k, 6)
    stamp_flush(k, 8, 3, "k3")
    k.label("k3_done")
    k(f"""
    s_waitcnt vmcnt(0) lgkmcnt(0)
    s_barrier
    s_lshl_b32 s33, s21, 8
    s_add_u32 s33, s33, {CNT + 40*256}
    v_mov_b32 v9, s33
    s_cmp_lg_u32 s3, 7
    s_cbranch_scc1 k3_nosig
    v_mov_b32 v8, 1
    s_mov_b64 exec, 1
    global_atomic_add v9, v8, s[86:87]
    s_mov_b64 exec, -1
    """)
    k.label("k3_nosig")
    ts(k, 8)
    return gen_k4(k)


K4_LDS = 160 * 1024
K4_GRID = 240


def gen_k4(k):
    NS = PRM.get("NS4", 3)
    k(f"""
    s_cmp_ge_u32 s2, {K4_GRID}
    s_cbranch_scc1 k4_done
    s_and_b32 s20, s2, 7
    s_mul_i32 s20, s20, 30
    s_lshr_b32 s21, s2, 3
    s_add_u32 s22, s20, s21
    s_cmp_ge_u32 s22, 234
    s_cbranch_scc1 k4_done
    s_load_dwordx2 s[16:17], s[0:1], 48
    s_load_dwordx2 s[18:19], s[0:1], 72
    s_mul_i32 s20, s22, 0x1c72
    s_lshr_b32 s20, s20, 16
    s_mul_i32 s21, s20, 9
    s_sub_u32 s21, s22, s21
    s_waitcnt lgkmcnt(0)
    """)
    stamp(k, 0)
    srd(k, 8, 16, 4608 * 576 * 2)
    srd(k, 44, 18, 2048 * 576 * 2)
    k(f"s_mul_i32 s22, s20, 5")
    k(f"s_mul_i32 s23, s3, {18*1024}")
    for tt in range(5):
        k(f"""
        s_add_u32 s29, s22, {tt}
        s_min_u32 s29, s29, 127
        s_mul_i32 s29, s29, {144*1024}
        s_add_u32 s29, s29, s23
        s_add_u32 s{24+tt}, s29, {HH}
        """)
    k(f"""
    s_mul_i32 s30, s3, {NS*4096}
    s_mul_i32 s31, s3, {576*1152}
    s_lshl_b32 s29, s21, 7
    s_add_u32 s31, s31, s29
    v_lshrrev_b32 v7, 3, v1
    v_and_b32 v8, 7, v1
    v_bfe_u32 v9, v7, 1, 2
    v_lshlrev_b32 v9, 1, v9
    v_xor_b32 v8, v8, v9
    v_mul_u32_u24 v7, 1152, v7
    v_lshl_add_u32 v7, v8, 4, v7
    v_add_u32 v10, s31, v7
    v_add_u32 v11, {8*1152}, v10
    """)
    k(f"""
    v_bfe_u32 v7, v1, 2, 2
    v_lshl_add_u32 v7, v4, 2, v7
    v_bfe_u32 v8, v7, 1, 2
    v_lshlrev_b32 v8, 1, v8
    v_bfe_u32 v9, v1, 1, 1
    v_lshlrev_b32 v7, 7, v7
    v_and_b32 v16, 1, v1
    v_lshl_add_u32 v7, v16, 3, v7
    v_add_u32 v7, s30, v7
    """)
    for nt in range(4):
        k(f"""
        v_or_b32 v16, {2*nt}, v9
        v_xor_b32 v16, v16, v8
        v_lshl_add_u32 v{12+nt}, v16, 4, v7
        """)

    def hbuf(it, tt):
        return 32 + 20 * (it % NS) + 4 * tt if NS <= 4 else None

    vm4 = VM()

    def issue_w(it):
        for i in range(4):
            half = i >> 1
            k(f"s_mov_b32 s29, {tile_of(it, half) * 16 * 1152}")
            k(f"s_add_u32 m0, s30, {(it % NS) * 4096 + 1024 * i}")
            k(f"buffer_load_dwordx4 v{10 + (i & 1)}, s[8:11], s29 offen lds")
        vm4.add(f"w{it}", 4)

    def issue_h(it):
        if it % 4 == 0 and it > 0:
            for tt in range(5):
                k(f"s_add_u32 s{24+tt}, s{24+tt}, 4096")
        for tt in range(5):
            h = hbuf(it, tt)
            k(f"buffer_load_dwordx4 v[{h}:{h+3}], v3, s[12:15], s{24+tt} offen offset:{(it % 4) * 1024} sc1")
        vm4.add(f"h{it}", 5)

    def acc(tt, nt):
        return 128 + (tt * 4 + nt) * 4

    NIT = 18
    for it in range(NS - 1):
        issue_w(it)
    k(f"""
    s_lshr_b32 s33, s22, 4
    s_add_u32 s34, s22, 4
    s_min_u32 s34, s34, 127
    s_lshr_b32 s34, s34, 4
    s_lshl_b32 s33, s33, 8
    s_lshl_b32 s34, s34, 8
    s_add_u32 s33, s33, {CNT + 40*256}
    s_add_u32 s34, s34, {CNT + 40*256}
    v_mov_b32 v17, s33
    v_mov_b32 v18, s34
    s_mov_b32 s37, 0
    s_cmp_lg_u32 s3, 7
    s_cbranch_scc1 k4_ready
    s_mov_b64 exec, 1
    """)
    k.label("k4_poll")
    k("""
    global_load_dword v19, v17, s[86:87] sc1
    global_load_dword v20, v18, s[86:87] sc1
    s_waitcnt vmcnt(0)
    v_min_u32 v19, v19, v20
    v_readfirstlane_b32 s38, v19
    s_add_u32 s37, s37, 1
    s_cmp_ge_u32 s38, 32
    s_cbranch_scc1 k4_ready
    s_cmp_lt_u32 s37, 0x400000
    s_cbranch_scc0 k4_ready
    s_sleep 2
    s_branch k4_poll
    """)
    k.label("k4_ready")
    k("s_mov_b64 exec, -1")
    k("s_barrier")
    ts(k, 9)
    for it in range(NS - 1):
        issue_h(it)
    for it in range(NIT):
        if it + NS - 1 < NIT:
            issue_w(it + NS - 1)
            issue_h(it + NS - 1)
        k(f"s_waitcnt vmcnt({vm4.need(f'w{it}', f'h{it}')})")
        if it in (0, 1, 9):
            stamp(k, 1 + (0, 1, 9).index(it))
        for nt in range(4):
            a = 112 + 4 * nt
            off = (it % NS) * 4096
            k(f"ds_read_b64_tr_b16 v[{a}:{a+1}], v{12+nt} offset:{off}")
            k(f"ds_read_b64_tr_b16 v[{a+2}:{a+3}], v{12+nt} offset:{off + 2048}")
        for nt in range(4):
            a = 112 + 4 * nt
            k(f"s_waitcnt lgkmcnt({2*(3-nt)})")
            for tt in range(5):
                c = acc(tt, nt)
                h = hbuf(it, tt)
                cs = "0" if it == 0 else f"v[{c}:{c+3}]"
                k(f"v_mfma_f32_16x16x32_bf16 v[{c}:{c+3}], v[{a}:{a+3}], v[{h}:{h+3}], {cs}")
    ts(k, 10)
    stamp(k, 4)
    k("s_barrier")
    stamp(k, 5)
    k(f"s_mul_i32 s33, s3, 20480")
    k("v_add_u32 v5, s33, v3")
    for u in range(20):
        c = 128 + 4 * u
        k(f"ds_write_b128 v5, v[{c}:{c+3}] offset:{1024*u}")
    k("""
    s_mov_b32 s34, s3
    s_add_u32 s35, s3, 8
    s_add_u32 s36, s3, 16
    s_cmp_lt_u32 s3, 4
    s_cselect_b32 s36, s36, s35
    v_lshlrev_b32 v9, 3, v1
    v_lshlrev_b32 v11, 4, v4
    v_and_b32 v12, 15, v1
    v_mul_u32_u24 v12, 1152, v12
    v_lshl_add_u32 v12, v4, 3, v12
    """)
    for j in range(3):
        k(f"""
        s_lshr_b32 s37, s{34+j}, 2
        s_and_b32 s38, s{34+j}, 3
        s_add_u32 s37, s37, s22
        s_min_u32 s39, s37, 127
        s_mul_i32 s40, s39, {144*128}
        s_lshl_b32 s41, s21, 11
        s_add_u32 s40, s40, s41
        s_lshl_b32 s41, s38, 9
        s_add_u32 s40, s40, s41
        s_add_u32 s40, s40, {X1}
        buffer_load_dwordx2 v[{120+2*j}:{121+2*j}], v9, s[12:15], s40 offen sc1
        s_lshl_b32 s40, s21, 8
        s_lshl_b32 s41, s38, 6
        s_add_u32 s40, s40, s41
        s_add_u32 s40, s40, {MOD + 5*576*4}
        buffer_load_dwordx4 v[{208+4*j}:{211+4*j}], v11, s[12:15], s40 offen
        s_mul_i32 s40, s37, {16*1152}
        s_lshl_b32 s41, s21, 7
        s_add_u32 s40, s40, s41
        s_lshl_b32 s41, s38, 5
        s_add_u32 s{50+j}, s40, s41
        s_lshl_b32 s40, s{34+j}, 10
        v_add_u32 v{6+j}, s40, v3
        v_add_u32 v{13+j}, {4*20480}, v{6+j}
        """)
    k("s_waitcnt lgkmcnt(0)")
    k("s_barrier")

    def rr(j, sl):
        return 16 + 4 * j if sl == 0 else 28 + (j * 7 + sl - 1) * 4

    for j in range(3):
        for sl in range(8):
            r = rr(j, sl)
            k(f"ds_read_b128 v[{r}:{r+3}], v{(6 if sl < 4 else 13)+j} offset:{(sl % 4)*20480}")
    for j in range(3):
        k(f"s_waitcnt lgkmcnt({min(15, 8*(2-j))})")
        for sl in range(1, 8):
            r = rr(j, sl)
            k(f"v_pk_add_f32 v[{16+4*j}:{17+4*j}], v[{16+4*j}:{17+4*j}], v[{r}:{r+1}]")
            k(f"v_pk_add_f32 v[{18+4*j}:{19+4*j}], v[{18+4*j}:{19+4*j}], v[{r+2}:{r+3}]")
    k("s_waitcnt vmcnt(0)")
    for j in range(3):
        c = 16 + 4 * j
        gb = 208 + 4 * j
        xr = 120 + 2 * j
        t = 32 + 8 * j
        k(f"""
        v_cvt_pk_bf16_f32 v{t}, v{c}, v{c+1}
        v_cvt_pk_bf16_f32 v{t+1}, v{c+2}, v{c+3}
        v_lshlrev_b32 v{c}, 16, v{t}
        v_and_b32 v{c+1}, 0xffff0000, v{t}
        v_lshlrev_b32 v{c+2}, 16, v{t+1}
        v_and_b32 v{c+3}, 0xffff0000, v{t+1}
        v_pk_mul_f32 v[{c}:{c+1}], v[{c}:{c+1}], v[{gb}:{gb+1}]
        v_pk_mul_f32 v[{c+2}:{c+3}], v[{c+2}:{c+3}], v[{gb+2}:{gb+3}]
        v_cvt_pk_bf16_f32 v{t}, v{c}, v{c+1}
        v_cvt_pk_bf16_f32 v{t+1}, v{c+2}, v{c+3}
        v_lshlrev_b32 v{c}, 16, v{t}
        v_and_b32 v{c+1}, 0xffff0000, v{t}
        v_lshlrev_b32 v{c+2}, 16, v{t+1}
        v_and_b32 v{c+3}, 0xffff0000, v{t+1}
        v_lshlrev_b32 v{t+2}, 16, v{xr}
        v_and_b32 v{t+3}, 0xffff0000, v{xr}
        v_lshlrev_b32 v{t+4}, 16, v{xr+1}
        v_and_b32 v{t+5}, 0xffff0000, v{xr+1}
        v_pk_add_f32 v[{c}:{c+1}], v[{c}:{c+1}], v[{t+2}:{t+3}]
        v_pk_add_f32 v[{c+2}:{c+3}], v[{c+2}:{c+3}], v[{t+4}:{t+5}]
        v_cvt_pk_bf16_f32 v{t+6}, v{c}, v{c+1}
        v_cvt_pk_bf16_f32 v{t+7}, v{c+2}, v{c+3}
        buffer_store_dwordx2 v[{t+6}:{t+7}], v12, s[44:47], s{50+j} offen
        """)
    stamp(k, 6)
    stamp_flush(k, 7, 3, "k4")
    k("s_waitcnt vmcnt(0)") if DIAG else None
    ts(k, 11)
    k.label("k4_done")
    k("s_endpgm")
    return k, 256, K4_LDS


KERNELS = []


def build(kernels, path):
    head = ["; adaLN + sliding dilated local attention + SwiGLU block (generated by the author's own script).",
            "; prep_kernel: mod = silu(c) @ w_mod, LN1 normalisation, MFMA-fragment packing of wqkv / wo, counter reset.",
            "; qkv_attn_kernel (persistent, one workgroup per CU): modulate + QKV GEMM + local attention -> wo GEMM + residual",
            ";   -> gate/up GEMM (LN2 folded into the epilogue) + SwiGLU -> down GEMM + residual.",
            ";   Phases hand data over with write-through (sc1) stores, per-block counters in d_ws and sc1 loads."]
    texts, descs = [], []
    for (gen, grid, block) in kernels:
        k, vgpr, lds = gen()
        head.append(f"; @launch kernel={k.name} grid=({grid},1,1) block=({block},1,1) lds={lds}")
        t, d = kernel_text(k, vgpr)
        texts.append(t)
        descs.append(d)
    out = "\n".join(head) + "\n.amdgcn_target \"amdgcn-amd-amdhsa--gfx950\"\n.text\n" + "\n".join(texts) + \
        "\n.section .rodata,\"a\"\n" + "".join(descs)
    open(path, "w").write(out)


if __name__ == "__main__":
    if len(sys.argv) > 2 and sys.argv[2] == "diag":
        DIAG = True
    for a_ in sys.argv[3:]:
        if "=" in a_:
            PRM[a_.split("=")[0]] = int(a_.split("=")[1])
        else:
            ABL.add(a_)
    build([(gen_k0, K0_GRID, 256), (gen_k1, 256, 512)], sys.argv[1] if len(sys.argv) > 1 else "k.s")
```

```python
import sys
from asmlib import K, kernel_text

NAME = "adaLN_cond__sliding_local_dilated__glu_gated_swiglu__prompt"

MOD = 0x0000000
GSB = 0x0010000
CNT = 0x0020000
STAT = 0x0040000
XN = 0x0100000
WQ = 0x0400000
WOP = 0x0700000
OO = 0x0800000
X1 = 0x0B00000
YY = 0x0E00000
HH = 0x1100000
W2P = 0x2400000
WS_BYTES = 268435456

LOG2E = "0x3fb8aa3b"
PART = 0x2400000


def tile_of(ks, half):
    p, i = divmod(ks, 9)
    if i < 8:
        return (2 * p + (i >> 2)) * 9 + 2 * (i & 3) + half
    return (2 * p + half) * 9 + 8


def srd(k, d, lo, nbytes):
    k(f"""
    s_mov_b32 s{d}, s{lo}
    s_and_b32 s{d+1}, s{lo+1}, 0xffff
    s_mov_b32 s{d+2}, {nbytes}
    s_mov_b32 s{d+3}, 0x00020000
    """)


DIAG = False
ABL = set()
PRM = {}


def stamp(k, idx):
    pass


def stamp_flush(k, n, wave_sgpr, tag, vb=200):
    pass


TSN = [0]


def ts(k, idx, vt=2):
    if not DIAG:
        return
    TSN[0] += 1
    n = TSN[0]
    k(f"""
    s_cmp_lg_u32 s3, 7
    s_cbranch_scc1 ts_skip_{n}
    s_memrealtime s[98:99]
    s_memtime s[94:95]
    s_lshl_b32 s97, s2, 7
    s_add_u32 s97, s97, {0x3000000 + 4*idx}
    s_waitcnt lgkmcnt(0)
    v_mov_b32 v{vt}, s98
    s_mov_b64 exec, 1
    buffer_store_dword v{vt}, off, s[12:15], s97
    v_mov_b32 v{vt}, s94
    buffer_store_dword v{vt}, off, s[12:15], s97 offset:64
    s_mov_b64 exec, -1
    """)
    k.label(f"ts_skip_{n}")


TL = 0x3000000


def tl_start(k):
    pass


def tl_end(k, kid):
    pass


def bf16_round(k, dst, src, tmp=None):
    k(f"v_cvt_pk_bf16_f32 v{dst}, v{src}, v{src}")
    k(f"v_lshlrev_b32 v{dst}, 16, v{dst}")


K0_MOD, K0_XN, K0_WQ, K0_WO = 108, 64, 144, 54
K0_GRID = K0_MOD + K0_XN + K0_WQ + K0_WO


def pack_chunk(k, srd_src, rowstride, zero_hi_mask_sgpr=None):
    for r in range(8):
        k(f"s_mov_b32 s{24+r}, {r*rowstride}")
    for r in range(8):
        k(f"buffer_load_dwordx2 v[{16+2*r}:{17+2*r}], v10, s[{srd_src}:{srd_src+3}], s{24+r} offen")
    k("s_mov_b32 s32, 0x05040100")
    k("s_mov_b32 s33, 0x07060302")
    k("s_waitcnt vmcnt(0)")
    if zero_hi_mask_sgpr is not None:
        for r in range(8):
            k(f"v_cndmask_b32 v{17+2*r}, v{17+2*r}, 0, s[{zero_hi_mask_sgpr}:{zero_hi_mask_sgpr+1}]")
    for j in range(4):
        d = j >> 1
        sel = 32 + (j & 1)
        for q in range(4):
            lo = 16 + 2 * (2 * q) + d
            hi = 16 + 2 * (2 * q + 1) + d
            k(f"v_perm_b32 v{32+4*j+q}, v{hi}, v{lo}, s{sel}")
    for j in range(4):
        k(f"buffer_store_dwordx4 v[{32+4*j}:{35+4*j}], v11, s[12:15], 0 offen offset:{16*j}")


def gen_k0():
    k = K("prep_kernel")
    tl_start(k)
    k(f"""
    s_cmp_ge_u32 s2, {K0_GRID}
    s_cbranch_scc1 k0_done
    s_load_dwordx2 s[4:5], s[0:1], 0
    s_load_dwordx4 s[16:19], s[0:1], 8
    s_load_dwordx4 s[20:23], s[0:1], 56
    s_load_dwordx2 s[6:7], s[0:1], 88
    v_and_b32 v1, 63, v0
    v_lshrrev_b32 v2, 6, v0
    s_waitcnt lgkmcnt(0)
    """)
    srd(k, 12, 6, WS_BYTES)
    k(f"""
    v_readfirstlane_b32 s3, v2
    s_cmp_ge_u32 s2, {K0_MOD}
    s_cbranch_scc1 k0_not_mod
    """)
    k("""
    v_and_b32 v3, 3, v0
    v_lshrrev_b32 v4, 2, v0
    v_mul_u32_u24 v5, 6912, v4
    v_lshl_add_u32 v5, v3, 4, v5
    s_lshl_b32 s10, s2, 6
    v_add_u32 v5, s10, v5
    v_lshlrev_b32 v6, 1, v4
    """)
    for i in range(9):
        k(f"global_load_ushort v{60+i}, v6, s[20:21] offset:{128*i}")
    for i in range(9):
        k(f"global_load_dwordx4 v[{16+4*i}:{19+4*i}], v5, s[22:23]")
        if i < 8:
            k(f"v_add_u32 v5, {64*6912}, v5")
    for j in range(8):
        k(f"v_mov_b32 v{80+j}, 0")
    k("s_waitcnt vmcnt(9)")
    for i in range(9):
        c = 60 + i
        k(f"""
        v_lshlrev_b32 v{c}, 16, v{c}
        v_mul_f32 v70, 0xbfb8aa3b, v{c}
        v_exp_f32 v70, v70
        v_add_f32 v70, 1.0, v70
        v_rcp_f32 v70, v70
        v_mul_f32 v{c}, v{c}, v70
        """)
        bf16_round(k, c, c)
    for i in range(9):
        k(f"s_waitcnt vmcnt({8-i})")
        for q in range(4):
            w = 16 + 4 * i + q
            k(f"""
            v_lshlrev_b32 v71, 16, v{w}
            v_and_b32 v72, 0xffff0000, v{w}
            v_fmac_f32 v{80+2*q}, v{60+i}, v71
            v_fmac_f32 v{81+2*q}, v{60+i}, v72
            """)
    k("""
    v_lshlrev_b32 v7, 5, v0
    ds_write_b128 v7, v[80:83]
    ds_write_b128 v7, v[84:87] offset:16
    s_waitcnt lgkmcnt(0)
    s_barrier
    v_and_b32 v8, 31, v0
    v_lshrrev_b32 v9, 5, v0
    v_lshlrev_b32 v10, 10, v9
    v_lshl_add_u32 v10, v8, 2, v10
    """)
    for i in range(8):
        k(f"ds_read_b32 v{16+i}, v10 offset:{128*i}")
    k("s_waitcnt lgkmcnt(0)")
    k("""
    v_add_f32 v16, v16, v17
    v_add_f32 v18, v18, v19
    v_add_f32 v20, v20, v21
    v_add_f32 v22, v22, v23
    v_add_f32 v16, v16, v18
    v_add_f32 v20, v20, v22
    v_add_f32 v16, v16, v20
    v_lshlrev_b32 v11, 2, v0
    ds_write_b32 v11, v16 offset:8192
    s_waitcnt lgkmcnt(0)
    s_barrier
    v_cmp_gt_u32 vcc, 32, v0
    s_and_saveexec_b64 s[36:37], vcc
    s_cbranch_execz k0_done
    """)
    for i in range(8):
        k(f"ds_read_b32 v{16+i}, v11 offset:{8192+128*i}")
    k("s_waitcnt lgkmcnt(0)")
    k("""
    v_add_f32 v16, v16, v17
    v_add_f32 v18, v18, v19
    v_add_f32 v20, v20, v21
    v_add_f32 v22, v22, v23
    v_add_f32 v16, v16, v18
    v_add_f32 v20, v20, v22
    v_add_f32 v16, v16, v20
    """)
    bf16_round(k, 16, 16)
    k("""
    s_mov_b32 s11, 0
    s_cmp_ge_u32 s2, 18
    s_cselect_b32 s24, 1, 0
    s_cmp_lt_u32 s2, 36
    s_cselect_b32 s25, 1, 0
    s_and_b32 s24, s24, s25
    s_cmp_ge_u32 s2, 72
    s_cselect_b32 s25, 1, 0
    s_cmp_lt_u32 s2, 90
    s_cselect_b32 s26, 1, 0
    s_and_b32 s25, s25, s26
    s_or_b32 s24, s24, s25
    s_cmp_eq_u32 s24, 0
    s_cbranch_scc1 k0_mod_store
    v_add_f32 v16, 1.0, v16
    """)
    bf16_round(k, 16, 16)
    k.label("k0_mod_store")
    k(f"""
    s_lshl_b32 s10, s2, 8
    s_add_u32 s10, s10, {CNT}
    v_mov_b32 v17, 0
    buffer_store_dword v17, v11, s[12:15], s10 offen
    s_lshl_b32 s10, s2, 7
    v_add_u32 v11, s10, v11
    buffer_store_dword v16, v11, s[12:15], 0 offen offset:{MOD}
    s_cmp_lt_u32 s2, 54
    s_cbranch_scc1 k0_done
    s_cmp_ge_u32 s2, 90
    s_cbranch_scc1 k0_done
    """)
    k(f"""
    s_sub_u32 s24, s2, 54
    s_sub_u32 s25, s2, 72
    s_cmp_ge_u32 s2, 72
    s_cselect_b32 s24, s25, s24
    s_cselect_b32 s25, 0, 16
    s_lshl_b32 s26, s24, 1
    v_lshrrev_b32 v12, 4, v0
    v_add_u32 v12, s26, v12
    v_mul_u32_u24 v13, 57, v12
    v_lshrrev_b32 v13, 9, v13
    v_mul_u32_u24 v14, 9, v13
    v_sub_u32 v14, v12, v14
    v_lshrrev_b32 v15, 1, v13
    v_mul_u32_u24 v15, 9, v15
    v_and_b32 v17, 1, v13
    v_lshrrev_b32 v18, 1, v14
    v_lshl_add_u32 v18, v17, 2, v18
    v_and_b32 v19, 1, v14
    v_cmp_eq_u32 vcc, 8, v14
    v_cndmask_b32 v18, v18, 8, vcc
    v_cndmask_b32 v19, v19, v17, vcc
    v_add_u32 v15, v15, v18
    v_lshlrev_b32 v12, 7, v15
    v_bfe_u32 v13, v0, 2, 2
    v_lshl_add_u32 v12, v13, 5, v12
    v_lshl_add_u32 v12, v19, 3, v12
    v_and_b32 v13, 3, v0
    v_lshl_add_u32 v12, v13, 1, v12
    s_add_u32 s25, s25, {GSB}
    v_lshrrev_b32 v16, 16, v16
    buffer_store_short v16, v12, s[12:15], s25 offen
    s_branch k0_done
    """)
    k.label("k0_not_mod")
    k(f"""
    s_sub_u32 s2, s2, {K0_MOD}
    s_cmp_ge_u32 s2, {K0_XN}
    s_cbranch_scc1 k0_not_xn
    """)
    k("""
    s_lshl_b32 s10, s2, 2
    s_add_u32 s10, s10, s3
    s_lshl_b32 s10, s10, 3
    v_lshrrev_b32 v3, 3, v1
    v_add_u32 v3, s10, v3
    v_and_b32 v4, 7, v1
    v_mul_u32_u24 v5, 1152, v3
    v_lshl_add_u32 v5, v4, 4, v5
    """)
    for i in range(9):
        k(f"global_load_dwordx4 v[{16+4*i}:{19+4*i}], v5, s[4:5] offset:{128*i}")
    k(f"""
    v_lshrrev_b32 v6, 4, v3
    v_mul_u32_u24 v6, {18*1024}, v6
    v_and_b32 v7, 15, v3
    v_lshl_add_u32 v6, v7, 4, v6
    v_lshrrev_b32 v7, 2, v4
    v_lshl_add_u32 v6, v7, 10, v6
    v_and_b32 v7, 3, v4
    v_lshl_add_u32 v6, v7, 8, v6
    v_add_u32 v6, {XN}, v6
    v_mov_b32 v8, 0
    v_mov_b32 v9, 0
    """)
    for i in range(9):
        k(f"s_waitcnt vmcnt({8-i})")
        for q in range(4):
            w = 16 + 4 * i + q
            d = 64 + 8 * i + 2 * q
            k(f"v_lshlrev_b32 v{d}, 16, v{w}")
            k(f"v_and_b32 v{d+1}, 0xffff0000, v{w}")
        for q in range(4):
            d = 64 + 8 * i + 2 * q
            k(f"v_pk_add_f32 v[8:9], v[8:9], v[{d}:{d+1}]")

    def red8(r):
        k(f"v_add_f32_dpp v{r}, v{r}, v{r} quad_perm:[1,0,3,2] row_mask:0xf bank_mask:0xf")
        k(f"v_add_f32_dpp v{r}, v{r}, v{r} quad_perm:[2,3,0,1] row_mask:0xf bank_mask:0xf")
        k(f"v_add_f32_dpp v{r}, v{r}, v{r} row_half_mirror row_mask:0xf bank_mask:0xf")

    k("v_add_f32 v8, v8, v9")
    red8(8)
    k(f"v_mul_f32 v10, 0x3ae38e39, v8")
    k("v_mov_b32 v11, v10")
    k("v_mov_b32 v8, 0")
    k("v_mov_b32 v9, 0")
    for e in range(36):
        d = 64 + 2 * e
        k(f"v_pk_add_f32 v[12:13], v[{d}:{d+1}], v[10:11] neg_lo:[0,1] neg_hi:[0,1]")
        k(f"v_pk_fma_f32 v[8:9], v[12:13], v[12:13], v[8:9]")
    k("v_add_f32 v8, v8, v9")
    red8(8)
    k(f"v_mul_f32 v8, 0x3ae38e39, v8")
    bf16_round(k, 8, 8)
    k("v_add_f32 v8, 0x3727c5ac, v8")
    bf16_round(k, 8, 8)
    k("v_sqrt_f32 v8, v8")
    bf16_round(k, 8, 8)
    k("v_rcp_f32 v8, v8")
    bf16_round(k, 10, 10)
    k("v_mov_b32 v11, v10")
    k("v_mov_b32 v9, v8")
    for i in range(9):
        for q in range(4):
            d = 64 + 8 * i + 2 * q
            k(f"""
            v_pk_add_f32 v[12:13], v[{d}:{d+1}], v[10:11] neg_lo:[0,1] neg_hi:[0,1]
            v_cvt_pk_bf16_f32 v14, v12, v13
            v_lshlrev_b32 v12, 16, v14
            v_and_b32 v13, 0xffff0000, v14
            v_pk_mul_f32 v[12:13], v[12:13], v[8:9]
            v_cvt_pk_bf16_f32 v{16+4*i+q}, v12, v13
            """)
        k(f"buffer_store_dwordx4 v[{16+4*i}:{19+4*i}], v6, s[12:15], 0 offen offset:{(2*i*1024) % 4096}")
        if i % 2 == 1:
            k("v_add_u32 v6, 4096, v6")
    k("s_branch k0_done")
    k.label("k0_not_xn")
    k(f"""
    s_sub_u32 s2, s2, {K0_XN}
    s_cmp_ge_u32 s2, {K0_WQ}
    s_cbranch_scc1 k0_not_wq
    """)
    srd(k, 8, 16, 576 * 1728 * 2)
    k(f"""
    s_lshl_b32 s10, s2, 2
    s_add_u32 s34, s10, s3
    s_mov_b32 s10, {576*1728*2}
    s_and_b32 s35, s34, 7
    s_lshr_b32 s38, s34, 3
    v_cmp_gt_u32 vcc, 60, v1
    s_and_saveexec_b64 s[36:37], vcc
    v_mul_u32_u24 v3, 13, v1
    v_lshrrev_b32 v3, 8, v3
    v_mul_u32_u24 v4, 20, v3
    v_sub_u32 v4, v1, v4
    v_mul_u32_u24 v5, 13, v4
    v_lshrrev_b32 v5, 6, v5
    v_mul_u32_u24 v6, 5, v5
    v_sub_u32 v6, v4, v6
    v_cmp_eq_u32 s[40:41], 4, v6
    v_mul_u32_u24 v10, 1152, v3
    v_mul_u32_u24 v7, 36, v5
    v_add_u32 v10, v10, v7
    v_lshl_add_u32 v10, v6, 3, v10
    s_mul_i32 s39, s35, 144
    s_mul_i32 s42, s38, {8*3456}
    s_add_u32 s39, s39, s42
    v_add_u32 v10, s39, v10
    """)
    k(f"""
    v_lshrrev_b32 v7, 2, v1
    v_mul_u32_u24 v11, {18*1024}, v7
    v_and_b32 v7, 3, v1
    v_lshl_add_u32 v11, v7, 6, v11
    s_mul_i32 s39, s35, {16*18*1024}
    s_lshr_b32 s42, s38, 2
    s_lshl_b32 s42, s42, 10
    s_add_u32 s39, s39, s42
    s_and_b32 s42, s38, 3
    s_lshl_b32 s42, s42, 8
    s_add_u32 s39, s39, s42
    s_add_u32 s39, s39, {WQ}
    v_add_u32 v11, s39, v11
    """)
    pack_chunk(k, 8, 3456, zero_hi_mask_sgpr=40)
    k("s_branch k0_done")
    k.label("k0_not_wq")
    k(f"s_sub_u32 s2, s2, {K0_WQ}")
    srd(k, 8, 18, 576 * 576 * 2)
    k(f"""
    s_lshl_b32 s34, s2, 2
    s_add_u32 s34, s34, s3
    s_mul_hi_u32 s38, s34, 0x55555556
    s_mul_i32 s35, s38, 3
    s_sub_u32 s35, s34, s35
    v_cmp_gt_u32 vcc, 48, v1
    s_and_saveexec_b64 s[36:37], vcc
    s_mul_i32 s39, s35, 48
    v_add_u32 v3, s39, v1
    v_lshlrev_b32 v10, 3, v3
    s_mul_i32 s42, s38, {8*1152}
    v_add_u32 v10, s42, v10
    v_lshrrev_b32 v7, 2, v3
    v_mul_u32_u24 v11, {18*1024}, v7
    v_and_b32 v7, 3, v3
    v_lshl_add_u32 v11, v7, 6, v11
    s_lshr_b32 s42, s38, 2
    s_lshl_b32 s39, s42, 10
    s_and_b32 s42, s38, 3
    s_lshl_b32 s42, s42, 8
    s_add_u32 s39, s39, s42
    s_add_u32 s39, s39, {WOP}
    v_add_u32 v11, s39, v11
    """)
    pack_chunk(k, 8, 1152)
    k.label("k0_done")
    tl_end(k, 0)
    k("s_endpgm")
    return k, 136, 9216 + 256


K1_QB = 92160
K1_TS = 488
K1_ML = K1_QB + 80 * K1_TS
K1_LDS = K1_ML + 4608
K1_OL = 16384
K1_YL = K1_OL + 36864
K1_SL = K1_YL + 10240


def gen_k1():
    k = K("qkv_attn_kernel")
    tl_start(k)
    TS = K1_TS
    QB = K1_QB
    k(f"""
    s_cmp_ge_u32 s2, 256
    s_cbranch_scc1 k4_done
    s_load_dwordx4 s[84:87], s[0:1], 80
    s_load_dwordx4 s[16:19], s[0:1], 32
    s_load_dwordx2 s[8:9], s[0:1], 0
    v_and_b32 v1, 63, v0
    v_lshrrev_b32 v2, 6, v0
    v_lshlrev_b32 v3, 4, v1
    v_lshrrev_b32 v4, 4, v1
    v_readfirstlane_b32 s3, v2
    s_and_b32 s4, s2, 1
    s_lshl_b32 s4, s4, 2
    s_bfe_u32 s31, s2, 0x20003
    s_add_u32 s4, s4, s31
    s_bfe_u32 s5, s2, 0x20001
    s_lshl_b32 s5, s5, 3
    s_lshr_b32 s31, s2, 5
    s_add_u32 s5, s5, s31
    v_lshlrev_b32 v5, 5, v4
    s_waitcnt lgkmcnt(0)
    """)
    stamp(k, 0)
    srd(k, 12, 86, WS_BYTES)
    ts(k, 0)
    k(f"""
    s_mul_i32 s31, s3, 576
    s_add_u32 s32, s31, {K1_ML}
    s_mov_b32 m0, s32
    s_mov_b32 exec_hi, 0xf
    buffer_load_dwordx4 v3, s[12:15], s31 offen lds
    s_mov_b64 exec, -1
    """)
    k("""
    s_lshl_b32 s23, s5, 2
    s_sub_u32 s24, s23, 1
    s_max_i32 s24, s24, 0
    """)
    for i in range(5):
        if i == 0:
            k(f"s_mul_i32 s25, s24, {18*1024}")
            k(f"s_add_u32 s25, s25, {XN}")
        else:
            k(f"s_add_u32 s30, s23, {i-1}")
            k(f"s_mul_i32 s{25+i}, s30, {18*1024}")
            k(f"s_add_u32 s{25+i}, s{25+i}, {XN}")
    k("s_lshl_b32 s20, s3, 10")
    k("s_add_u32 s21, s20, 8192")
    for j in range(2):
        for i in range(5):
            x = 48 + 20 * j + 4 * i
            k(f"s_add_u32 s34, s{25+i}, s{20+j}")
            k(f"buffer_load_dwordx4 v[{x}:{x+3}], v3, s[12:15], s34 offen")
    k("""
    s_add_u32 s36, s3, 8
    s_cmp_lt_u32 s3, 2
    s_cselect_b32 s36, s36, s3
    s_mov_b32 s35, s3
    """)
    for e in range(2):
        k(f"""
        s_cmp_ge_u32 s{35+e}, 5
        s_cselect_b32 s{44+e}, 17, 16
        s_cselect_b32 s37, 5, 0
        s_sub_u32 s{46+e}, s{35+e}, s37
        s_add_u32 s37, s23, s{46+e}
        s_sub_u32 s37, s37, 1
        s_max_i32 s37, s37, 0
        s_mul_i32 s37, s37, 18
        s_add_u32 s37, s37, s{44+e}
        s_lshl_b32 s37, s37, 10
        s_add_u32 s37, s37, {XN}
        buffer_load_dwordx4 v[{88+4*e}:{91+4*e}], v3, s[12:15], s37 offen
        """)
    k("s_waitcnt vmcnt(12)")
    k("s_barrier")
    k(f"""
    s_lshl_b32 s40, s4, 4
    s_lshl_b32 s41, s3, 1
    s_add_u32 s42, s41, 1
    s_min_u32 s42, s42, 14
    s_add_u32 s41, s41, s40
    s_add_u32 s42, s42, s40
    s_mul_i32 s41, s41, {18*1024}
    s_mul_i32 s42, s42, {18*1024}
    s_add_u32 s41, s41, {WQ}
    s_add_u32 s42, s42, {WQ}
    """)

    NAS = 8
    vm = VM()
    vm.add("x0", 5); vm.add("x1", 5); vm.add("e0"); vm.add("e1")

    def areg(kk, tt):
        return 124 + 8 * (kk % NAS) + 4 * tt

    def load_a(kk):
        if kk % 4 == 0 and kk > 0:
            k("s_add_u32 s41, s41, 4096")
            k("s_add_u32 s42, s42, 4096")
        for tt in range(2):
            a = areg(kk, tt)
            k(f"buffer_load_dwordx4 v[{a}:{a+3}], v3, s[12:15], s{41+tt} offen offset:{(kk%4)*1024}")
        vm.add(f"a{kk}", 2)

    k(f"""
    s_lshl_b32 s31, s3, 7
    v_add_u32 v8, s31, v5
    s_lshl_b32 s31, s44, 7
    v_add_u32 v9, s31, v5
    s_lshl_b32 s31, s45, 7
    v_add_u32 v11, s31, v5
    v_add_u32 v8, {K1_ML}, v8
    v_add_u32 v9, {K1_ML}, v9
    v_add_u32 v11, {K1_ML}, v11
    v_add_u32 v12, s20, v3
    v_add_u32 v13, 18432, v12
    v_add_u32 v14, s21, v3
    v_add_u32 v15, 18432, v14
    """)
    for e in range(2):
        k(f"""
        s_mul_i32 s37, s{46+e}, 18
        s_add_u32 s37, s37, s{44+e}
        s_lshl_b32 s37, s37, 10
        v_add_u32 v{228+e}, s37, v3
        """)

    def read_mod(j):
        va, off = ((8, 0), (8, 1024), (9, 0), (11, 0))[j]
        b = 16 + 16 * (j & 1)
        return [f"ds_read_b128 v[{b}:{b+3}], v{va} offset:{off + 2304}",
                f"ds_read_b128 v[{b+4}:{b+7}], v{va} offset:{off + 2304 + 16}",
                f"ds_read_b128 v[{b+8}:{b+11}], v{va} offset:{off}",
                f"ds_read_b128 v[{b+12}:{b+15}], v{va} offset:{off + 16}"]

    def xform(f):
        if f < 10:
            j, i = divmod(f, 5)
            x = 48 + 20 * j + 4 * i
        else:
            j = 2 + (f - 10)
            x = 88 + 4 * (f - 10)
        b = 16 + 16 * (j & 1)
        T = 96
        o = []
        for q in range(4):
            o.append(f"v_lshlrev_b32 v{T+2*q}, 16, v{x+q}")
            o.append(f"v_and_b32 v{T+2*q+1}, 0xffff0000, v{x+q}")
        if "fma1" in ABL:
            for e_ in range(8):
                o.append(f"v_fma_f32 v{T+e_}, v{T+e_}, v{b+e_}, v{b+8+e_}")
        else:
            for e_ in range(8):
                o.append(f"v_mul_f32 v{T+e_}, v{T+e_}, v{b+e_}")
            for q in range(4):
                o.append(f"v_cvt_pk_bf16_f32 v{x+q}, v{T+2*q}, v{T+2*q+1}")
            for q in range(4):
                o.append(f"v_lshlrev_b32 v{T+2*q}, 16, v{x+q}")
                o.append(f"v_and_b32 v{T+2*q+1}, 0xffff0000, v{x+q}")
            for e_ in range(8):
                o.append(f"v_add_f32 v{T+e_}, v{T+e_}, v{b+8+e_}")
        for q in range(4):
            o.append(f"v_cvt_pk_bf16_f32 v{x+q}, v{T+2*q}, v{T+2*q+1}")
        if f < 10:
            base = 12 + 2 * j
            if i < 4:
                o.append(f"ds_write_b128 v{base}, v[{x}:{x+3}] offset:{i*18432}")
            else:
                o.append(f"ds_write_b128 v{base+1}, v[{x}:{x+3}] offset:{3*18432}")
        else:
            o.append(f"ds_write_b128 v{228+f-10}, v[{x}:{x+3}]")
        return o

    for ln in read_mod(0) + read_mod(1):
        k(ln)
    nw = 0
    for _ in range(PRM.get("W0", 0)):
        load_a(nw); nw += 1
    k("s_waitcnt lgkmcnt(4)")
    for f in range(5):
        k(f"s_waitcnt vmcnt({len(vm.ops) - 1 - f})")
        for ln in xform(f):
            k(ln)
        if f >= PRM.get("WF", 1) and nw < NAS:
            load_a(nw); nw += 1
    k("s_waitcnt lgkmcnt(0)")
    stamp(k, 1)
    k("s_barrier")
    stamp(k, 2)
    ts(k, 1)
    k("v_add_u32 v6, 55296, v3")

    def breg(kk, i):
        return (48 if (kk & 1) == 0 else 104) + 4 * i

    def read_b(kk):
        for i in range(5):
            b = breg(kk, i)
            if i < 3:
                k(f"ds_read_b128 v[{b}:{b+3}], v3 offset:{i*18432 + kk*1024}")
            else:
                k(f"ds_read_b128 v[{b}:{b+3}], v6 offset:{(i-3)*18432 + kk*1024}")

    def acc(tt, i):
        return 188 + 20 * tt + 4 * i

    sidew = {0: [5], 1: [6], 2: [7], 3: [8], 4: [9], 5: [10], 6: [11]}
    read_b(0)
    for kk in range(18):
        if kk == 7:
            k("s_waitcnt lgkmcnt(0)")
            k("s_barrier")
        if kk < 17:
            read_b(kk + 1)
        while nw < 18 and nw < kk + NAS:
            load_a(nw); nw += 1
            if kk > 0:
                break
        side = []
        if kk == 4:
            side += read_mod(2)
        if kk == 5:
            side += read_mod(3)
        fl = sidew.get(kk, [])
        tags = [f"a{kk}"] + [("x1" if f < 10 else f"e{f-10}") for f in fl]
        k(f"s_waitcnt vmcnt({vm.need(*tags)})")
        k(f"s_waitcnt lgkmcnt({5 if kk < 17 else 0})")
        for f in fl:
            side += xform(f)
        nm = 0
        for i in range(5):
            for tt in range(2):
                a = areg(kk, tt); b = breg(kk, i); c = acc(tt, i)
                cs = "0" if kk == 0 else f"v[{c}:{c+3}]"
                k(f"v_mfma_f32_16x16x32_bf16 v[{c}:{c+3}], v[{a}:{a+3}], v[{b}:{b+3}], {cs}")
                nm += 1
                take = -(-len(side) // (11 - nm)) if side else 0
                for _ in range(take):
                    k(side.pop(0))
        assert not side
    stamp(k, 3)
    ts(k, 2)
    k(f"""
    v_and_b32 v6, 15, v1
    v_mul_u32_u24 v6, {TS}, v6
    v_lshl_add_u32 v6, v4, 3, v6
    s_lshl_b32 s31, s3, 6
    s_add_u32 s31, s31, {QB}
    v_add_u32 v6, s31, v6
    """)
    for tt in range(2):
        if tt == 1:
            k("s_cmp_eq_u32 s3, 7")
            k("s_cbranch_scc1 k1_skip_t1")
        for i in range(5):
            c = acc(tt, i)
            k(f"v_cvt_pk_bf16_f32 v{60+2*i}, v{c}, v{c+1}")
            k(f"v_cvt_pk_bf16_f32 v{61+2*i}, v{c+2}, v{c+3}")
            k(f"ds_write_b64 v6, v[{60+2*i}:{61+2*i}] offset:{i*16*TS + tt*32}")
    k.label("k1_skip_t1")
    k("s_waitcnt lgkmcnt(0)")
    k("s_barrier")
    stamp(k, 4)

    k(f"""
    s_sub_u32 s31, s3, 2
    s_cmp_ge_u32 s31, 2
    s_cbranch_scc1 k1_nopfw
    v_subrev_u32 v236, 128, v0
    v_min_u32 v236, 71, v236
    v_cmp_le_u32 vcc, 36, v236
    v_subrev_u32 v237, 36, v236
    v_cndmask_b32 v236, v236, v237, vcc
    v_mul_u32_u24 v237, 57, v236
    v_lshrrev_b32 v237, 9, v237
    v_mul_u32_u24 v238, 9, v237
    v_sub_u32 v238, v236, v238
    v_mul_u32_u24 v237, 9216, v237
    v_lshl_add_u32 v237, v238, 7, v237
    s_lshr_b32 s31, s2, 3
    s_mul_i32 s31, s31, {4*9216}
    s_and_b32 s32, s2, 7
    s_mul_i32 s32, s32, 1152
    s_add_u32 s31, s31, s32
    v_add_u32 v237, s31, v237
    v_mov_b32 v238, s16
    v_mov_b32 v239, s17
    v_mov_b32 v240, s18
    v_mov_b32 v241, s19
    v_cndmask_b32 v238, v238, v240, vcc
    v_cndmask_b32 v239, v239, v241, vcc
    v_add_co_u32 v238, vcc, v238, v237
    v_addc_co_u32 v239, vcc, 0, v239, vcc
    global_load_dword v242, v[238:239], off
    """)
    k.label("k1_nopfw")
    k(f"""
    s_and_b32 s50, s4, 1
    s_lshr_b32 s51, s4, 1
    s_lshl_b32 s52, s5, 2
    s_lshl_b32 s53, s50, 1
    s_add_u32 s52, s52, s53
    s_mul_i32 s53, s51, 9
    s_add_u32 s54, s53, s3
    s_mul_i32 s55, s54, {18*1024}
    s_add_u32 s55, s55, {WOP}
    v_add_u32 v216, 4096, v3
    v_add_u32 v217, 8192, v3
    v_add_u32 v218, 12288, v3
    v_add_u32 v219, 16384, v3
    v_and_b32 v220, 15, v1
    s_lshl_b32 s31, s52, 4
    v_add_u32 v220, s31, v220
    v_mul_u32_u24 v221, 1152, v220
    v_lshl_add_u32 v221, v4, 3, v221
    s_lshl_b32 s31, s54, 5
    v_add_u32 v222, s31, v221
    v_add_u32 v223, {16*1152}, v222
    v_lshlrev_b32 v224, 4, v4
    s_lshl_b32 s31, s54, 6
    v_add_u32 v225, s31, v224
    s_mov_b32 s56, {MOD + 2*576*4}
    s_mov_b32 s57, {MOD + 4*576*4}
    """)
    side = []
    for kk in range(18):
        vo = 3 if kk < 4 else 215 + kk // 4
        side.append(f"buffer_load_dwordx4 v[{128+4*kk}:{131+4*kk}], v{vo}, s[12:15], s55 offen offset:{(kk%4)*1024}")
    side.append("global_load_dwordx2 v[200:201], v222, s[8:9]")
    side.append("global_load_dwordx2 v[202:203], v223, s[8:9]")
    side.append("buffer_load_dwordx4 v[204:207], v225, s[12:15], s56 offen")
    side.append("buffer_load_dwordx4 v[208:211], v225, s[12:15], s57 offen")
    kreal = k
    cnt = [0]

    class KS:
        def __call__(self, txt):
            for ln in txt.strip("\n").split("\n"):
                ln = ln.strip()
                if not ln:
                    continue
                kreal(ln)
                if ln.startswith("v_") and side:
                    cnt[0] += 1
                    if cnt[0] % 10 == 0:
                        kreal(side.pop(0))

        def label(self, l):
            kreal.label(l)

    k = KS()
    k(f"""
    v_and_b32 v6, 1, v1
    v_bfe_u32 v7, v1, 1, 2
    v_lshrrev_b32 v8, 3, v1
    s_lshl_b32 s31, s3, 3
    v_add_u32 v8, s31, v8
    v_mul_u32_u24 v9, {TS}, v8
    v_mul_u32_u24 v10, 40, v7
    v_add_u32 v9, v9, v10
    v_add_u32 v9, {QB + 16*TS}, v9
    v_mul_u32_u24 v10, {8*TS}, v6
    v_sub_u32 v11, v9, v10
    v_add_u32 v12, {160 - 6*TS}, v11
    v_lshl_add_u32 v13, v6, 4, v11
    v_add_u32 v13, {320 - 6*TS}, v13
    v_add_u32 v14, v9, v10
    v_lshl_add_u32 v14, v6, 4, v14
    v_add_u32 v14, {320 - 14*TS}, v14
    """)
    for j in range(5):
        k(f"ds_read_b64 v[{16+2*j}:{17+2*j}], v9 offset:{8*j}")
    for u in range(4):
        for j in range(5):
            r = 32 + 10 * u + 2 * j
            k(f"ds_read_b64 v[{r}:{r+1}], v12 offset:{(3-u)*2*TS + 8*j}")
    for u in range(4):
        for j in range(3):
            r = 80 + 6 * u + 2 * j
            k(f"ds_read_b64 v[{r}:{r+1}], v13 offset:{(3-u)*2*TS + 8*j}")
    for u in range(4):
        for j in range(3):
            r = 104 + 6 * u + 2 * j
            k(f"ds_read_b64 v[{r}:{r+1}], v14 offset:{(3-u)*2*TS + 8*j}")
    k(f"""
    s_lshl_b32 s31, s5, 6
    v_add_u32 v15, s31, v8
    v_lshlrev_b32 v26, 3, v6
    v_sub_u32 v15, v15, v26
    v_mov_b32 v27, 0xce6e6b28
    s_waitcnt lgkmcnt(15)
    """)
    k("s_waitcnt lgkmcnt(0)")
    stamp(k, 5)
    for j in range(9):
        for u in range(4):
            src = "0" if j == 0 else f"v{28+u}"
            k(f"v_dot2_f32_bf16 v{28+u}, v{16+j}, v{32+10*u+j}, {src}")
    for u in range(4):
        bf16_round(k, 28 + u, 28 + u)
        k(f"v_mul_f32 v{28+u}, 0x3e715bef, v{28+u}")
        bf16_round(k, 28 + u, 28 + u)
        k(f"v_cmp_gt_i32 vcc, {2*u}, v15")
        k(f"v_cndmask_b32 v{28+u}, v{28+u}, v27, vcc")
    for u in range(4):
        k(f"v_mov_b32_dpp v{32+u}, v{28+u} quad_perm:[1,0,3,2] row_mask:0xf bank_mask:0xf")
    k("""
    v_max3_f32 v36, v28, v29, v30
    v_max3_f32 v36, v36, v31, v32
    v_max3_f32 v36, v36, v33, v34
    v_max_f32 v36, v36, v35
    """)
    for u in range(8):
        k(f"v_sub_f32 v{28+u}, v{28+u}, v36")
        k(f"v_mul_f32 v{28+u}, {LOG2E}, v{28+u}")
        k(f"v_exp_f32 v{28+u}, v{28+u}")
    k("""
    v_add_f32 v36, v28, v29
    v_add_f32 v37, v30, v31
    v_add_f32 v38, v32, v33
    v_add_f32 v39, v34, v35
    v_add_f32 v36, v36, v37
    v_add_f32 v38, v38, v39
    v_add_f32 v36, v36, v38
    v_rcp_f32 v36, v36
    """)
    for u in range(8):
        k(f"v_mul_f32 v{28+u}, v{28+u}, v36")
        k(f"v_cvt_pk_bf16_f32 v{40+u}, v{28+u}, 0")
        k(f"v_lshlrev_b32 v{48+u}, 16, v{40+u}")
    for u in range(8):
        vb = (80 + 6 * u) if u < 4 else (104 + 6 * (u - 4))
        for j in range(5):
            s0 = "0" if u == 0 else f"v{60+2*j}"
            s1 = "0" if u == 0 else f"v{61+2*j}"
            k(f"v_dot2_f32_bf16 v{60+2*j}, v{vb+j}, v{40+u}, {s0}")
            k(f"v_dot2_f32_bf16 v{61+2*j}, v{vb+j}, v{48+u}, {s1}")
    k(f"""
    v_mul_u32_u24 v9, 160, v8
    v_mul_u32_u24 v10, 36, v7
    v_add_u32 v9, v9, v10
    v_lshl_add_u32 v9, v6, 4, v9
    """)
    for j in range(5):
        k(f"v_cvt_pk_bf16_f32 v{70+j}, v{60+2*j}, v{61+2*j}")
        k(f"ds_write_b32 v9, v{70+j} offset:{4*j}")
    k("s_waitcnt lgkmcnt(0)")
    k = kreal
    for ln in side:
        k(ln)
    stamp(k, 6)
    k("s_barrier")
    ts(k, 3)
    k(f"""
    v_mul_u32_u24 v6, 160, v1
    s_lshl_b32 s31, s3, 4
    v_add_u32 v6, s31, v6
    ds_read_b128 v[16:19], v6
    ds_read_b128 v[20:23], v6 offset:128
    v_mul_u32_u24 v7, {18*1024}, v4
    v_and_b32 v8, 15, v1
    v_lshl_add_u32 v7, v8, 4, v7
    s_mul_i32 s31, s5, {4*18*1024}
    s_mul_i32 s32, s4, 9
    s_add_u32 s32, s32, s3
    s_lshl_b32 s32, s32, 8
    s_add_u32 s31, s31, s32
    s_add_u32 s31, s31, {OO}
    s_waitcnt lgkmcnt(0)
    buffer_store_dwordx4 v[16:19], v7, s[12:15], s31 offen sc1
    s_cmp_lg_u32 s3, 0
    s_cbranch_scc1 k1_st1
    buffer_store_dwordx4 v[20:23], v7, s[12:15], s31 offen offset:2048 sc1
    """)
    k.label("k1_st1")
    k(f"""
    s_waitcnt vmcnt(0)
    s_barrier
    s_lshl_b32 s33, s5, 8
    s_add_u32 s33, s33, {CNT}
    v_mov_b32 v9, s33
    s_cmp_lg_u32 s3, 7
    s_cbranch_scc1 k1_nosig
    v_mov_b32 v8, 1
    s_mov_b64 exec, 1
    global_atomic_add v9, v8, s[86:87]
    s_mov_b64 exec, -1
    """)
    k.label("k1_nosig")
    k(f"""
    s_cmp_ge_u32 s3, 2
    s_cbranch_scc1 k1_noextra
    s_add_u32 s58, s53, 8
    s_mul_i32 s59, s58, {18*1024}
    s_add_u32 s59, s59, {WOP}
    """)
    for kk in range(18):
        vo = 3 if kk < 4 else 215 + kk // 4
        k(f"buffer_load_dwordx4 v[{16+4*kk}:{19+4*kk}], v{vo}, s[12:15], s59 offen offset:{(kk%4)*1024}")
    k(f"""
    s_lshl_b32 s31, s58, 5
    s_mul_i32 s32, s3, {16*1152}
    s_add_u32 s31, s31, s32
    v_add_u32 v10, s31, v221
    global_load_dwordx2 v[88:89], v10, s[8:9]
    s_lshl_b32 s31, s58, 6
    v_add_u32 v10, s31, v224
    buffer_load_dwordx4 v[92:95], v10, s[12:15], s56 offen
    buffer_load_dwordx4 v[96:99], v10, s[12:15], s57 offen
    """)
    k.label("k1_noextra")
    k("s_mov_b32 s37, 0")
    k("s_cmp_lg_u32 s3, 7")
    k("s_cbranch_scc1 k1_ready")
    k("s_mov_b64 exec, 1")
    k.label("k1_poll")
    k("""
    global_load_dword v8, v9, s[86:87] sc1
    s_waitcnt vmcnt(0)
    v_readfirstlane_b32 s38, v8
    s_add_u32 s37, s37, 1
    s_cmp_ge_u32 s38, 8
    s_cbranch_scc1 k1_ready
    s_cmp_lt_u32 s37, 0x400000
    s_cbranch_scc0 k1_ready
    s_sleep 2
    s_branch k1_poll
    """)
    k.label("k1_ready")
    k("s_mov_b64 exec, -1")
    k("s_barrier")
    ts(k, 4)
    stamp(k, 7)
    k(f"""
    s_mul_i32 s31, s52, {18*1024}
    s_add_u32 s31, s31, {OO}
    s_lshl_b32 s32, s3, 10
    s_add_u32 s31, s31, s32
    s_add_u32 s34, s32, 32768
    s_add_u32 s35, s32, 24576
    s_cmp_lt_u32 s3, 4
    s_cselect_b32 s34, s34, s35
    s_sub_u32 s35, s34, s32
    s_add_u32 s35, s35, s31
    v_add_u32 v10, 24576, v3
    buffer_load_dwordx4 v[100:103], v3, s[12:15], s31 offen sc1
    buffer_load_dwordx4 v[104:107], v217, s[12:15], s31 offen sc1
    buffer_load_dwordx4 v[108:111], v219, s[12:15], s31 offen sc1
    buffer_load_dwordx4 v[112:115], v10, s[12:15], s31 offen sc1
    buffer_load_dwordx4 v[116:119], v3, s[12:15], s35 offen sc1
    v_add_u32 v11, s32, v3
    v_add_u32 v11, {K1_OL}, v11
    v_add_u32 v12, s34, v3
    v_add_u32 v12, {K1_OL}, v12
    s_waitcnt vmcnt(4)
    ds_write_b128 v11, v[100:103]
    s_waitcnt vmcnt(3)
    ds_write_b128 v11, v[104:107] offset:8192
    s_waitcnt vmcnt(2)
    ds_write_b128 v11, v[108:111] offset:16384
    s_waitcnt vmcnt(1)
    ds_write_b128 v11, v[112:115] offset:24576
    s_waitcnt vmcnt(0)
    ds_write_b128 v12, v[116:119]
    v_add_u32 v13, {K1_OL}, v3
    s_mul_i32 s31, s3, {18*1024}
    v_add_u32 v14, s31, v13
    s_waitcnt lgkmcnt(0)
    s_barrier
    """)

    stamp(k, 4)
    BB = [100, 108, 116, 212]

    def b2(kk, tt):
        return BB[kk % 4] + 4 * tt

    def read_b2(kk):
        for tt in range(2):
            b = b2(kk, tt)
            k(f"ds_read_b128 v[{b}:{b+3}], v13 offset:{(tt*18 + kk)*1024}")

    A2 = [232, 236]

    def gemm2(extra):
        for kk in range(3):
            read_b2(kk)
        for kk in range(18):
            if kk + 3 < 18:
                read_b2(kk + 3)
            k(f"s_waitcnt lgkmcnt({2 * min(3, 17 - kk)})")
            for tt in range(2):
                c = A2[tt]; b = b2(kk, tt)
                cs = "0" if kk == 0 else f"v[{c}:{c+3}]"
                k(f"v_mfma_f32_16x16x32_bf16 v[{c}:{c+3}], v[{128+4*kk}:{131+4*kk}], v[{b}:{b+3}], {cs}")
            if extra is not None:
                b = b2(kk, extra)
                cs = "0" if kk == 0 else "v[240:243]"
                k(f"v_mfma_f32_16x16x32_bf16 v[240:243], v[{16+4*kk}:{19+4*kk}], v[{b}:{b+3}], {cs}")

    k("s_cmp_eq_u32 s3, 0")
    k("s_cbranch_scc1 k1_g2a")
    k("s_cmp_eq_u32 s3, 1")
    k("s_cbranch_scc1 k1_g2b")
    gemm2(None)
    k("s_branch k1_g2e")
    k.label("k1_g2a")
    gemm2(0)
    k("s_branch k1_g2e")
    k.label("k1_g2b")
    gemm2(1)
    k.label("k1_g2e")
    k("s_nop 7")
    stamp(k, 5)

    def unit_epi(c, xr, ga, g2, sm, x1o, yo, first):
        k(f"""
        v_cvt_pk_bf16_f32 v110, v{c}, v{c+1}
        v_cvt_pk_bf16_f32 v111, v{c+2}, v{c+3}
        v_lshlrev_b32 v112, 16, v110
        v_and_b32 v113, 0xffff0000, v110
        v_lshlrev_b32 v114, 16, v111
        v_and_b32 v115, 0xffff0000, v111
        v_pk_mul_f32 v[112:113], v[112:113], v[{ga}:{ga+1}]
        v_pk_mul_f32 v[114:115], v[114:115], v[{ga+2}:{ga+3}]
        v_cvt_pk_bf16_f32 v110, v112, v113
        v_cvt_pk_bf16_f32 v111, v114, v115
        v_lshlrev_b32 v112, 16, v110
        v_and_b32 v113, 0xffff0000, v110
        v_lshlrev_b32 v114, 16, v111
        v_and_b32 v115, 0xffff0000, v111
        v_lshlrev_b32 v116, 16, v{xr}
        v_and_b32 v117, 0xffff0000, v{xr}
        v_lshlrev_b32 v118, 16, v{xr+1}
        v_and_b32 v119, 0xffff0000, v{xr+1}
        v_pk_add_f32 v[112:113], v[112:113], v[116:117]
        v_pk_add_f32 v[114:115], v[114:115], v[118:119]
        v_cvt_pk_bf16_f32 v{x1o}, v112, v113
        v_cvt_pk_bf16_f32 v{x1o+1}, v114, v115
        v_lshlrev_b32 v112, 16, v{x1o}
        v_and_b32 v113, 0xffff0000, v{x1o}
        v_lshlrev_b32 v114, 16, v{x1o+1}
        v_and_b32 v115, 0xffff0000, v{x1o+1}
        """)
        if first:
            k(f"v_add_f32 v{sm}, v112, v113")
            k(f"v_mul_f32 v{sm+1}, v112, v112")
        else:
            k(f"v_add_f32 v{sm}, v{sm}, v112")
            k(f"v_fmac_f32 v{sm+1}, v112, v112")
            k(f"v_add_f32 v{sm}, v{sm}, v113")
        k(f"""
        v_fmac_f32 v{sm+1}, v113, v113
        v_add_f32 v{sm}, v{sm}, v114
        v_fmac_f32 v{sm+1}, v114, v114
        v_add_f32 v{sm}, v{sm}, v115
        v_fmac_f32 v{sm+1}, v115, v115
        v_pk_mul_f32 v[112:113], v[112:113], v[{g2}:{g2+1}]
        v_pk_mul_f32 v[114:115], v[114:115], v[{g2+2}:{g2+3}]
        v_cvt_pk_bf16_f32 v{yo}, v112, v113
        v_cvt_pk_bf16_f32 v{yo+1}, v114, v115
        """)

    k(f"""
    s_lshr_b32 s33, s3, 1
    s_lshl_b32 s33, s33, 10
    s_and_b32 s32, s3, 1
    s_lshl_b32 s32, s32, 3
    s_add_u32 s33, s33, s32
    s_add_u32 s33, s33, {K1_YL}
    v_add_u32 v6, s33, v3
    s_mul_i32 s36, s52, {144*128}
    s_lshl_b32 s37, s54, 9
    s_add_u32 s36, s36, s37
    s_add_u32 s36, s36, {X1}
    s_add_u32 s37, s36, {144*128}
    v_lshlrev_b32 v7, 3, v1
    """)
    for tt in range(2):
        unit_epi(A2[tt], 200 + 2 * tt, 204, 208, 120 + 2 * tt, 244 + 2 * tt, 248 + 2 * tt, True)
        k(f"ds_write_b64 v6, v[{248+2*tt}:{249+2*tt}] offset:{5120*tt}")
        k(f"buffer_store_dwordx2 v[{244+2*tt}:{245+2*tt}], v7, s[12:15], s{36+tt} offen sc1")
    for w in range(2):
        k(f"s_cmp_lg_u32 s3, {w}")
        k(f"s_cbranch_scc1 k1_noex3_{w}")
        unit_epi(240, 88, 92, 96, 120 + 2 * w, 252, 254, False)
        k(f"""
        v_add_u32 v8, {K1_YL + 5120*w + 4096}, v3
        ds_write_b64 v8, v[254:255]
        s_add_u32 s38, s52, {w}
        s_mul_i32 s38, s38, {144*128}
        s_add_u32 s39, s53, 8
        s_lshl_b32 s39, s39, 9
        s_add_u32 s38, s38, s39
        s_add_u32 s38, s38, {X1}
        buffer_store_dwordx2 v[252:253], v7, s[12:15], s38 offen sc1
        """)
        k.label(f"k1_noex3_{w}")
    for r in range(120, 124):
        k(f"v_mov_b32 v{r+4}, v{r}")
    for r in range(120, 124):
        k(f"v_permlane16_swap_b32 v{r}, v{r+4}")
    for r in range(120, 124):
        k(f"v_add_f32 v{r}, v{r}, v{r+4}")
    for r in range(120, 124):
        k(f"v_mov_b32 v{r+4}, v{r}")
    for r in range(120, 124):
        k(f"v_permlane32_swap_b32 v{r}, v{r+4}")
    for r in range(120, 124):
        k(f"v_add_f32 v{r}, v{r}, v{r+4}")
    k(f"""
    v_cmp_gt_u32 vcc, 16, v1
    v_cndmask_b32 v120, v122, v120, vcc
    v_cndmask_b32 v121, v123, v121, vcc
    s_lshl_b32 s31, s3, 8
    s_add_u32 s31, s31, {K1_SL}
    v_lshlrev_b32 v5, 3, v1
    v_add_u32 v5, s31, v5
    s_mov_b32 exec_hi, 0
    ds_write_b64 v5, v[120:121]
    s_mov_b64 exec, -1
    s_waitcnt lgkmcnt(0)
    s_barrier
    """)
    stamp(k, 3)
    stamp_flush(k, 7, 3, "k1", 60)
    k(f"""
    s_lshr_b32 s32, s3, 2
    s_and_b32 s31, s3, 3
    s_mul_i32 s33, s32, 5120
    s_lshl_b32 s34, s31, 10
    s_add_u32 s33, s33, s34
    s_add_u32 s33, s33, {K1_YL}
    v_add_u32 v6, s33, v3
    ds_read_b128 v[24:27], v6
    s_lshr_b32 s35, s51, 1
    s_mul_i32 s35, s35, 9
    s_and_b32 s36, s51, 1
    s_lshl_b32 s37, s36, 2
    s_add_u32 s37, s37, s35
    s_add_u32 s37, s37, s31
    s_add_u32 s38, s52, s32
    s_mul_i32 s38, s38, 18
    s_add_u32 s37, s37, s38
    s_lshl_b32 s37, s37, 10
    s_add_u32 s37, s37, {YY}
    s_waitcnt lgkmcnt(0)
    buffer_store_dwordx4 v[24:27], v3, s[12:15], s37 offen sc1
    s_cmp_eq_u32 s3, 1
    s_cbranch_scc1 k1_stats
    s_cmp_lg_u32 s31, 0
    s_cbranch_scc1 k1_done
    ds_read_b64 v[28:29], v6 offset:4096
    s_add_u32 s37, s35, 8
    s_add_u32 s37, s37, s38
    s_lshl_b32 s37, s37, 10
    s_lshl_b32 s36, s36, 3
    s_add_u32 s37, s37, s36
    s_add_u32 s37, s37, {YY}
    s_waitcnt lgkmcnt(0)
    buffer_store_dwordx2 v[28:29], v3, s[12:15], s37 offen sc1
    s_branch k1_done
    """)
    k.label("k1_stats")
    k("v_lshlrev_b32 v5, 2, v1")
    for w in range(8):
        k(f"ds_read_b32 v{32+w}, v5 offset:{K1_SL + 256*w}")
    k("s_waitcnt lgkmcnt(0)")
    k(f"""
    v_add_f32 v32, v32, v33
    v_add_f32 v34, v34, v35
    v_add_f32 v36, v36, v37
    v_add_f32 v38, v38, v39
    v_add_f32 v32, v32, v34
    v_add_f32 v36, v36, v38
    v_add_f32 v32, v32, v36
    s_lshl_b32 s31, s51, 14
    s_lshl_b32 s32, s52, 7
    s_add_u32 s31, s31, s32
    s_add_u32 s31, s31, {STAT}
    buffer_store_dword v32, v5, s[12:15], s31 offen sc1
    """)
    k.label("k1_done")
    k(f"""
    s_waitcnt vmcnt(0) lgkmcnt(0)
    s_barrier
    s_lshr_b32 s33, s5, 2
    s_lshl_b32 s33, s33, 8
    s_add_u32 s33, s33, {CNT + 32*256}
    v_mov_b32 v9, s33
    s_cmp_lg_u32 s3, 7
    s_cbranch_scc1 k1_nosig2
    v_mov_b32 v8, 1
    s_mov_b64 exec, 1
    global_atomic_add v9, v8, s[86:87]
    s_mov_b64 exec, -1
    """)
    k.label("k1_nosig2")
    ts(k, 5)
    return gen_k3(k)


K2_GRID = 256
K2_YL = 36864 + 2304
K2_LDS = K2_YL + 10240


def gen_k2():
    k = K("wo_kernel")
    tl_start(k)
    k(f"""
    s_cmp_ge_u32 s2, {K2_GRID}
    s_cbranch_scc1 k2_done
    s_load_dwordx2 s[4:5], s[0:1], 0
    s_load_dwordx4 s[16:19], s[0:1], 32
    s_load_dwordx2 s[6:7], s[0:1], 88
    v_and_b32 v1, 63, v0
    v_lshrrev_b32 v2, 6, v0
    v_lshlrev_b32 v3, 4, v1
    v_lshrrev_b32 v4, 4, v1
    v_readfirstlane_b32 s3, v2
    s_waitcnt lgkmcnt(0)
    """)
    srd(k, 12, 6, WS_BYTES)
    k(f"""
    s_and_b32 s20, s2, 7
    s_lshl_b32 s20, s20, 3
    s_bfe_u32 s21, s2, 0x30003
    s_add_u32 s20, s20, s21
    s_lshr_b32 s21, s2, 6
    s_lshl_b32 s24, s20, 1
    s_mul_i32 s25, s21, 9
    s_add_u32 s25, s25, s3
    s_mul_i32 s27, s24, {18*1024}
    s_add_u32 s27, s27, {OO}
    s_lshl_b32 s26, s3, 12
    s_add_u32 s27, s27, s26
    s_mul_i32 s28, s25, {18*1024}
    s_add_u32 s28, s28, {WOP}
    """)
    stamp(k, 0)
    k("s_mov_b32 m0, s26")
    for i in range(4):
        k(f"buffer_load_dwordx4 v3, s[12:15], s27 offen offset:{1024*i} lds")
    for q in range(5):
        k(f"v_add_u32 v{5+q}, {4096*q}, v3")

    def areg(kk):
        return 24 + 4 * (kk % 11)

    def load_a(kk):
        a = areg(kk)
        k(f"buffer_load_dwordx4 v[{a}:{a+3}], v{5+kk//4}, s[12:15], s28 offen offset:{(kk%4)*1024}")

    for kk in range(11):
        load_a(kk)
    k(f"""
    v_and_b32 v10, 15, v1
    s_lshl_b32 s31, s24, 4
    v_add_u32 v10, s31, v10
    v_mul_u32_u24 v11, 1152, v10
    v_lshl_add_u32 v11, v4, 3, v11
    s_lshl_b32 s31, s25, 5
    v_add_u32 v11, s31, v11
    v_add_u32 v13, {16*1152}, v11
    v_lshlrev_b32 v12, 4, v4
    s_lshl_b32 s31, s25, 6
    v_add_u32 v12, s31, v12
    s_mov_b32 s34, {MOD + 2*576*4}
    s_mov_b32 s35, {MOD + 4*576*4}
    global_load_dwordx2 v[14:15], v11, s[4:5]
    global_load_dwordx2 v[16:17], v13, s[4:5]
    buffer_load_dwordx4 v[72:75], v12, s[12:15], s34 offen
    buffer_load_dwordx4 v[76:79], v12, s[12:15], s35 offen
    s_waitcnt vmcnt(15)
    s_barrier
    """)
    stamp(k, 1)

    def breg(kk, tt):
        return 80 + 8 * (kk & 1) + 4 * tt

    def read_b(kk):
        for tt in range(2):
            b = breg(kk, tt)
            k(f"ds_read_b128 v[{b}:{b+3}], v3 offset:{(tt*18 + kk)*1024}")

    accs = [18, 68]
    read_b(0)
    for kk in range(18):
        if kk < 17:
            read_b(kk + 1)
        if kk < 11:
            n_after = (10 - kk) + 4 + min(kk, 7)
        else:
            n_after = 17 - kk
        k(f"s_waitcnt vmcnt({n_after}) lgkmcnt({2 if kk < 17 else 0})")
        a = areg(kk)
        for tt in range(2):
            c = accs[tt]
            b = breg(kk, tt)
            cs = "0" if kk == 0 else f"v[{c}:{c+3}]"
            k(f"v_mfma_f32_16x16x32_bf16 v[{c}:{c+3}], v[{a}:{a+3}], v[{b}:{b+3}], {cs}")
        if kk + 11 < 18:
            load_a(kk + 11)
    stamp(k, 2)
    k(f"""
    s_cmp_ge_u32 s3, 2
    s_cbranch_scc1 k2_nopf
    v_min_u32 v24, 71, v0
    v_cmp_le_u32 vcc, 36, v24
    v_subrev_u32 v25, 36, v24
    v_cndmask_b32 v24, v24, v25, vcc
    v_mul_u32_u24 v25, 57, v24
    v_lshrrev_b32 v25, 9, v25
    v_mul_u32_u24 v26, 9, v25
    v_sub_u32 v26, v24, v26
    v_mul_u32_u24 v25, 9216, v25
    v_lshl_add_u32 v25, v26, 7, v25
    s_lshr_b32 s31, s2, 3
    s_mul_i32 s31, s31, {4*9216}
    s_and_b32 s32, s2, 7
    s_mul_i32 s32, s32, 1152
    s_add_u32 s31, s31, s32
    v_add_u32 v25, s31, v25
    v_mov_b32 v26, s16
    v_mov_b32 v27, s17
    v_mov_b32 v28, s18
    v_mov_b32 v29, s19
    v_cndmask_b32 v26, v26, v28, vcc
    v_cndmask_b32 v27, v27, v29, vcc
    v_add_co_u32 v26, vcc, v26, v25
    v_addc_co_u32 v27, vcc, 0, v27, vcc
    global_load_dword v95, v[26:27], off
    """)
    k.label("k2_nopf")
    k(f"""
    s_lshr_b32 s33, s3, 1
    s_lshl_b32 s33, s33, 10
    s_and_b32 s32, s3, 1
    s_lshl_b32 s32, s32, 3
    s_add_u32 s33, s33, s32
    s_add_u32 s33, s33, {K2_YL}
    v_add_u32 v6, s33, v3
    s_mul_i32 s36, s24, {144*128}
    s_lshl_b32 s37, s25, 9
    s_add_u32 s36, s36, s37
    s_add_u32 s36, s36, {X1}
    s_add_u32 s37, s36, {144*128}
    v_lshlrev_b32 v7, 3, v1
    """)
    ga, g2 = 72, 76
    for tt in range(2):
        c = accs[tt]
        xr = 14 + 2 * tt
        sm, sq = 40 + 2 * tt, 41 + 2 * tt
        k(f"""
        v_cvt_pk_bf16_f32 v24, v{c}, v{c+1}
        v_cvt_pk_bf16_f32 v25, v{c+2}, v{c+3}
        v_lshlrev_b32 v26, 16, v24
        v_and_b32 v27, 0xffff0000, v24
        v_lshlrev_b32 v28, 16, v25
        v_and_b32 v29, 0xffff0000, v25
        v_pk_mul_f32 v[26:27], v[26:27], v[{ga}:{ga+1}]
        v_pk_mul_f32 v[28:29], v[28:29], v[{ga+2}:{ga+3}]
        v_cvt_pk_bf16_f32 v24, v26, v27
        v_cvt_pk_bf16_f32 v25, v28, v29
        v_lshlrev_b32 v26, 16, v24
        v_and_b32 v27, 0xffff0000, v24
        v_lshlrev_b32 v28, 16, v25
        v_and_b32 v29, 0xffff0000, v25
        v_lshlrev_b32 v30, 16, v{xr}
        v_and_b32 v31, 0xffff0000, v{xr}
        v_lshlrev_b32 v32, 16, v{xr+1}
        v_and_b32 v33, 0xffff0000, v{xr+1}
        v_pk_add_f32 v[26:27], v[26:27], v[30:31]
        v_pk_add_f32 v[28:29], v[28:29], v[32:33]
        v_cvt_pk_bf16_f32 v{34+2*tt}, v26, v27
        v_cvt_pk_bf16_f32 v{35+2*tt}, v28, v29
        v_lshlrev_b32 v26, 16, v{34+2*tt}
        v_and_b32 v27, 0xffff0000, v{34+2*tt}
        v_lshlrev_b32 v28, 16, v{35+2*tt}
        v_and_b32 v29, 0xffff0000, v{35+2*tt}
        v_add_f32 v{sm}, v26, v27
        v_mul_f32 v{sq}, v26, v26
        v_fmac_f32 v{sq}, v27, v27
        v_add_f32 v{sm}, v{sm}, v28
        v_fmac_f32 v{sq}, v28, v28
        v_add_f32 v{sm}, v{sm}, v29
        v_fmac_f32 v{sq}, v29, v29
        v_pk_mul_f32 v[26:27], v[26:27], v[{g2}:{g2+1}]
        v_pk_mul_f32 v[28:29], v[28:29], v[{g2+2}:{g2+3}]
        v_cvt_pk_bf16_f32 v{44+2*tt}, v26, v27
        v_cvt_pk_bf16_f32 v{45+2*tt}, v28, v29
        ds_write_b64 v6, v[{44+2*tt}:{45+2*tt}] offset:{5120*tt}
        buffer_store_dwordx2 v[{34+2*tt}:{35+2*tt}], v7, s[12:15], s{36+tt} offen
        """)
    for r in range(40, 44):
        k(f"v_mov_b32 v{r+8}, v{r}")
    for r in range(40, 44):
        k(f"v_permlane16_swap_b32 v{r}, v{r+8}")
    for r in range(40, 44):
        k(f"v_add_f32 v{r}, v{r}, v{r+8}")
    for r in range(40, 44):
        k(f"v_mov_b32 v{r+8}, v{r}")
    for r in range(40, 44):
        k(f"v_permlane32_swap_b32 v{r}, v{r+8}")
    for r in range(40, 44):
        k(f"v_add_f32 v{r}, v{r}, v{r+8}")
    k(f"""
    v_cmp_gt_u32 vcc, 16, v1
    v_cndmask_b32 v40, v42, v40, vcc
    v_cndmask_b32 v41, v43, v41, vcc
    s_lshl_b32 s31, s3, 8
    s_add_u32 s31, s31, 36864
    v_lshlrev_b32 v5, 3, v1
    v_add_u32 v5, s31, v5
    s_mov_b32 exec_hi, 0
    ds_write_b64 v5, v[40:41]
    s_mov_b64 exec, -1
    s_waitcnt lgkmcnt(0)
    s_barrier
    s_cmp_eq_u32 s3, 0
    s_cbranch_scc1 k2_stats
    """)
    k(f"""
    s_sub_u32 s31, s3, 1
    s_lshr_b32 s32, s31, 2
    s_and_b32 s31, s31, 3
    s_mul_i32 s33, s32, 5120
    s_lshl_b32 s34, s31, 10
    s_add_u32 s33, s33, s34
    s_add_u32 s33, s33, {K2_YL}
    v_add_u32 v6, s33, v3
    ds_read_b128 v[24:27], v6
    s_lshr_b32 s35, s21, 1
    s_mul_i32 s35, s35, 9
    s_and_b32 s36, s21, 1
    s_lshl_b32 s37, s36, 2
    s_add_u32 s37, s37, s35
    s_add_u32 s37, s37, s31
    s_add_u32 s38, s24, s32
    s_mul_i32 s38, s38, 18
    s_add_u32 s37, s37, s38
    s_lshl_b32 s37, s37, 10
    s_add_u32 s37, s37, {YY}
    s_waitcnt lgkmcnt(0)
    buffer_store_dwordx4 v[24:27], v3, s[12:15], s37 offen
    s_cmp_lg_u32 s31, 0
    s_cbranch_scc1 k2_done
    ds_read_b64 v[28:29], v6 offset:4096
    s_add_u32 s37, s35, 8
    s_add_u32 s37, s37, s38
    s_lshl_b32 s37, s37, 10
    s_lshl_b32 s36, s36, 3
    s_add_u32 s37, s37, s36
    s_add_u32 s37, s37, {YY}
    s_waitcnt lgkmcnt(0)
    buffer_store_dwordx2 v[28:29], v3, s[12:15], s37 offen
    s_branch k2_done
    """)
    k.label("k2_stats")
    k("v_lshlrev_b32 v5, 2, v1")
    for w in range(9):
        k(f"ds_read_b32 v{24+w}, v5 offset:{36864 + 256*w}")
    k("s_waitcnt lgkmcnt(0)")
    k("""
    v_add_f32 v24, v24, v25
    v_add_f32 v26, v26, v27
    v_add_f32 v28, v28, v29
    v_add_f32 v30, v30, v31
    v_add_f32 v24, v24, v26
    v_add_f32 v28, v28, v30
    v_add_f32 v24, v24, v32
    v_add_f32 v24, v24, v28
    """)
    k(f"""
    s_lshl_b32 s31, s21, 14
    s_lshl_b32 s32, s24, 7
    s_add_u32 s31, s31, s32
    s_add_u32 s31, s31, {STAT}
    buffer_store_dword v24, v5, s[12:15], s31 offen
    """)
    stamp(k, 3)
    stamp_flush(k, 4, 3, "k2", 90)
    k.label("k2_done")
    tl_end(k, 2)
    k("s_endpgm")
    return k, 96, K2_LDS


K3_R = 8
K3_ST = 18432
K3_GSL = K3_R * K3_ST
K3_GBL = K3_GSL + 2304
K3_LDS = K3_GBL + 2304 + 16


class VM:
    def __init__(self):
        self.ops = []

    def add(self, tag, n=1):
        self.ops += [tag] * n

    def need(self, *tags):
        last = max((i for i, t in enumerate(self.ops) if t in tags), default=-1)
        return len(self.ops) - 1 - last


def gen_k3(k):
    R, ST = K3_R, K3_ST
    LA = PRM.get("LA", 4)
    NA = 6
    S, D, DY = PRM.get("S", 4), PRM.get("D", 3), 4
    assert S + D + 1 <= R
    k(f"""
    s_load_dwordx2 s[56:57], s[0:1], 48
    s_and_b32 s20, s2, 7
    s_lshl_b32 s20, s20, 2
    s_bfe_u32 s21, s2, 0x20003
    s_add_u32 s20, s20, s21
    s_lshr_b32 s21, s2, 5
    s_waitcnt lgkmcnt(0)
    """)
    stamp(k, 0)
    k(f"""
    s_cmp_ge_u32 s3, 4
    s_cselect_b32 s8, s18, s16
    s_cselect_b32 s9, s19, s17
    s_cselect_b32 s22, 9216, 0
    s_and_b32 s9, s9, 0xffff
    s_mov_b32 s10, {576*4608*2}
    s_mov_b32 s11, 0x00020000
    s_and_b32 s23, s3, 3
    s_mul_i32 s24, s23, 2304
    s_add_u32 s22, s22, s24
    s_lshl_b32 s24, s21, 4
    s_lshl_b32 s25, s3, 1
    s_add_u32 s24, s24, s25
    s_mul_i32 s25, s24, {18*1024}
    s_add_u32 s25, s25, {YY}
    s_add_u32 s26, s25, {18*1024}
    s_mov_b32 s50, -1
    s_mov_b32 s51, 0xffff
    s_mov_b32 s52, 0x3ffff
    s_mov_b32 s53, 0
    s_and_b32 s27, s23, 1
    s_mul_i32 s27, s27, {8*9216}
    s_mul_i32 s28, s20, 288
    s_add_u32 s27, s27, s28
    s_lshr_b32 s28, s23, 1
    s_mul_i32 s54, s28, {16*9216}
    s_mul_i32 s55, s28, {144*9216}
    """)
    for i in range(3):
        k(f"""
        v_add_u32 v7, {48*i}, v1
        v_mul_u32_u24 v8, 0xe39, v7
        v_lshrrev_b32 v8, 16, v8
        v_mul_u32_u24 v9, 18, v8
        v_sub_u32 v9, v7, v9
        v_mul_u32_u24 v8, 9216, v8
        v_lshl_add_u32 v8, v9, 4, v8
        v_add_u32 v{10+i}, s27, v8
        """)

    def ybuf(st, tt):
        return 72 + 8 * (st % 5) + 4 * tt

    def dma_parts(st):
        parts = []
        for i in range(3):
            p = []
            if i == 0:
                p += [f"s_add_u32 s30, s22, {(st % R) * ST}",
                      f"s_add_u32 s29, s{54 if st % 9 < 8 else 55}, {tile_of(st, 0) * 16 * 9216}"]
            p += [f"s_add_u32 m0, s30, {768*i}", "s_mov_b64 exec, s[50:51]",
                  f"buffer_load_dwordx4 v{10+i}, s[8:11], s29 offen lds", "s_mov_b64 exec, -1"]
            parts.append((p, f"w{st}"))
        return parts

    def y_parts(st):
        parts = []
        for tt in range(2):
            p = []
            if tt == 0 and st % 4 == 0 and st > 0:
                p += ["s_add_u32 s25, s25, 4096", "s_add_u32 s26, s26, 4096"]
            y = ybuf(st, tt)
            p.append(f"buffer_load_dwordx4 v[{y}:{y+3}], v3, s[12:15], s{25+tt} offen offset:{(st * 1024) % 4096} sc1")
            parts.append((p, f"y{st}"))
        return parts

    vm0 = VM()

    def emit(parts, vm, loop=False):
        for p, tag in parts:
            if loop and "nodma" in ABL:
                continue
            for ln in p:
                k(ln)
            vm.add(tag)

    emit(dma_parts(0), vm0)
    k(f"""
    v_bfe_u32 v7, v1, 2, 2
    v_lshl_add_u32 v7, v4, 2, v7
    v_mul_u32_u24 v7, 288, v7
    v_and_b32 v8, 3, v1
    v_lshl_add_u32 v13, v8, 3, v7
    v_add_u32 v14, {3*ST}, v13
    v_add_u32 v15, {6*ST}, v13
    v_and_b32 v7, 15, v1
    v_lshlrev_b32 v8, 5, v4
    v_lshl_add_u32 v8, v7, 4, v8
    v_add_u32 v8, {K3_GBL}, v8
    v_mov_b32 v9, {K3_GBL + 2304}
    v_cmp_gt_u32 vcc, 2, v7
    v_cndmask_b32 v16, v9, v8, vcc
    v_mov_b32 v19, 128
    v_cndmask_b32 v19, 0, v19, vcc
    v_mov_b32 v20, 0
    v_mov_b32 v21, 0
    v_mov_b32 v22, 0
    v_mov_b32 v23, 0
    ds_write_b128 v9, v[20:23]
    s_mul_i32 s27, s3, 288
    s_add_u32 s28, s27, {K3_GBL}
    s_add_u32 s27, s27, {GSB}
    s_mov_b32 m0, s28
    s_mov_b64 exec, s[52:53]
    buffer_load_dwordx4 v3, s[12:15], s27 offen lds
    s_mov_b64 exec, -1
    """)
    vm0.add("gsb")
    for st in range(1, D):
        emit(dma_parts(st), vm0)
    k(f"""
    s_lshl_b32 s33, s21, 8
    s_add_u32 s33, s33, {CNT + 32*256}
    v_mov_b32 v17, s33
    s_mov_b32 s37, 0
    s_cmp_lg_u32 s3, 7
    s_cbranch_scc1 k3_ready
    s_mov_b64 exec, 1
    """)
    k.label("k3_poll")
    k("""
    global_load_dword v18, v17, s[86:87] sc1
    s_waitcnt vmcnt(0)
    v_readfirstlane_b32 s38, v18
    s_add_u32 s37, s37, 1
    s_cmp_ge_u32 s38, 32
    s_cbranch_scc1 k3_ready
    s_cmp_lt_u32 s37, 0x400000
    s_cbranch_scc0 k3_ready
    s_sleep 2
    s_branch k3_poll
    """)
    k.label("k3_ready")
    k("s_mov_b64 exec, -1")
    k("s_barrier")
    ts(k, 6)
    for st in range(DY):
        emit(y_parts(st), vm0)
    k(f"""
    v_and_b32 v17, 31, v1
    s_lshl_b32 s27, s24, 4
    v_add_u32 v17, s27, v17
    v_lshlrev_b32 v17, 3, v17
    v_lshrrev_b32 v18, 5, v1
    v_mul_u32_u24 v18, {2*16384}, v18
    v_add_u32 v17, v17, v18
    s_mov_b32 s27, {STAT}
    s_mov_b32 s28, {STAT + 16384}
    buffer_load_dwordx2 v[6:7], v17, s[12:15], s27 offen sc1
    buffer_load_dwordx2 v[8:9], v17, s[12:15], s28 offen sc1
    """)
    vm0.add("stat", 2)
    k("""
    s_and_b32 s60, s23, 1
    s_mul_i32 s60, s60, 9216
    s_lshr_b32 s61, s23, 1
    s_lshl_b32 s61, s61, 5
    s_add_u32 s60, s60, s61
    s_add_u32 s61, s60, 64
    s_add_u32 s62, s60, 128
    s_add_u32 s63, s60, 192
    s_add_u32 s64, s60, 256
    s_cmp_lt_u32 s23, 2
    s_cselect_b32 s64, s64, s63
    """)

    def acc(tt, m, ft):
        return 112 + ((tt * 2 + m) * 9 + ft) * 4

    frs = [(m, ft) for ft in range(9) for m in range(2)]
    GB = 20

    def body(grp):
        import copy
        vm = copy.deepcopy(vm0)
        nx = 5 if grp == 0 and "nogs" not in ABL else 0
        per = 18 + nx
        seq = []
        xi = 0
        for j in range(18):
            seq.append(("m", j))
            if nx and j % 4 == 1 and xi < nx:
                seq.append(("x", xi)); xi += 1
        while xi < nx:
            seq.append(("x", xi)); xi += 1
        NQ = 18 * per

        def areg(q):
            return 48 + 4 * (q % NA)

        def read_frag(q):
            st, j = divmod(q, per)
            kind, idx = seq[j]
            sl = st % R
            base = 13 + sl // 3
            a = areg(q)
            if "halfread" in ABL and q >= 12 and (q & 1):
                k("s_nop 0")
                k("s_nop 0")
                return
            if kind == "m":
                m, ft = frs[idx]
                off = (sl % 3) * ST + m * 9216 + ft * 32
                k(f"ds_read_b64_tr_b16 v[{a}:{a+1}], v{base} offset:{off}")
                k(f"ds_read_b64_tr_b16 v[{a+2}:{a+3}], v{base} offset:{off + 4608}")
            else:
                t = 17 + (idx & 1)
                off = (sl % 3) * ST
                k(f"v_add_u32 v{t}, s{60+idx}, v{base}")
                k(f"ds_read_b64_tr_b16 v[{a}:{a+1}], v{t} offset:{off}")
                k(f"ds_read_b64_tr_b16 v[{a+2}:{a+3}], v{t} offset:{off + 4608}")

        BJ = PRM.get("BJ0", 8) if grp == 0 else PRM.get("BJ1", 2)
        VJ = PRM.get("VJ0", 12) if grp == 0 else BJ
        if PRM.get("P%d" % grp, 0):
            k(f"s_setprio {PRM['P%d' % grp]}")
        k(f"s_waitcnt vmcnt({vm.need('w0', 'y0', 'gsb')}) lgkmcnt(0)")
        k("s_barrier")
        stamp(k, 1)
        for t in range(18 + S * grp):
            st = t - S * grp
            parts = []
            if t + D < 18:
                parts += dma_parts(t + D)
            ys = st + DY
            if grp == 0:
                if ys < 18:
                    parts += y_parts(ys)
            else:
                if DY <= ys < 18:
                    parts += y_parts(ys)
            if st < 0:
                k(f"s_waitcnt vmcnt({vm.need(f'w{t+1}')})")
                k("s_barrier")
                emit(parts, vm)
                continue
            if st == 0:
                if grp == 0:
                    k(f"ds_read_b128 v[{GB}:{GB+3}], v16")
                else:
                    k(f"s_waitcnt vmcnt({vm.need('y0')})")
                for q in range(LA):
                    read_frag(q)
            pi = 0
            for j in range(per):
                q = st * per + j
                if j == BJ and t <= 18:
                    need = []
                    if t + 1 < 18:
                        need.append(f"w{t+1}")
                    if st + 1 < 18:
                        need.append(f"y{st+1}")
                    if need:
                        k(f"s_waitcnt vmcnt({vm.need(*need)})")
                    if t < 17 or (grp == 1 and t == 18):
                        k("s_barrier")
                    if st in (0, 6, 12):
                        stamp(k, 2 + (0, 6, 12).index(st))
                elif j == BJ and st + 1 < 18:
                    k(f"s_waitcnt vmcnt({vm.need(f'y{st+1}')})")
                if grp == 0 and j == 2 and st < 17:
                    g_ = GB + 4 * ((st + 1) & 1)
                    k("v_add_u32 v16, v16, v19")
                    k(f"ds_read_b128 v[{g_}:{g_+3}], v16")
                if q + LA < NQ:
                    read_frag(q + LA)
                    k(f"s_waitcnt lgkmcnt({2*LA})")
                else:
                    k(f"s_waitcnt lgkmcnt({2*(NQ-1-q)})")
                kind, idx = seq[j]
                a = areg(q)
                if kind == "m":
                    m, ft = frs[idx]
                    for tt in range(2):
                        c = acc(tt, m, ft)
                        y = ybuf(st, tt)
                        cs = "0" if st == 0 else f"v[{c}:{c+3}]"
                        k(f"v_mfma_f32_16x16x32_bf16 v[{c}:{c+3}], v[{a}:{a+3}], v[{y}:{y+3}], {cs}")
                else:
                    gc = 28 + 4 * idx
                    g_ = GB + 4 * (st & 1)
                    cs = "0" if st == 0 else f"v[{gc}:{gc+3}]"
                    k(f"v_mfma_f32_16x16x32_bf16 v[{gc}:{gc+3}], v[{a}:{a+3}], v[{g_}:{g_+3}], {cs}")
                if grp == 1 and j == BJ and "spread1" not in ABL:
                    emit(parts, vm, True)
                    pi = len(parts)
                elif j >= VJ and pi < len(parts):
                    emit(parts[pi:pi + 1], vm, True)
                    pi += 1
                if "fake2p" in ABL and st >= 8 and kind == "m":
                    fk = (st * 18 + idx) % 9
                    ops = ["v_fma_f32 v2, v2, v4, v1", "v_fma_f32 v5, v5, v4, v1", "v_exp_f32 v2, v2", "v_mul_f32 v5, v5, v2",
                           "v_fma_f32 v2, v2, v4, v1", "v_rcp_f32 v5, v5", "v_mul_f32 v2, v5, v2", "v_add_f32 v5, 1.0, v5",
                           "v_fma_f32 v2, v2, v4, v1"]
                    k(ops[fk]); k(ops[(fk + 4) % 9])
                    if idx % 6 == 0:
                        k(ops[(fk + 7) % 9])
                    if idx == 9 and st % 2 == 0:
                        k(f"s_mul_i32 s27, s24, {144*1024}")
                        k(f"s_add_u32 s27, s27, {HH + 0}")
                        k(f"s_mul_i32 s28, s20, {4608}")
                        k(f"s_add_u32 s27, s27, s28")
                        k(f"buffer_store_dwordx4 v[112:115], v3, s[12:15], s27 offen offset:{((st-8)//2 % 4)*1024}")
                        vm.add("st")
                if t == 14 and j == per - 1:
                    k(f"""
                    v_min_u32 v5, 161, v0
                    s_mul_i32 s31, s2, {162*128}
                    v_lshl_add_u32 v5, v5, 7, s31
                    global_load_dword v2, v5, s[56:57]
                    """)
                    vm.add("pf")
            assert pi == len(parts)
        stamp(k, 5)
        if grp == 0:
            k(f"""
            v_and_b32 v5, 15, v1
            v_mul_u32_u24 v5, 576, v5
            v_lshl_add_u32 v5, v4, 4, v5
            s_and_b32 s31, s3, 1
            s_mul_i32 s31, s31, 1152
            s_lshr_b32 s32, s3, 1
            s_lshl_b32 s32, s32, 6
            s_add_u32 s31, s31, s32
            s_add_u32 s31, s31, {K3_GSL}
            v_add_u32 v5, s31, v5
            s_mov_b32 exec_lo, 0x00030003
            s_mov_b32 exec_hi, 0x00030003
            ds_write_b128 v5, v[28:31]
            ds_write_b128 v5, v[32:35] offset:128
            ds_write_b128 v5, v[36:39] offset:256
            ds_write_b128 v5, v[40:43] offset:384
            s_cmp_ge_u32 s3, 2
            s_cbranch_scc1 k3_gs_w
            ds_write_b128 v5, v[44:47] offset:512
            """)
            k.label("k3_gs_w")
            k("""
            s_mov_b64 exec, -1
            s_waitcnt lgkmcnt(0)
            s_barrier
            """)

    k("s_cmp_ge_u32 s3, 4")
    k("s_cbranch_scc1 k3_grp1")
    body(0)
    k("s_branch k3_epi")
    k.label("k3_grp1")
    body(1)
    k.label("k3_epi")
    k("s_setprio 0")
    ts(k, 7)
    if "noepi" in ABL:
        k("s_branch k3_done")
    k("""
    s_nop 7
    v_add_f32 v20, v6, v8
    v_add_f32 v21, v7, v9
    v_mov_b32 v22, v20
    v_mov_b32 v23, v21
    v_permlane32_swap_b32 v20, v22
    v_permlane32_swap_b32 v21, v23
    v_add_f32 v20, v20, v22
    v_add_f32 v21, v21, v23
    v_mul_f32 v20, 0x3ae38e39, v20
    v_mul_f32 v21, 0x3ae38e39, v21
    v_fma_f32 v21, -v20, v20, v21
    v_max_f32 v21, 0, v21
    """)
    bf16_round(k, 21, 21)
    k("v_add_f32 v21, 0x3727c5ac, v21")
    bf16_round(k, 21, 21)
    k("v_sqrt_f32 v21, v21")
    bf16_round(k, 21, 21)
    k("v_rcp_f32 v21, v21")
    bf16_round(k, 20, 20)
    k("""
    v_mul_f32 v20, v20, v21
    v_sub_f32 v20, 0, v20
    v_mov_b32 v24, v21
    v_mov_b32 v26, v21
    v_mov_b32 v28, v20
    v_mov_b32 v30, v20
    v_permlane16_swap_b32 v24, v26
    v_permlane16_swap_b32 v28, v30
    """)
    k(f"""
    v_lshlrev_b32 v5, 4, v4
    v_add_u32 v5, {K3_GSL}, v5
    s_mul_i32 s27, s24, {144*1024}
    s_add_u32 s27, s27, {HH}
    s_lshr_b32 s28, s20, 1
    s_mul_i32 s28, s28, {9*1024}
    s_add_u32 s27, s27, s28
    s_and_b32 s28, s20, 1
    s_lshl_b32 s42, s28, 3
    s_add_u32 s42, s42, s27
    s_add_u32 s42, s42, 8192
    s_add_u32 s43, s42, {144*1024}
    s_lshl_b32 s28, s28, 12
    s_add_u32 s32, s27, s28
    s_add_u32 s33, s32, {144*1024}
    s_mov_b32 s40, 0xbfb8aa3b
    s_mov_b32 s41, 0xbfb8aa3b
    """)

    def gsreg(ft):
        return 48 + 16 * (ft % 2)

    def read_gs(ft):
        g = gsreg(ft)
        for a in range(4):
            k(f"ds_read_b128 v[{g+4*a}:{g+4*a+3}], v5 offset:{a*576 + ft*64}")

    read_gs(0)
    for ft in range(9):
        g = gsreg(ft)
        if "fake2p" in ABL and ft < 5:
            continue
        if ft < 8:
            read_gs(ft + 1)
        k(f"s_waitcnt lgkmcnt({4 if ft < 8 else 0})")
        U4 = [(tt, h) for tt in range(2) for h in range(2)]
        for u, (tt, h) in enumerate(U4):
            mr = 28 + 2 * tt
            k(f"v_pk_fma_f32 v[{80+2*u}:{81+2*u}], v[{g+2*h}:{g+2*h+1}], v[{mr}:{mr+1}], v[{g+4+2*h}:{g+4+2*h+1}] op_sel_hi:[1,0,1]")
        for u, (tt, h) in enumerate(U4):
            mr = 28 + 2 * tt
            k(f"v_pk_fma_f32 v[{88+2*u}:{89+2*u}], v[{g+8+2*h}:{g+8+2*h+1}], v[{mr}:{mr+1}], v[{g+12+2*h}:{g+12+2*h+1}] op_sel_hi:[1,0,1]")
        for u, (tt, h) in enumerate(U4):
            r = 24 + 2 * tt
            ga = acc(tt, 0, ft)
            k(f"v_pk_fma_f32 v[{80+2*u}:{81+2*u}], v[{ga+2*h}:{ga+2*h+1}], v[{r}:{r+1}], v[{80+2*u}:{81+2*u}] op_sel_hi:[1,0,1]")
        for u, (tt, h) in enumerate(U4):
            k(f"v_pk_mul_f32 v[{96+2*u}:{97+2*u}], v[{80+2*u}:{81+2*u}], s[40:41]")
        for u, (tt, h) in enumerate(U4):
            r = 24 + 2 * tt
            ua = acc(tt, 1, ft)
            k(f"v_pk_fma_f32 v[{88+2*u}:{89+2*u}], v[{ua+2*h}:{ua+2*h+1}], v[{r}:{r+1}], v[{88+2*u}:{89+2*u}] op_sel_hi:[1,0,1]")
        for e in range(8):
            if "notrans" not in ABL:
                k(f"v_exp_f32 v{96+e}, v{96+e}")
        for u in range(4):
            k(f"v_pk_mul_f32 v[{80+2*u}:{81+2*u}], v[{80+2*u}:{81+2*u}], v[{88+2*u}:{89+2*u}]")
        for u in range(4):
            k(f"v_pk_add_f32 v[{96+2*u}:{97+2*u}], v[{96+2*u}:{97+2*u}], 1.0 op_sel_hi:[1,0]")
        for e in range(8):
            if "notrans" not in ABL:
                k(f"v_rcp_f32 v{96+e}, v{96+e}")
        for u in range(4):
            k(f"v_pk_mul_f32 v[{80+2*u}:{81+2*u}], v[{80+2*u}:{81+2*u}], v[{96+2*u}:{97+2*u}]")
        pb = (ft >> 1) & 1
        for u, (tt, h) in enumerate(U4):
            o = (32 if pb == 0 else 40) + 4 * tt + 2 * (ft & 1) + h
            k(f"v_cvt_pk_bf16_f32 v{o}, v{80+2*u}, v{81+2*u}")
        for tt in range(2):
            o = (32 if pb == 0 else 40) + 4 * tt
            if "nostore" in ABL:
                continue
            if ft == 8:
                k(f"buffer_store_dwordx2 v[{o}:{o+1}], v3, s[12:15], s{42+tt} offen sc1")
            elif ft & 1:
                k(f"buffer_store_dwordx4 v[{o}:{o+3}], v3, s[12:15], s{32+tt} offen offset:{(ft>>1)*1024} sc1")
    stamp(k, 6)
    stamp_flush(k, 8, 3, "k3")
    k.label("k3_done")
    k(f"""
    s_waitcnt vmcnt(0) lgkmcnt(0)
    s_barrier
    s_lshl_b32 s33, s21, 8
    s_add_u32 s33, s33, {CNT + 40*256}
    v_mov_b32 v9, s33
    s_cmp_lg_u32 s3, 7
    s_cbranch_scc1 k3_nosig
    v_mov_b32 v8, 1
    s_mov_b64 exec, 1
    global_atomic_add v9, v8, s[86:87]
    s_mov_b64 exec, -1
    """)
    k.label("k3_nosig")
    ts(k, 8)
    return gen_k4(k)


K4_LDS = 160 * 1024
K4_GRID = 240


def gen_k4(k):
    NS = PRM.get("NS4", 3)
    k(f"""
    s_cmp_ge_u32 s2, {K4_GRID}
    s_cbranch_scc1 k4_done
    s_and_b32 s20, s2, 7
    s_mul_i32 s20, s20, 30
    s_lshr_b32 s21, s2, 3
    s_add_u32 s22, s20, s21
    s_cmp_ge_u32 s22, 234
    s_cbranch_scc1 k4_done
    s_load_dwordx2 s[16:17], s[0:1], 48
    s_load_dwordx2 s[18:19], s[0:1], 72
    s_mul_i32 s20, s22, 0x1c72
    s_lshr_b32 s20, s20, 16
    s_mul_i32 s21, s20, 9
    s_sub_u32 s21, s22, s21
    s_waitcnt lgkmcnt(0)
    """)
    stamp(k, 0)
    srd(k, 8, 16, 4608 * 576 * 2)
    srd(k, 44, 18, 2048 * 576 * 2)
    k(f"s_mul_i32 s22, s20, 5")
    k(f"s_mul_i32 s23, s3, {18*1024}")
    for tt in range(5):
        k(f"""
        s_add_u32 s29, s22, {tt}
        s_min_u32 s29, s29, 127
        s_mul_i32 s29, s29, {144*1024}
        s_add_u32 s29, s29, s23
        s_add_u32 s{24+tt}, s29, {HH}
        """)
    k(f"""
    s_lshl_b32 s30, s3, 14
    s_mul_i32 s31, s3, {576*1152}
    s_lshl_b32 s29, s21, 7
    s_add_u32 s31, s31, s29
    v_lshrrev_b32 v7, 3, v1
    v_and_b32 v8, 7, v1
    v_bfe_u32 v9, v7, 1, 2
    v_lshlrev_b32 v9, 1, v9
    v_xor_b32 v8, v8, v9
    v_mul_u32_u24 v7, 1152, v7
    v_lshl_add_u32 v7, v8, 4, v7
    v_add_u32 v10, s31, v7
    v_add_u32 v11, {8*1152}, v10
    """)
    k(f"""
    v_bfe_u32 v7, v1, 2, 2
    v_lshl_add_u32 v7, v4, 2, v7
    v_bfe_u32 v8, v7, 1, 2
    v_lshlrev_b32 v8, 1, v8
    v_bfe_u32 v9, v1, 1, 1
    v_lshlrev_b32 v7, 7, v7
    v_and_b32 v16, 1, v1
    v_lshl_add_u32 v7, v16, 3, v7
    v_add_u32 v7, s30, v7
    """)
    for nt in range(4):
        k(f"""
        v_or_b32 v16, {2*nt}, v9
        v_xor_b32 v16, v16, v8
        v_lshl_add_u32 v{12+nt}, v16, 4, v7
        """)

    def hbuf(it, tt):
        return 32 + 20 * (it % NS) + 4 * tt if NS <= 4 else None

    vm4 = VM()

    def issue_w(it):
        for i in range(4):
            half = i >> 1
            k(f"s_mov_b32 s29, {tile_of(it, half) * 16 * 1152}")
            k(f"s_add_u32 m0, s30, {(it % NS) * 4096 + 1024 * i}")
            k(f"buffer_load_dwordx4 v{10 + (i & 1)}, s[8:11], s29 offen lds")
        vm4.add(f"w{it}", 4)

    def issue_h(it):
        if it % 4 == 0 and it > 0:
            for tt in range(5):
                k(f"s_add_u32 s{24+tt}, s{24+tt}, 4096")
        for tt in range(5):
            h = hbuf(it, tt)
            k(f"buffer_load_dwordx4 v[{h}:{h+3}], v3, s[12:15], s{24+tt} offen offset:{(it % 4) * 1024} sc1")
        vm4.add(f"h{it}", 5)

    def acc(tt, nt):
        return 128 + (tt * 4 + nt) * 4

    NIT = 18
    for it in range(NS - 1):
        issue_w(it)
    k(f"""
    s_lshr_b32 s33, s22, 4
    s_add_u32 s34, s22, 4
    s_min_u32 s34, s34, 127
    s_lshr_b32 s34, s34, 4
    s_lshl_b32 s33, s33, 8
    s_lshl_b32 s34, s34, 8
    s_add_u32 s33, s33, {CNT + 40*256}
    s_add_u32 s34, s34, {CNT + 40*256}
    v_mov_b32 v17, s33
    v_mov_b32 v18, s34
    s_mov_b32 s37, 0
    s_cmp_lg_u32 s3, 7
    s_cbranch_scc1 k4_ready
    s_mov_b64 exec, 1
    """)
    k.label("k4_poll")
    k("""
    global_load_dword v19, v17, s[86:87] sc1
    global_load_dword v20, v18, s[86:87] sc1
    s_waitcnt vmcnt(0)
    v_min_u32 v19, v19, v20
    v_readfirstlane_b32 s38, v19
    s_add_u32 s37, s37, 1
    s_cmp_ge_u32 s38, 32
    s_cbranch_scc1 k4_ready
    s_cmp_lt_u32 s37, 0x400000
    s_cbranch_scc0 k4_ready
    s_sleep 2
    s_branch k4_poll
    """)
    k.label("k4_ready")
    k("s_mov_b64 exec, -1")
    k("s_barrier")
    ts(k, 9)
    for it in range(NS - 1):
        issue_h(it)
    for it in range(NIT):
        if it + NS - 1 < NIT:
            issue_w(it + NS - 1)
            issue_h(it + NS - 1)
        k(f"s_waitcnt vmcnt({vm4.need(f'w{it}', f'h{it}')})")
        if it in (0, 1, 9):
            stamp(k, 1 + (0, 1, 9).index(it))
        for nt in range(4):
            a = 112 + 4 * nt
            off = (it % NS) * 4096
            k(f"ds_read_b64_tr_b16 v[{a}:{a+1}], v{12+nt} offset:{off}")
            k(f"ds_read_b64_tr_b16 v[{a+2}:{a+3}], v{12+nt} offset:{off + 2048}")
        for nt in range(4):
            a = 112 + 4 * nt
            k(f"s_waitcnt lgkmcnt({2*(3-nt)})")
            for tt in range(5):
                c = acc(tt, nt)
                h = hbuf(it, tt)
                cs = "0" if it == 0 else f"v[{c}:{c+3}]"
                k(f"v_mfma_f32_16x16x32_bf16 v[{c}:{c+3}], v[{a}:{a+3}], v[{h}:{h+3}], {cs}")
    ts(k, 10)
    stamp(k, 4)
    k("v_add_u32 v5, s30, v3")
    k("s_lshl_b32 s33, s3, 12")
    k("s_add_u32 s33, s33, 131072")
    k("v_add_u32 v6, s33, v3")
    for u in range(20):
        c = 128 + 4 * u
        if u < 16:
            k(f"ds_write_b128 v5, v[{c}:{c+3}] offset:{1024*u}")
        else:
            k(f"ds_write_b128 v6, v[{c}:{c+3}] offset:{1024*(u-16)}")
    k("""
    s_mov_b32 s34, s3
    s_add_u32 s35, s3, 8
    s_and_b32 s36, s3, 3
    s_add_u32 s36, s36, 16
    v_lshlrev_b32 v9, 3, v1
    v_lshlrev_b32 v11, 4, v4
    v_and_b32 v12, 15, v1
    v_mul_u32_u24 v12, 1152, v12
    v_lshl_add_u32 v12, v4, 3, v12
    """)
    for j in range(3):
        k(f"""
        s_lshr_b32 s37, s{34+j}, 2
        s_and_b32 s38, s{34+j}, 3
        s_add_u32 s37, s37, s22
        s_min_u32 s39, s37, 127
        s_mul_i32 s40, s39, {144*128}
        s_lshl_b32 s41, s21, 11
        s_add_u32 s40, s40, s41
        s_lshl_b32 s41, s38, 9
        s_add_u32 s40, s40, s41
        s_add_u32 s40, s40, {X1}
        buffer_load_dwordx2 v[{120+2*j}:{121+2*j}], v9, s[12:15], s40 offen sc1
        s_lshl_b32 s40, s21, 8
        s_lshl_b32 s41, s38, 6
        s_add_u32 s40, s40, s41
        s_add_u32 s40, s40, {MOD + 5*576*4}
        buffer_load_dwordx4 v[{208+4*j}:{211+4*j}], v11, s[12:15], s40 offen
        s_mul_i32 s40, s37, {16*1152}
        s_lshl_b32 s41, s21, 7
        s_add_u32 s40, s40, s41
        s_lshl_b32 s41, s38, 5
        s_add_u32 s{50+j}, s40, s41
        """)
    k("""
    s_lshl_b32 s40, s3, 10
    v_add_u32 v6, s40, v3
    v_add_u32 v13, 65536, v6
    s_and_b32 s40, s3, 3
    s_lshl_b32 s40, s40, 10
    s_add_u32 s40, s40, 131072
    v_add_u32 v8, s40, v3
    """)
    k("s_waitcnt lgkmcnt(0)")
    k("s_barrier")

    def rr(j, sl):
        return 16 + 4 * j if sl == 0 else 28 + (j * 7 + sl - 1) * 4

    for j in range(3):
        for sl in range(8):
            r = rr(j, sl)
            if j < 2:
                k(f"ds_read_b128 v[{r}:{r+3}], v{6 if sl < 4 else 13} offset:{(sl % 4)*16384 + j*8192}")
            else:
                k(f"ds_read_b128 v[{r}:{r+3}], v8 offset:{sl*4096}")
    for j in range(3):
        k(f"s_waitcnt lgkmcnt({min(15, 8*(2-j))})")
        for sl in range(1, 8):
            r = rr(j, sl)
            k(f"v_pk_add_f32 v[{16+4*j}:{17+4*j}], v[{16+4*j}:{17+4*j}], v[{r}:{r+1}]")
            k(f"v_pk_add_f32 v[{18+4*j}:{19+4*j}], v[{18+4*j}:{19+4*j}], v[{r+2}:{r+3}]")
    k("s_waitcnt vmcnt(0)")
    for j in range(3):
        c = 16 + 4 * j
        gb = 208 + 4 * j
        xr = 120 + 2 * j
        t = 32 + 8 * j
        k(f"""
        v_cvt_pk_bf16_f32 v{t}, v{c}, v{c+1}
        v_cvt_pk_bf16_f32 v{t+1}, v{c+2}, v{c+3}
        v_lshlrev_b32 v{c}, 16, v{t}
        v_and_b32 v{c+1}, 0xffff0000, v{t}
        v_lshlrev_b32 v{c+2}, 16, v{t+1}
        v_and_b32 v{c+3}, 0xffff0000, v{t+1}
        v_pk_mul_f32 v[{c}:{c+1}], v[{c}:{c+1}], v[{gb}:{gb+1}]
        v_pk_mul_f32 v[{c+2}:{c+3}], v[{c+2}:{c+3}], v[{gb+2}:{gb+3}]
        v_cvt_pk_bf16_f32 v{t}, v{c}, v{c+1}
        v_cvt_pk_bf16_f32 v{t+1}, v{c+2}, v{c+3}
        v_lshlrev_b32 v{c}, 16, v{t}
        v_and_b32 v{c+1}, 0xffff0000, v{t}
        v_lshlrev_b32 v{c+2}, 16, v{t+1}
        v_and_b32 v{c+3}, 0xffff0000, v{t+1}
        v_lshlrev_b32 v{t+2}, 16, v{xr}
        v_and_b32 v{t+3}, 0xffff0000, v{xr}
        v_lshlrev_b32 v{t+4}, 16, v{xr+1}
        v_and_b32 v{t+5}, 0xffff0000, v{xr+1}
        v_pk_add_f32 v[{c}:{c+1}], v[{c}:{c+1}], v[{t+2}:{t+3}]
        v_pk_add_f32 v[{c+2}:{c+3}], v[{c+2}:{c+3}], v[{t+4}:{t+5}]
        v_cvt_pk_bf16_f32 v{t+6}, v{c}, v{c+1}
        v_cvt_pk_bf16_f32 v{t+7}, v{c+2}, v{c+3}
        buffer_store_dwordx2 v[{t+6}:{t+7}], v12, s[44:47], s{50+j} offen
        """)
    stamp(k, 6)
    stamp_flush(k, 7, 3, "k4")
    k("s_waitcnt vmcnt(0)") if DIAG else None
    ts(k, 11)
    k.label("k4_done")
    k("s_endpgm")
    return k, 256, K4_LDS


KERNELS = []


def build(kernels, path):
    head = ["; adaLN + sliding dilated local attention + SwiGLU block (generated by the author's own script).",
            "; prep_kernel: mod = silu(c) @ w_mod, LN1 normalisation, MFMA-fragment packing of wqkv / wo, counter reset.",
            "; qkv_attn_kernel (persistent, one workgroup per CU): modulate + QKV GEMM + local attention -> wo GEMM + residual",
            ";   -> gate/up GEMM (LN2 folded into the epilogue) + SwiGLU -> down GEMM + residual.",
            ";   Phases hand data over with write-through (sc1) stores, per-block counters in d_ws and sc1 loads."]
    texts, descs = [], []
    for (gen, grid, block) in kernels:
        k, vgpr, lds = gen()
        head.append(f"; @launch kernel={k.name} grid=({grid},1,1) block=({block},1,1) lds={lds}")
        t, d = kernel_text(k, vgpr)
        texts.append(t)
        descs.append(d)
    out = "\n".join(head) + "\n.amdgcn_target \"amdgcn-amd-amdhsa--gfx950\"\n.text\n" + "\n".join(texts) + \
        "\n.section .rodata,\"a\"\n" + "".join(descs)
    open(path, "w").write(out)


if __name__ == "__main__":
    if len(sys.argv) > 2 and sys.argv[2] == "diag":
        DIAG = True
    for a_ in sys.argv[3:]:
        if "=" in a_:
            PRM[a_.split("=")[0]] = int(a_.split("=")[1])
        else:
            ABL.add(a_)
    build([(gen_k0, K0_GRID, 256), (gen_k1, 256, 512)], sys.argv[1] if len(sys.argv) > 1 else "k.s")
```
